```python
import torch

def _softmax(x, axis=-1):
    return torch.softmax(x, dim=axis)
def _gelu(x):
    return torch.nn.functional.gelu(x, approximate="tanh")
def _silu(x):
    return torch.nn.functional.silu(x)
def _sigmoid(x):
    return torch.sigmoid(x)
def _layernorm(x, axis=-1, eps=1e-5):
    m = x.mean(dim=axis, keepdim=True)
    v = x.var(dim=axis, keepdim=True, unbiased=False)
    return (x - m) / torch.sqrt(v + eps)
def _scatter_add(tgt, idx, src, axis=0):
    return tgt.clone().index_add_(axis, idx, src)
def _segment_sum(src, seg, n):
    out = torch.zeros((n,) + src.shape[1:], dtype=src.dtype)
    return out.index_add_(0, seg, src)
def _pad(x, pw):
    flat = tuple(v for pair in reversed(pw) for v in pair)
    return torch.nn.functional.pad(x, flat)

kernel_name = 'standalone__gqa_softmax__near_ridge'

def setup_inputs():

    _w = (lambda a: (lambda t: t.to(torch.bfloat16) if t.is_floating_point() else t)(torch.as_tensor(a)))
    B, Hq, Hkv, Sq, Sk, D = 32, 16, 8, 384, 384, 256
    return {
        "q": _w((lambda *s: torch.randn(*s, dtype=torch.bfloat16) * 0.8)(B, Hq, Sq, D)),
        "k": _w((lambda *s: torch.randn(*s, dtype=torch.bfloat16) * 0.8)(B, Hkv, Sk, D)),
        "v": _w((lambda *s: torch.randn(*s, dtype=torch.bfloat16) * 0.05)(B, Hkv, Sk, D)),
    }

def reference(q, k, v):
    B, Hq, Sq, D = q.shape
    Hkv = k.shape[1]
    rep = Hq // Hkv
    k = (lambda x, n, axis: torch.repeat_interleave(x, n, dim=axis))(k, rep, axis=1)
    v = (lambda x, n, axis: torch.repeat_interleave(x, n, dim=axis))(v, rep, axis=1)
    scale = D ** -0.5
    scores = torch.einsum("bhqd,bhkd->bhqk", q, k) * scale
    p = _softmax(scores, axis=-1)
    return torch.einsum("bhqk,bhkd->bhqd", p, v)
```

```python
import sys, struct, math, argparse

NAME = "standalone__gqa_softmax__near_ridge"

def f2h(x):
    return "0x%08x" % struct.unpack("<I", struct.pack("<f", x))[0]

class I:
    __slots__ = ("text", "kind", "rd", "wr", "tag", "need", "site", "opt", "C", "srd", "swr")
    def __init__(s, text, kind, rd=(), wr=(), tag=None, need=None, C=(), srd=(), swr=()):
        s.text = text; s.kind = kind; s.rd = frozenset(rd); s.wr = frozenset(wr)
        s.tag = tag; s.need = need; s.site = None; s.opt = False; s.C = frozenset(C)
        s.srd = frozenset(srd); s.swr = frozenset(swr)

def R(a, n=1): return range(a, a + n)
def vr(a, n): return "v%d" % a if n == 1 else "v[%d:%d]" % (a, a + n - 1)

def valu(op, d, *src, kind="valu", extra_rd=()):
    rd = [x for x in src if isinstance(x, int)] + list(extra_rd)
    t = "%s v%d, %s" % (op, d, ", ".join("v%d" % x if isinstance(x, int) else x for x in src))
    return I(t, kind, rd=rd, wr=[d])
def trans(op, d, s): return valu(op, d, s, kind="trans")
def salu(t, m0=False): return I(t, "salu_m0" if m0 else "salu")
def mfma(d, a, b, first):
    c = "0" if first else vr(d, 16)
    return I("v_mfma_f32_32x32x16_bf16 %s, %s, %s, %s" % (vr(d, 16), vr(a, 4), vr(b, 4), c), "mfma",
             rd=list(R(a, 4)) + list(R(b, 4)), wr=R(d, 16), C=() if first else R(d, 16))
def dsr128(d, a, off, tag=None):
    return I("ds_read_b128 %s, v%d offset:%d" % (vr(d, 4), a, off), "ds_r", rd=[a], wr=R(d, 4), tag=tag)
def dsrtr(d, a, off, tag=None):
    return I("ds_read_b64_tr_b16 %s, v%d offset:%d" % (vr(d, 2), a, off), "ds_r", rd=[a], wr=R(d, 2), tag=tag)
def dsw64(a, s, off=0):
    return I("ds_write_b64 v%d, %s%s" % (a, vr(s, 2), " offset:%d" % off if off else ""), "ds_w", rd=[a] + list(R(s, 2)))
def wait_l(tag): return I(None, "wait_l", need=tag)
def wait_v(tag): return I(None, "wait_v", need=tag)
def raw(t, kind="salu"): return I(t, kind)
def label(n): return I(n + ":", "label")
def nop(n): return I("s_nop %d" % n, "nop", tag=n)

P0 = 0; Q0 = 96; ACC = [160, 176]; FR0 = 192
KA = [224, 228]; VA = [232, 234]
VOK = 236; VOV = 237; VOO = 238; OLW = 239; OLR = 240
NEGM = 241; THR = 242; MRUN = 243; LS = 244; RINV = 245; TA0 = 246; TA1 = 247; T0 = 248

SQ = 4; SK = 8; SV = 12; SO = 16
S_W = 20; S_C = 21; S_TH = 22; S_WKL = 23; S_WVL = 24; S_R = 25; S_G = 26
S_KVC = 27; S_KVN = 28; S_QN = 29; S_RET = 30; S_PN = 32; S_KNN = 33; S_OPREV = 34
S_SO = 35; S_T = 36; S_T2 = 37; S_NC = 38; S_SO2 = 39
S_VB = 40; S_OB = 44
S_DBG = 48
S_ST = 52

QBYTES = 32 * 16 * 384 * 256 * 2
KBYTES = 32 * 8 * 384 * 256 * 2
SLOT = 16384
STG = 8 * SLOT

def srd(s): return "s[%d:%d]" % (s, s + 3)

class Gen:
    def __init__(g, o):
        g.o = o
        g.LA = o.la
        g.NF = o.nf
        assert g.NF >= g.LA

    def tiles(g):
        seq = [("K", c) for c in range(12)]
        for j in range(12):
            seq.append(("V", j))
            if j < 8: seq.append(("Q", j))
        return seq
    def step_of(g, t):
        return t[1] if t[0] == "K" else 12 + t[1]

    def dma(g, typ, idx, slot_addr, base_sgpr, tag):
        o = g.o
        if typ in "KQ":
            s = SK if typ == "K" else SQ
            fl = (" " + o.qflag if (typ == "Q" and o.qflag) else "") + (" " + o.kvflag if (typ == "K" and o.kvflag) else "")
            a = [salu("s_add_u32 m0, s%d, %d" % (S_WKL, slot_addr), m0=True),
                 salu("s_add_u32 s%d, s%d, %d" % (S_SO, base_sgpr, idx * SLOT)),
                 I("buffer_load_dwordx4 v%d, %s, s%d offen%s lds" % (VOK, srd(s), S_SO, fl), "dma", rd=[VOK])]
            b = [salu("s_add_u32 m0, s%d, %d" % (S_WKL, slot_addr + 4096 - 128), m0=True),
                 nop(0),
                 I("buffer_load_dwordx4 v%d, %s, s%d offen offset:128%s lds" % (VOK, srd(s), S_SO, fl), "dma", rd=[VOK], tag=tag)]
        else:
            dc, kt = divmod(idx, 3)
            fl = (" " + o.kvflag if o.kvflag else "")
            a = [salu("s_add_u32 m0, s%d, %d" % (S_WVL, slot_addr), m0=True),
                 salu("s_add_u32 s%d, s%d, %d" % (S_SO, S_VB + dc, kt * 65536)),
                 I("buffer_load_dwordx4 v%d, %s, s%d offen%s lds" % (VOV, srd(SV), S_SO, fl), "dma", rd=[VOV])]
            b = [salu("s_add_u32 m0, s%d, %d" % (S_WVL, slot_addr + 1024), m0=True),
                 salu("s_add_u32 s%d, s%d, %d" % (S_SO, S_VB + dc, kt * 65536 + 4096)),
                 I("buffer_load_dwordx4 v%d, %s, s%d offen%s lds" % (VOV, srd(SV), S_SO, fl), "dma", rd=[VOV], tag=tag)]
        return [a, b]

    def frag(g, m): return FR0 + 4 * (m % g.NF)

    def frag_reads(g, m):
        seq = g.tiles()
        d = g.frag(m)
        s, i = divmod(m, 16)
        if s < 12:
            slot = seq.index(("K", s)) & 7
            return [dsr128(d, KA[slot >> 2] + (i & 3), (slot & 3) * SLOT + (i >> 2) * 4096, tag=("F", m))]
        slot = seq.index(("V", s - 12)) & 7
        t, ks = divmod(i, 8)
        off = (slot & 3) * SLOT + ks * 2048
        return [dsrtr(d, VA[slot >> 2] + t, off), dsrtr(d + 2, VA[slot >> 2] + t, off + 1024, tag=("F", m))]

    def the_mfma(g, m):
        s, i = divmod(m, 16)
        if s < 12:
            return mfma(ACC[s & 1], g.frag(m), Q0 + 4 * i, i == 0)
        dc, kt = divmod(s - 12, 3)
        t, ks = divmod(i, 8)
        return mfma(ACC[t], g.frag(m), P0 + 4 * (8 * kt + ks), kt == 0 and ks == 0)

    def softmax(g, c):
        A = ACC[c & 1]
        L = []
        if c == 0:
            L.append(valu("v_max3_f32", MRUN, A, A + 1, A + 2))
            for i in range(3, 15, 2):
                L.append(valu("v_max3_f32", MRUN, MRUN, A + i, A + i + 1))
            L.append(valu("v_max_f32", MRUN, MRUN, A + 15))
            L.append(valu("v_mov_b32", TA0, MRUN))
            L.append(valu("v_mov_b32", TA1, MRUN))
            L.append(nop(1))
            L.append(I("v_permlane32_swap_b32 v%d, v%d" % (TA0, TA1), "perm", rd=[TA0, TA1], wr=[TA0, TA1]))
            L.append(valu("v_max_f32", TA0, TA0, TA1))
            L.append(valu("v_mul_f32", NEGM, "s%d" % S_NC, TA0))
            L.append(valu("v_add_f32", THR, "s%d" % S_TH, TA0))
        else:
            for i in range(0, 16, 2):
                L.append(valu("v_max3_f32", MRUN, MRUN, A + i, A + i + 1))
            L.append(I("v_cmp_gt_f32 vcc, v%d, v%d" % (MRUN, THR), "valu", rd=[MRUN, THR]))
            L.append([raw("s_cbranch_vccnz L_rare%d" % c, "branch"), label("L_ret%d" % c)])
        fm = lambda i: valu("v_fma_f32", A + i, A + i, "s%d" % S_C, NEGM)
        ex = lambda i: trans("v_exp_f32", A + i, A + i)
        def ad(i):
            if c == 0 and i == 0: return None
            if c == 0 and i == 1: return valu("v_add_f32", LS, A, A + 1)
            return valu("v_add_f32", LS, LS, A + i)
        cv = lambda i: valu("v_cvt_pk_bf16_f32", P0 + 8 * c + i // 2, A + i - 1, A + i)
        for k in range(0, 18):
            if k < 16: L.append(fm(k))
            if 1 <= k < 17: L.append(ex(k - 1))
            if k == 17: L.append(nop(0)) if False else None
            if k >= 2:
                a = ad(k - 2)
                if a: L.append(a)
                if (k - 2) & 1: L.append(cv(k - 2))
        return [x for x in L if x is not None]

    def lfinal(g):
        return [valu("v_mov_b32", TA0, LS), valu("v_mov_b32", TA1, LS), nop(1),
                I("v_permlane32_swap_b32 v%d, v%d" % (TA0, TA1), "perm", rd=[TA0, TA1], wr=[TA0, TA1]),
                valu("v_add_f32", TA0, TA0, TA1), trans("v_rcp_f32", RINV, TA0)]

    def epilogue(g, t):
        A = ACC[t]
        L = []
        for j in range(4):
            for i in range(4):
                L.append(valu("v_mul_f32", A + 4 * j + i, RINV, A + 4 * j + i))
            u = 4 * t + j
            ta = OLW
            if u:
                ta = TA0 + (j & 1)
                L.append(valu("v_xor_b32", ta, str(u << 4) if (u << 4) <= 64 else "0x%x" % (u << 4), OLW))
            L.append(valu("v_cvt_pk_bf16_f32", A + 4 * j, A + 4 * j, A + 4 * j + 1))
            L.append(valu("v_cvt_pk_bf16_f32", A + 4 * j + 1, A + 4 * j + 2, A + 4 * j + 3))
            L.append(dsw64(ta, A + 4 * j))
        return L

    def rb_read(g, n): return dsr128(T0 + 4 * (n & 1), OLR, 1024 * n, tag=("RB", n))
    def rb_store(g, n, base):
        fl = " " + g.o.oflag if g.o.oflag else ""
        L = []
        so = base
        if n:
            L.append(salu("s_add_u32 s%d, s%d, %d" % (S_SO2, base, 4096 * n)))
            so = S_SO2
        L.append(wait_l(("RB", n)))
        L.append(I("buffer_store_dwordx4 %s, v%d, %s, s%d offen%s" % (vr(T0 + 4 * (n & 1), 4), VOO, srd(SO), so, fl),
                   "st", rd=[VOO] + list(R(T0 + 4 * (n & 1), 4))))
        return L

    def item_vars(g):
        L = []
        a = lambda t: L.append(salu(t))
        a("s_and_b32 s%d, s%d, %d" % (S_T, S_PN, 3 if g.o.rot else 0))
        a("s_lshl_b32 s%d, s%d, 7" % (S_T, S_T))
        a("s_mul_i32 s%d, s%d, 196608" % (S_KVC, S_PN))
        a("s_lshl_b32 s%d, s%d, 17" % (S_T2, S_G))
        for dc in range(4):
            a("s_add_u32 s%d, s%d, s%d" % (S_VB + dc, S_KVC, S_T))
            a("s_add_u32 s%d, s%d, s%d" % (S_OB + dc, S_T2, S_T))
            if dc < 3:
                a("s_add_u32 s%d, s%d, 128" % (S_T, S_T))
                a("s_and_b32 s%d, s%d, 0x180" % (S_T, S_T))
        L.append([salu("s_cmp_lt_u32 s%d, 2" % S_R),
                  salu("s_cselect_b32 s%d, 32, 0" % S_T),
                  salu("s_cselect_b32 s%d, %d, 0" % (S_KNN, KBYTES)),
                  salu("s_cselect_b32 s%d, %d, 0" % (SQ + 2, QBYTES))])
        a("s_add_u32 s%d, s%d, s%d" % (S_T, S_G, S_T))
        a("s_mul_hi_u32 s%d, s%d, 0x55555556" % (S_PN, S_T))
        a("s_lshl_b32 s%d, s%d, 17" % (S_QN, S_T))
        a("s_mul_i32 s%d, s%d, 196608" % (S_KVN, S_PN))
        return L

    @staticmethod
    def cost(x):
        if isinstance(x, list): return sum(Gen.cost(y) for y in x)
        if x.kind == "trans": return 2
        if x.kind == "label": return 0
        return 1

    def spread(g, post, L, m0, m1):
        tot = sum(g.cost(x) for x in L)
        n = m1 - m0 + 1
        acc = 0
        for x in L:
            k = min(n - 1, int((acc + 0.5 * g.cost(x)) * n / tot))
            acc += g.cost(x)
            post[m0 + k].extend(x if isinstance(x, list) else [x])

    def stamp(g, k):
        if not g.o.stamps: return []
        return [raw("s_memtime s[%d:%d]" % (S_ST + 2 * k, S_ST + 2 * k + 1), "smem")]

    def body(g):
        o = g.o; LA = g.LA
        seq = g.tiles()
        pre = [[] for _ in range(384)]
        head = [[] for _ in range(384)]
        reads = [[] for _ in range(384)]
        post = [[] for _ in range(384)]
        for m in range(384):
            mm = (m + LA) % 384
            if mm % 16 == 0:
                s = mm // 16
                last = [n for n, t in enumerate(seq) if g.step_of(t) == s]
                for n in last: head[m].append(wait_v(("T", n)))
                head[m].append(raw("s_barrier", "barrier"))
            reads[m] += g.frag_reads(mm)
            if m % o.wg == 0:
                pre[m].append(wait_l(("F", min(m + o.wg - 1, 383))))
        for s in range(24):
            freed = []
            for n, t in enumerate(seq):
                lag = 1 if t[0] == "Q" else 2
                if (g.step_of(t) + lag) % 24 == s: freed.append(n)
            groups = []
            for n in sorted(freed):
                n2 = (n + 8) % 32
                typ, idx = seq[n2]
                if typ == "K":
                    nxt = s >= 12
                    base = S_KVN if nxt else S_KVC
                    gs = g.dma("K", idx, (n2 & 7) * SLOT, base, ("T", n2))
                    if nxt and not getattr(g, "_kswitch", False):
                        gs[0] = [salu("s_mov_b32 s%d, s%d" % (SK + 2, S_KNN))] + gs[0]
                        g._kswitch = True
                elif typ == "Q":
                    gs = g.dma("Q", idx, (n2 & 7) * SLOT, S_QN, ("T", n2))
                else:
                    gs = g.dma("V", idx, (n2 & 7) * SLOT, None, ("T", n2))
                groups += gs
            m0 = 16 * s if s < o.dma_early_from else 16 * s - LA
            for k, gr in enumerate(groups):
                post[m0 + k * o.dma_gap].extend(gr)
        for c in range(11):
            g.spread(post, g.softmax(c), 16 * (c + 1) + o.sm0, 16 * (c + 1) + 15)
        g.spread(post, g.softmax(11), 192 + o.sm0, 192 + 7)
        g.spread(post, g.lfinal(), 192 + 8, 192 + 10)
        for dc in range(4):
            mlast = 192 + 48 * dc + 32
            g.spread(post, g.epilogue(0), mlast + 8 + o.ep0, mlast + 15)
            mn = (mlast + 16) % 384
            g.spread(post, g.epilogue(1), mn + o.ep0, mn + 7)
            base = S_OB + dc if dc < 3 else S_OPREV
            post[mn + 8] += [g.rb_read(0), g.rb_read(1)]
            post[mn + 11] += g.rb_store(0, base) + g.rb_store(1, base)
            post[mn + 12] += [g.rb_read(2), g.rb_read(3)]
            post[mn + 15] += g.rb_store(2, base) + g.rb_store(3, base)
            if dc == 3:
                post[mn + 15].append(salu("s_mov_b32 s%d, %d" % (SO + 2, QBYTES)))
        for j in range(8):
            slot = seq.index(("Q", j)) & 7
            blk = [salu("s_cmp_lg_u32 s%d, %d" % (S_W, j)), raw("s_cbranch_scc1 L_noq%d" % j, "branch")]
            for ks in range(16):
                x = dsr128(Q0 + 4 * ks, KA[slot >> 2] + (ks & 3), (slot & 3) * SLOT + (ks >> 2) * 4096)
                x.opt = ("Q", j)
                blk.append(x)
            blk.append(label("L_noq%d" % j))
            head[192 + 16 * j] += blk
        upd = [salu("s_mov_b32 s%d, s%d" % (S_OPREV, S_OB + 3)),
               salu("s_add_u32 s%d, s%d, 32" % (S_G, S_G)),
               salu("s_add_u32 s%d, s%d, 1" % (S_R, S_R))] + g.item_vars()
        g.spread(post, upd, 369, 375)
        if o.prio:
            for s in range(24):
                for k in range(4):
                    m = (16 * s - LA + 4 * k) % 384
                    post[m].insert(0, raw("s_setprio %d" % (3 - k)))
        out = [label("L_item")]
        for m in range(384):
            if o.stamps and m % 192 == 0:
                out += g.stamp_store(m // 192)
            out += pre[m]
            out.append(g.the_mfma(m))
            out += head[m] + reads[m] + post[m]
        out += [salu("s_cmp_lt_u32 s%d, 3" % S_R), raw("s_cbranch_scc1 L_item", "branch")]
        return out

    def stamp_store(g, k, fixed=None):
        L = []
        a = lambda t, kind="salu": L.append(raw(t, kind))
        nm = "L_st%s_%s" % (k, fixed)
        a("s_cmp_lg_u32 s%d, 0" % S_W)
        a("s_cbranch_scc1 " + nm, "branch")
        blk = []
        b = lambda t: blk.append(raw(t, "salu"))
        b("s_memtime s[52:53]")
        b("s_memrealtime s[54:55]")
        if fixed is None:
            b("s_lshl_b32 s56, s%d, 1" % S_R)
            b("s_add_u32 s56, s56, %d" % (k + 2))
        else:
            b("s_mov_b32 s56, %d" % fixed)
        b("s_lshl_b32 s56, s56, 4")
        b("s_lshl_b32 s57, s2, 8")
        b("s_add_u32 s56, s56, s57")
        b("s_waitcnt lgkmcnt(0)")
        b("s_mov_b64 s[58:59], exec")
        b("s_mov_b64 exec, 1")
        for q in range(4):
            b("v_mov_b32 v%d, s%d" % (TA0, 52 + q))
            b("buffer_store_dword v%d, off, s[48:51], s56 offset:%d" % (TA0, 4 * q))
            b("s_nop 1")
        b("s_mov_b64 exec, s[58:59]")
        for x in blk: x.opt = ("S", 0)
        L += blk
        L.append(label(nm))
        return L

    def prologue(g):
        o = g.o
        L = []
        a = lambda t: L.append(salu(t))
        v = lambda *x, **k: L.append(valu(*x, **k))
        a("s_cmp_ge_u32 s2, 256")
        L.append(raw("s_cbranch_scc1 L_end", "branch"))
        L.append(raw("s_load_dwordx4 s[4:7], s[0:1], 0", "smem"))
        L.append(raw("s_load_dwordx4 s[12:15], s[0:1], 16", "smem"))
        if o.stamps:
            L.append(raw("s_load_dwordx2 s[48:49], s[0:1], 40", "smem"))
        t = [T0 + i for i in range(8)]
        lane, w = t[0], t[1]
        v("v_lshrrev_b32", w, "6", 0)
        v("v_and_b32", lane, "63", 0)
        L.append(I("v_readfirstlane_b32 s%d, v%d" % (S_W, w), "rfl", rd=[w]))
        a("s_and_b32 s%d, s2, 7" % S_T)
        a("s_mul_i32 s%d, s%d, 96" % (S_T, S_T))
        a("s_lshr_b32 s%d, s2, 3" % S_G)
        a("s_add_u32 s%d, s%d, s%d" % (S_G, S_G, S_T))
        a("s_mul_hi_u32 s%d, s%d, 0x55555556" % (S_PN, S_G))
        a("s_mov_b32 s%d, 0" % S_R)
        c = math.log2(math.e) / 16.0
        a("s_mov_b32 s%d, %s" % (S_C, f2h(c)))
        a("s_mov_b32 s%d, %s" % (S_NC, f2h(-c)))
        a("s_mov_b32 s%d, %s" % (S_TH, f2h(o.thr / c)))
        v("v_lshrrev_b32", t[2], "3", lane)
        v("v_and_b32", t[3], "7", lane)
        v("v_and_b32", t[4], "3", w)
        v("v_lshl_add_u32", t[4], t[4], "3", t[2])
        v("v_bfe_u32", t[5], t[4], "1", "3")
        v("v_xor_b32", t[5], t[5], t[3])
        v("v_lshlrev_b32", t[5], "4", t[5])
        v("v_lshl_add_u32", t[5], t[4], "9", t[5])
        v("v_lshrrev_b32", t[4], "2", w)
        v("v_lshl_add_u32", VOK, t[4], "8", t[5])
        a("s_and_b32 s%d, s%d, 3" % (S_T, S_W))
        a("s_lshl_b32 s%d, s%d, 10" % (S_T, S_T))
        a("s_lshr_b32 s%d, s%d, 2" % (S_WKL, S_W))
        a("s_lshl_b32 s%d, s%d, 13" % (S_WKL, S_WKL))
        a("s_add_u32 s%d, s%d, s%d" % (S_WKL, S_WKL, S_T))
        a("s_lshl_b32 s%d, s%d, 11" % (S_WVL, S_W))
        L.append(raw("s_waitcnt lgkmcnt(0)", "waitall"))
        a("s_mov_b32 s8, s6"); a("s_mov_b32 s9, s7")
        a("s_mov_b32 s16, s14"); a("s_mov_b32 s17, s15")
        a("s_mov_b32 s7, 0x20000"); a("s_mov_b32 s11, 0x20000"); a("s_mov_b32 s15, 0x20000"); a("s_mov_b32 s19, 0x20000")
        a("s_mov_b32 s10, %d" % KBYTES); a("s_mov_b32 s14, %d" % KBYTES); a("s_mov_b32 s18, 0")
        if o.stamps:
            a("s_mov_b32 s50, 0x100000"); a("s_mov_b32 s51, 0x20000")
            L += g.stamp_store(0, fixed=0)
        for x in g.item_vars(): L.extend(x if isinstance(x, list) else [x])
        a("s_mov_b32 s%d, s%d" % (S_OPREV, S_OB + 3))
        a("s_lshl_b32 s%d, s%d, 17" % (S_T2, S_G))
        for c_ in range(2):
            for gr in g.dma("K", c_, c_ * SLOT, S_KVC, ("T", c_)): L += gr
        for j in range(8):
            for gr in g.dma("Q", j, (j + 2) * SLOT, S_T2, ("PQ", j)): L += gr
        if o.kpre:
            v("v_lshlrev_b32", t[6], "7", 0)
            a("s_add_u32 s%d, s%d, %d" % (S_SO, S_KVC, 2 * SLOT))
            L.append(I("buffer_load_dword v%d, v%d, %s, s%d offen" % (t[7], t[6], srd(SK), S_SO), "ld", rd=[t[6]], wr=[]))
        v("v_bfe_u32", t[4], lane, "4", "1")
        v("v_lshlrev_b32", t[4], "2", t[4])
        v("v_xor_b32", t[4], t[4], t[3])
        v("v_lshlrev_b32", t[4], "4", t[4])
        v("v_lshl_add_u32", t[5], w, "4", t[2])
        v("v_lshl_add_u32", VOV, t[5], "9", t[4])
        v("v_lshl_add_u32", t[5], w, "5", t[2])
        v("v_lshlrev_b32", t[4], "4", t[3])
        v("v_lshl_add_u32", VOO, t[5], "9", t[4])
        v("v_xor_b32", t[4], t[3], t[2])
        v("v_lshlrev_b32", t[4], "4", t[4])
        v("v_lshl_add_u32", t[4], t[2], "7", t[4])
        v("v_lshl_add_u32", t[4], w, "12", t[4])
        v("v_add_u32", OLR, "0x%x" % STG, t[4])
        v("v_and_b32", t[4], "31", lane)
        v("v_lshrrev_b32", t[5], "5", lane)
        v("v_lshlrev_b32", TA0, "4", t[3])
        v("v_lshl_add_u32", TA0, t[4], "7", TA0)
        v("v_lshl_add_u32", TA0, t[5], "3", TA0)
        v("v_lshl_add_u32", TA0, w, "12", TA0)
        v("v_add_u32", OLW, "0x%x" % STG, TA0)
        v("v_bfe_u32", TA0, t[4], "1", "3")
        v("v_xor_b32", TA0, TA0, t[5])
        v("v_lshlrev_b32", TA0, "4", TA0)
        v("v_lshl_add_u32", KA[0], t[4], "7", TA0)
        for x in range(1, 4):
            v("v_xor_b32", KA[0] + x, str(x << 5) if (x << 5) <= 64 else "0x%x" % (x << 5), KA[0])
        for x in range(4):
            v("v_add_u32", KA[1] + x, "0x10000", KA[0] + x)
        v("v_bfe_u32", TA0, lane, "2", "2")
        v("v_lshl_add_u32", TA0, t[5], "2", TA0)
        v("v_lshlrev_b32", TA1, "7", TA0)
        v("v_bfe_u32", TA0, TA0, "1", "1")
        v("v_lshl_add_u32", TA1, TA0, "6", TA1)
        v("v_bfe_u32", TA0, lane, "4", "1")
        v("v_lshl_add_u32", TA1, TA0, "5", TA1)
        v("v_and_b32", TA0, "3", lane)
        v("v_lshl_add_u32", VA[0], TA0, "3", TA1)
        v("v_xor_b32", VA[0] + 1, "64", VA[0])
        v("v_add_u32", VA[1], "0x10000", VA[0])
        v("v_add_u32", VA[1] + 1, "0x10000", VA[0] + 1)
        v("v_mov_b32", RINV, "0")
        a("s_add_u32 s%d, s%d, 2" % (S_T, S_W))
        a("s_lshl_b32 s%d, s%d, 14" % (S_T, S_T))
        for x in range(4):
            v("v_add_u32", 4 + x, "s%d" % S_T, KA[0] + x)
        L.append(wait_v(("PQ", 7)))
        L.append(raw("s_barrier", "barrier"))
        for ks in range(16):
            L.append(dsr128(Q0 + 4 * ks, 4 + (ks & 3), (ks >> 2) * 4096, tag=("PQR", ks)))
        L.append(wait_l(("PQR", 15)))
        L.append(raw("s_barrier", "barrier"))
        for m in range(g.LA): L += g.frag_reads(m)
        for c_ in range(2, 6):
            for gr in g.dma("K", c_, c_ * SLOT, S_KVC, ("T", c_)): L += gr
        if o.stamps: L += g.stamp_store(1, fixed=1)
        return L

    def tail(g):
        L = [nop(7), nop(3)]
        if g.o.stamps: L += g.stamp_store(2, fixed=8)
        L += g.epilogue(1)
        L += [g.rb_read(0), g.rb_read(1)] + g.rb_store(0, S_OPREV) + g.rb_store(1, S_OPREV)
        L += [nop(1), g.rb_read(2), g.rb_read(3)] + g.rb_store(2, S_OPREV) + g.rb_store(3, S_OPREV)
        if g.o.stamps:
            L.append(raw("s_waitcnt vmcnt(0)", "salu"))
            L += g.stamp_store(3, fixed=9)
        L.append(label("L_end"))
        L.append(raw("s_endpgm"))
        return L

    def rare(g):
        L = []
        for c in range(1, 12):
            L.append(label("L_rare%d" % c))
            L.append(raw("s_call_b64 s[%d:%d], L_rescale" % (S_RET, S_RET + 1), "branch"))
            if c == 11:
                for i in range(16):
                    L.append(valu("v_mul_f32", ACC[0] + i, TA1, ACC[0] + i))
                L.append(nop(1))
            L.append(raw("s_branch L_ret%d" % c, "branch"))
        L.append(label("L_rescale"))
        L += [valu("v_mov_b32", TA0, MRUN), valu("v_mov_b32", TA1, MRUN), nop(1),
              I("v_permlane32_swap_b32 v%d, v%d" % (TA0, TA1), "perm", rd=[TA0, TA1], wr=[TA0, TA1]),
              valu("v_max_f32", TA0, TA0, TA1),
              valu("v_add_f32", THR, "s%d" % S_TH, TA0),
              valu("v_mul_f32", TA0, "s%d" % S_NC, TA0),
              valu("v_sub_f32", TA1, TA0, NEGM),
              trans("v_exp_f32", TA1, TA1),
              valu("v_mov_b32", NEGM, TA0),
              valu("v_mul_f32", LS, TA1, LS)]
        for p in range(88):
            a, b = T0 + 2 * (p & 1), T0 + 2 * (p & 1) + 1
            L += [valu("v_lshlrev_b32", a, "16", P0 + p), valu("v_and_b32", b, "0xffff0000", P0 + p),
                  valu("v_mul_f32", a, TA1, a), valu("v_mul_f32", b, TA1, b),
                  valu("v_cvt_pk_bf16_f32", P0 + p, a, b)]
        L.append(nop(1))
        L.append(raw("s_setpc_b64 s[%d:%d]" % (S_RET, S_RET + 1), "branch"))
        return L

LK = ("ds_r", "ds_w"); VK = ("dma", "st", "ld")

def resolve(paths):
    val = {}
    for path in paths:
        lq = []; vq = []
        for x in path:
            if x.opt: continue
            if x.kind in LK: lq.append(x)
            elif x.kind in VK: vq.append(x)
            elif x.kind in ("wait_l", "wait_v"):
                q = lq if x.kind == "wait_l" else vq
                n = None
                for k in range(len(q) - 1, -1, -1):
                    if q[k].tag == x.need:
                        n = len(q) - 1 - k; break
                assert n is not None, x.need
                n = min(n, 15 if x.kind == "wait_l" else 63)
                val[id(x)] = min(val.get(id(x), 99), n)
    for path in paths:
        for x in path:
            if x.kind in ("wait_l", "wait_v"):
                x.site = val[id(x)]
                x.text = "s_waitcnt %s(%d)" % ("lgkmcnt" if x.kind == "wait_l" else "vmcnt", x.site)

def prune_waits(code):
    out = []
    for x in code:
        if x.kind in ("wait_l", "wait_v") and out and out[-1].kind == x.kind:
            if x.site < out[-1].site: out[-1] = x
            continue
        out.append(x)
    return out

def check(path, optsel, strict):
    t = 0; last_mfma_t = -99
    pend = []
    wr_mfma = {}; wr_valu = {}; wr_trans = {}; rdC = {}; st_data = {}
    m0_t = -99
    errs = 0
    def err(msg, x):
        nonlocal errs
        errs += 1
        if errs < 20: print("HAZARD:", msg, "|", x.text, file=sys.stderr)
    for x in path:
        if x.opt and x.opt != optsel: continue
        if x.kind == "label": continue
        if x.kind == "mfma" and not strict: t = max(t, last_mfma_t + 8)
        touched = x.rd | x.wr | x.C
        for p in pend:
            if p.kind == "ds_r" and (p.wr & touched): err("unwaited ds_read %s" % p.text, x)
        isv = x.kind in ("valu", "trans", "perm", "rfl")
        for r in touched:
            if r in wr_mfma:
                tt, full = wr_mfma[r]
                if x.kind == "mfma" and r in x.wr and r not in x.rd and (x.C == full or not x.C) and x.wr == full: continue
                if t - tt - 1 < 12: err("mfma D -> use %d states (v%d)" % (t - tt - 1, r), x)
        if x.kind == "mfma":
            for r in (x.rd | x.C):
                if r in wr_valu and t - wr_valu[r] - 1 < 2: err("valu -> mfma", x)
        if x.kind == "perm":
            for r in x.rd:
                if r in wr_valu and t - wr_valu[r] - 1 < 2: err("valu -> permlane", x)
        if x.kind == "rfl":
            for r in x.rd:
                if r in wr_valu and t - wr_valu[r] - 1 < 1: err("valu -> readfirstlane", x)
        if isv and x.kind != "trans":
            for r in x.rd:
                if r in wr_trans and t - wr_trans[r] - 1 < 1: err("trans -> valu", x)
        if isv:
            for r in x.wr:
                if r in rdC and t - rdC[r] - 1 < 7: err("mfma C WAR", x)
        for r in x.wr:
            if r in st_data and t - st_data[r] - 1 < 2: err("store data WAR", x)
        if x.kind == "dma" and t - m0_t - 1 < 1: err("m0 -> dma", x)
        if x.kind == "salu_m0": m0_t = t
        if x.kind == "mfma":
            last_mfma_t = t
            for r in x.wr: wr_mfma[r] = (t, x.wr); wr_valu.pop(r, None)
            for r in x.C: rdC[r] = t
        if isv:
            for r in x.wr:
                wr_valu[r] = t; wr_mfma.pop(r, None)
                if x.kind == "trans": wr_trans[r] = t
                else: wr_trans.pop(r, None)
        if x.kind == "st":
            for r in x.rd: st_data[r] = t
        if x.kind in LK: pend.append(x)
        if x.kind == "wait_l": pend = pend[len(pend) - x.site:] if x.site < len(pend) else pend
        if x.kind == "wait_l" and x.site == 0: pend = []
        t += (x.tag + 1) if x.kind == "nop" else 1
    return errs

HEADER = """; GQA attention forward, B=32 Hq=16 Hkv=8 Sq=Sk=384 D=256, bf16 in/out (generated by a script).
; One persistent 8-wave workgroup per CU, three items of 256 query rows each.
; Per item: S^T = K Q^T chunk by chunk (running max, deferred rescale) -> P in registers, then O^T = V^T P^T.
; @launch grid=(256,1,1) block=(512,1,1) lds=163840
.amdgcn_target "amdgcn-amd-amdhsa--gfx950"
.text
.globl {n}_kernel
.p2align 8
.type {n}_kernel,@function
{n}_kernel:
"""
FOOTER = """.section .rodata,"a"
.p2align 6
.amdhsa_kernel {n}_kernel
  .amdhsa_next_free_vgpr 256
  .amdhsa_next_free_sgpr 102
  .amdhsa_accum_offset 256
  .amdhsa_group_segment_fixed_size 0
  .amdhsa_kernarg_size 48
  .amdhsa_user_sgpr_count 2
  .amdhsa_user_sgpr_kernarg_segment_ptr 1
  .amdhsa_system_sgpr_workgroup_id_x 1
.end_amdhsa_kernel
"""

def main():
    ap = argparse.ArgumentParser()
    ap.add_argument("-o", dest="out", default="cdna_kernels/%s.s" % NAME)
    ap.add_argument("--la", type=int, default=6)
    ap.add_argument("--nf", type=int, default=8)
    ap.add_argument("--wg", type=int, default=2)
    ap.add_argument("--sm0", type=int, default=1)
    ap.add_argument("--ep0", type=int, default=1)
    ap.add_argument("--dma_early_from", type=int, default=12)
    ap.add_argument("--dma_gap", type=int, default=1)
    ap.add_argument("--thr", type=float, default=20.0)
    ap.add_argument("--qflag", default="")
    ap.add_argument("--kvflag", default="")
    ap.add_argument("--oflag", default="")
    ap.add_argument("--rot", type=int, default=1)
    ap.add_argument("--kpre", type=int, default=1)
    ap.add_argument("--prio", type=int, default=0)
    ap.add_argument("--stamps", type=int, default=0)
    ap.add_argument("--strict", type=int, default=0)
    ap.add_argument("--drop", default="", help="diagnostic: comma list of kinds to drop from the body")
    o = ap.parse_args()
    g = Gen(o)
    pro, body, tail, rare = g.prologue(), g.body(), g.tail(), g.rare()
    resolve([pro + body + body + tail])
    pro, body, tail = prune_waits(pro), prune_waits(body), prune_waits(tail)
    errs = 0
    for sel in [None] + [("Q", j) for j in range(8)]:
        errs += check(pro + body + body + tail, sel, o.strict)
    errs += check(rare, None, o.strict)
    if errs: print("%d hazard findings" % errs, file=sys.stderr)
    drop = set(o.drop.split(",")) if o.drop else set()
    if drop:
        body = [x for x in body if x.kind not in drop]
    txt = HEADER.format(n=NAME)
    for x in pro + [raw(".p2align 6", "label")] * 0 + body + tail + rare:
        txt += ("" if x.kind == "label" else "    ") + x.text + "\n"
    txt += FOOTER.format(n=NAME)
    open(o.out, "w").write(txt)
    from collections import Counter
    print(dict(Counter(x.kind for x in body)), file=sys.stderr)
    return 1 if errs else 0

if __name__ == "__main__":
    sys.exit(main())
```

```python
import sys, struct, math, argparse
from collections import Counter

NAME = "standalone__gqa_softmax__near_ridge"
def f2h(x): return "0x%08x" % struct.unpack("<I", struct.pack("<f", x))[0]

class I:
    __slots__ = ("text", "kind", "rd", "wr", "tag", "need", "site", "C", "reg", "drop", "vneed", "vsite")
    def __init__(s, text, kind, rd=(), wr=(), tag=None, need=None, C=(), reg=None, vneed=None):
        s.text = text; s.kind = kind; s.rd = frozenset(rd); s.wr = frozenset(wr)
        s.tag = tag; s.need = need; s.site = None; s.C = frozenset(C); s.reg = reg; s.drop = False
        s.vneed = vneed; s.vsite = None

A = 256
def R(a, n=1): return list(range(a, a + n))
def rn(a, n=1):
    p, i = ("a", a - A) if a >= A else ("v", a)
    return "%s%d" % (p, i) if n == 1 else "%s[%d:%d]" % (p, i, i + n - 1)
def lit(x): return str(x) if -16 <= x <= 64 else "0x%x" % x

def valu(op, d, *src, kind="valu"):
    rd = [x for x in src if isinstance(x, int)]
    return I("%s %s, %s" % (op, rn(d), ", ".join(rn(x) if isinstance(x, int) else x for x in src)), kind, rd=rd, wr=[d])
def trans(op, d, s): return valu(op, d, s, kind="trans")
def perm(n, a, b): return I("v_permlane%d_swap_b32 %s, %s" % (n, rn(a), rn(b)), "perm", rd=[a, b], wr=[a, b])
def salu(t, m0=False): return I(t, "salu_m0" if m0 else "salu")
def mfma(d, a, b, first):
    return I("v_mfma_f32_16x16x32_bf16 %s, %s, %s, %s" % (rn(d, 4), rn(a, 4), rn(b, 4), "0" if first else rn(d, 4)), "mfma",
             rd=R(a, 4) + R(b, 4), wr=R(d, 4), C=() if first else R(d, 4))
def dsr128(d, a, off, tag=None, reg=None):
    return I("ds_read_b128 %s, %s offset:%d" % (rn(d, 4), rn(a), off), "ds_r", rd=[a], wr=R(d, 4), tag=tag, reg=reg)
def dsrtr(d, a, off, tag=None, reg=None):
    return I("ds_read_b64_tr_b16 %s, %s offset:%d" % (rn(d, 2), rn(a), off), "ds_r", rd=[a], wr=R(d, 2), tag=tag, reg=reg)
def dsw64(a, s, off, reg=None):
    return I("ds_write_b64 %s, %s offset:%d" % (rn(a), rn(s, 2), off), "ds_w", rd=[a] + R(s, 2), reg=reg)
def wait(l=None, v=None): return I(None, "wait", need=l, vneed=v)
def raw(t, kind="salu"): return I(t, kind)
def label(n): return I(n + ":", "label")
def nop(n): return I("s_nop %d" % n, "nop", tag=n)
def barrier(): return I("s_barrier", "barrier")

P0 = 0
ACC = [192, 208]
KA = [224, 226]; QA = 228; VA = 230; VOFF = 231; OLW = 235; OLR = 236
NEGM = 237; RINV = 241; T = 245
Q0 = A + 0; FR0 = A + 128; LACC = A + 192; ONES = A + 208; RB = A + 212

SQ = 4; SK = 8; SV = 12; SO = 16
S_W = 20; S_C = 21; S_TH = 22; S_WL = 23; S_NC = 24; S_R = 25; S_G = 26
S_KVC = 27; S_KB = 28; S_KBN = 29; S_QB = 30; S_PN = 31; S_KNN = 32; S_OPREV = 33
S_SO = 34; S_SO2 = 35; S_T = 36; S_T2 = 37; S_T3 = 38; S_U = 39
S_VB = 40; S_OB = 44
S_DBG = 48; S_ST = 56

QBYTES = 32 * 16 * 384 * 256 * 2
KBYTES = 32 * 8 * 384 * 256 * 2
SLOT = 16384
def srd(s): return "s[%d:%d]" % (s, s + 3)
def cost(x):
    if isinstance(x, list): return sum(cost(y) for y in x)
    return {"trans": 2, "label": 0}.get(x.kind, 1)

class Gen:
    def __init__(g, o):
        g.o = o; g.LA = 6; g.NF = 8
        g.nst = 0

    def dma(g, typ, slot, base, add, tag):
        o = g.o
        s = {"K": SK, "Q": SQ, "V": SV}[typ]
        fl = o.qflag if typ == "Q" else o.kvflag
        fl = " " + fl if fl else ""
        L = [salu("s_add_u32 m0, s%d, %s" % (S_WL, lit(slot * SLOT)), m0=True),
             salu("s_add_u32 s%d, s%d, %s" % (S_SO, base, lit(add)))]
        for p in range(4):
            L.append(I("buffer_load_dwordx4 %s, %s, s%d offen%s%s lds" % (rn(VOFF + p), srd(s), S_SO, " offset:%d" % (1024 * p) if p else "", fl),
                       "dma", rd=[VOFF + p], tag=tag if p == 3 else None, reg=(slot, tag)))
        return L
    def dmaK(g, c, nxt): return g.dma("K", c % 6, S_KBN if nxt else S_KB, c * SLOT, ("K", c))
    def dmaV(g, dc, kt): return g.dma("V", 3 * (dc & 1) + kt, S_VB + dc, kt * 65536, ("V", dc, kt))
    def dmaQ(g, j, slot, base=S_QB): return g.dma("Q", slot, base, (j >> 2) * 16384 + (j & 3) * 128, ("Q", j))
    def qreads(g, j, slot, qa=QA, slot0=6):
        L = []
        for bb in range(2):
            for x in range(2):
                d = Q0 + ((2 * (j >> 2) + bb) * 8 + 2 * (j & 3) + x) * 4
                L.append(dsr128(d, qa + x, (slot - slot0) * SLOT + bb * 2048, tag=("QR", j), reg=(slot, ("Q", j), "priv")))
        return L

    def frag(g, f): return FR0 + 4 * (f % g.NF)
    def frag_reads(g, f):
        d = g.frag(f)
        if f < 192:
            u, ks = divmod(f, 8); c = u >> 1
            return [dsr128(d, KA[(c % 6) // 3] + (ks & 1), (c % 3) * SLOT + (ks >> 1) * 4096 + (u & 1) * 2048,
                           tag=("F", f), reg=(c % 6, ("K", c), "shared"))]
        D, j = divmod(f - 192, 12); dc = D >> 2
        reg = (3 * (dc & 1) + (j >> 2), ("V", dc, j >> 2), "shared")
        return [dsrtr(d, VA, j * 4096, reg=reg), dsrtr(d + 2, VA, j * 4096 + 2048, tag=("F", f), reg=reg)]
    @staticmethod
    def vconst(D): return ((D & 3) << 5) ^ (((D >> 2) & 1) * 0xC000)

    def mf(g, G, b):
        if G < 192:
            u, ks = divmod(G, 8)
            return mfma(ACC[u & 1] + 4 * b, g.frag(G), Q0 + (b * 8 + ks) * 4, ks == 0)
        D, j = divmod(G - 192, 12)
        return mfma(ACC[D & 1] + 4 * b, g.frag(G), P0 + (j * 4 + b) * 4, j == 0)
    def summf(g, j, b): return mfma(LACC + 4 * b, ONES, P0 + (j * 4 + b) * 4, j == 0)

    def fma(g, u, e): a = ACC[u & 1] + e; return valu("v_fma_f32", a, a, "s%d" % S_C, NEGM + (e >> 2))
    def exp(g, u, e): a = ACC[u & 1] + e; return trans("v_exp_f32", a, a)
    def cvt(g, u, k):
        a = ACC[u & 1] + 2 * k
        return valu("v_cvt_pk_bf16_f32", P0 + ((u >> 1) * 4 + (k >> 1)) * 4 + 2 * (u & 1) + (k & 1), a, a + 1)
    def xreduce(g, pad):
        m = [NEGM + b for b in range(4)]
        n = (lambda: [nop(1)]) if pad else (lambda: [])
        L = n() + [perm(32, m[0], m[2]), perm(32, m[1], m[3]),
             valu("v_max_f32", m[0], m[0], m[2]), valu("v_max_f32", m[1], m[1], m[3])] + [nop(1)] + \
            [perm(16, m[0], m[1]), valu("v_max_f32", m[0], m[0], m[1]),
             valu("v_mul_f32", m[0], "s%d" % S_NC, m[0]), valu("v_mov_b32", m[1], m[0])] + [nop(1)] + \
            [perm(16, m[0], m[1]), valu("v_mov_b32", m[2], m[0]), valu("v_mov_b32", m[3], m[1])] + [nop(0)] + \
            [perm(32, m[0], m[2])] + [perm(32, m[1], m[3])]
        return L
    def firstmax(g):
        L = []
        for b in range(4):
            a = ACC[0] + 4 * b
            L += [valu("v_max3_f32", NEGM + b, a, a + 1, a + 2), valu("v_max_f32", NEGM + b, NEGM + b, a + 3)]
        return L + g.xreduce(True)
    def sm_stream(g, u, last_cvt):
        L = []
        for k in range(8):
            L += [g.fma(u, 2 * k), g.fma(u, 2 * k + 1), g.exp(u, 2 * k)]
            if k: L.append(g.cvt(u, k - 1))
            L.append(g.exp(u, 2 * k + 1))
        if last_cvt: L += [g.cvt(u, 7)]
        return L
    def lfinal(g):
        L = []
        for b in range(4): L.append(valu("v_accvgpr_read_b32", T + b, LACC + 4 * b))
        L.append(valu("v_max3_f32", T + 4, T, T + 1, T + 2))
        L.append(trans("v_rcp_f32", RINV, T))
        L.append(valu("v_max_f32", T + 4, T + 4, T + 3))
        L.append(trans("v_rcp_f32", RINV + 1, T + 1))
        L.append(I("v_cmp_lt_f32 vcc, s%d, %s" % (S_TH, rn(T + 4)), "valu", rd=[T + 4]))
        L.append(trans("v_rcp_f32", RINV + 2, T + 2))
        L.append(trans("v_rcp_f32", RINV + 3, T + 3))
        return L

    def epilogue(g, D):
        t = D & 3
        L = [valu("v_xor_b32", OLW, lit((t ^ ((t - 1) & 3)) << 5), OLW)]
        for b in range(4):
            a = ACC[D & 1] + 4 * b
            for r in range(4): L.append(valu("v_mul_f32", a + r, RINV + b, a + r))
            L.append(valu("v_cvt_pk_bf16_f32", a, a, a + 1))
            L.append(valu("v_cvt_pk_bf16_f32", a + 1, a + 2, a + 3))
            L.append(dsw64(OLW, a, (b >> 1) * SLOT + (b & 1) * 2048, reg=(8 + (b >> 1), "O")))
        return L
    def readback(g):
        return [dsr128(RB + 4 * n, OLR, (n >> 2) * SLOT + (n & 3) * 1024, tag=("RB", n), reg=(8 + (n >> 2), "O", "priv")) for n in range(8)]
    def stores(g, base):
        fl = " " + g.o.oflag if g.o.oflag else ""
        L = []
        for n in range(8):
            x = []
            if n == 4: x.append(salu("s_add_u32 s%d, s%d, 0x4000" % (S_SO2, base)))
            x.append(wait(l=("RB", n)))
            p = n & 3
            x.append(I("buffer_store_dwordx4 %s, %s, %s, s%d offen%s%s" % (rn(RB + 4 * n, 4), rn(VOFF + p), srd(SO), base if n < 4 else S_SO2,
                       " offset:%d" % (1024 * p) if p else "", fl), "st", rd=[VOFF + p] + R(RB + 4 * n, 4)))
            L.append(x)
        return L

    def item_vars(g):
        L = []
        a = lambda t: L.append(salu(t))
        a("s_and_b32 s%d, s%d, %d" % (S_T, S_PN, 3 if g.o.rot else 0))
        a("s_lshl_b32 s%d, s%d, 7" % (S_T, S_T))
        a("s_mul_i32 s%d, s%d, 196608" % (S_KVC, S_PN))
        a("s_lshr_b32 s%d, s%d, 5" % (S_KB, S_WL))
        a("s_add_u32 s%d, s%d, s%d" % (S_KB, S_KB, S_KVC))
        a("s_lshl2_add_u32 s%d, s%d, s%d" % (S_T3, S_WL, S_KVC))
        a("s_lshl_b32 s%d, s%d, 17" % (S_T2, S_G))
        a("s_lshl3_add_u32 s%d, s%d, s%d" % (S_T2, S_WL, S_T2))
        for dc in range(4):
            a("s_add_u32 s%d, s%d, s%d" % (S_VB + dc, S_T3, S_T))
            a("s_add_u32 s%d, s%d, s%d" % (S_OB + dc, S_T2, S_T))
            if dc < 3:
                a("s_add_u32 s%d, s%d, 128" % (S_T, S_T))
                a("s_and_b32 s%d, s%d, 0x180" % (S_T, S_T))
        L.append([salu("s_cmp_lt_u32 s%d, 2" % S_R),
                  salu("s_cselect_b32 s%d, 32, 0" % S_T),
                  salu("s_cselect_b32 s%d, %d, 0" % (S_KNN, KBYTES)),
                  salu("s_cselect_b32 s%d, %d, 0" % (SQ + 2, QBYTES))])
        a("s_add_u32 s%d, s%d, s%d" % (S_T, S_G, S_T))
        a("s_mul_hi_u32 s%d, s%d, 0x55555556" % (S_PN, S_T))
        a("s_lshl_b32 s%d, s%d, 17" % (S_QB, S_T))
        a("s_lshl3_add_u32 s%d, s%d, s%d" % (S_QB, S_WL, S_QB))
        a("s_mul_i32 s%d, s%d, 196608" % (S_KBN, S_PN))
        a("s_lshr_b32 s%d, s%d, 5" % (S_T, S_WL))
        a("s_add_u32 s%d, s%d, s%d" % (S_KBN, S_KBN, S_T))
        return L

    def stamp(g):
        if not g.o.stamps: return []
        k = g.nst; g.nst += 1
        return [raw("s_memtime s[%d:%d]" % (S_ST + 2 * k, S_ST + 2 * k + 1), "smem")]
    def stamp_flush(g, n, row):
        L = [raw("s_memrealtime s[52:53]", "smem"), raw("s_memtime s[54:55]", "smem"), raw("s_waitcnt lgkmcnt(0)", "waitall")]
        for k in range(n): L.append(raw("v_writelane_b32 v%d, s%d, %d" % (T + 9, S_ST + 2 * k, k)))
        L.append(raw("v_writelane_b32 v%d, s52, 30" % (T + 9)))
        L.append(raw("v_writelane_b32 v%d, s54, 31" % (T + 9)))
        L += [raw("v_mbcnt_lo_u32_b32 v%d, -1, 0" % (T + 10)), raw("v_mbcnt_hi_u32_b32 v%d, -1, v%d" % (T + 10, T + 10)),
              raw("v_lshlrev_b32 v%d, 2, v%d" % (T + 10, T + 10))]
        L.append(salu("s_lshl_b32 s52, s2, 13"))
        L.append(salu("s_lshr_b32 s53, s%d, 1" % S_WL))
        L.append(salu("s_add_u32 s52, s52, s53"))
        if row is None:
            L.append(salu("s_lshl_b32 s53, s%d, 8" % S_R)); L.append(salu("s_add_u32 s52, s52, s53"))
        else:
            L.append(salu("s_add_u32 s52, s52, %d" % (row * 256)))
        L.append(raw("buffer_store_dword v%d, v%d, s[48:51], s52 offen" % (T + 9, T + 10), "salu"))
        return L

    def body(g):
        o = g.o; LA = g.LA
        mfs = []; idx = {}; last = {}
        sums = {}
        for j in range(11):
            for b in range(4): sums[16 * (j + 1) + 4 * b + 5] = (j, b)
        s11 = {192 + o.s11 + 2 * b: (11, b) for b in range(4)}
        for G in range(384):
            for b in range(4):
                idx[(G, b)] = len(mfs); mfs.append(g.mf(G, b))
            for sm in (sums, s11):
                if G in sm: mfs.append(g.summf(*sm[G]))
            last[G] = len(mfs) - 1
        N = len(mfs)
        gap = [[] for _ in range(N)]; end = [[] for _ in range(N)]
        load = [0] * N
        def put(i, x):
            gap[i].extend(x if isinstance(x, list) else [x]); load[i] += cost(x)
        def putend(i, x):
            end[i].append(x); load[i] += cost(x)
        def place(L, g0, g1, lo=None, hi=None, win=3):
            lo = idx[(g0, 0)] if lo is None else lo
            hi = last[g1] if hi is None else hi
            tot = sum(cost(x) for x in L); acc = 0; prev = lo
            for x in L:
                tgt = lo + int((acc + 0.5 * cost(x)) * (hi - lo + 1) / tot); acc += cost(x)
                c0 = max(prev, tgt - win); c1 = max(c0, min(hi, tgt + win))
                best = min(range(c0, c1 + 1), key=lambda i: (max(load[i] + cost(x) - 2, 0), abs(i - tgt)))
                put(best, x); prev = best
        bars = {}
        for s in range(12): bars[(16 * s - LA) % 384] = [("K", s)]
        for dc in range(4):
            C = 192 + 48 * dc
            bars[C - LA] = [("V", dc, 0)]
            bars[C - LA + 4] = [("V", dc, 1), ("V", dc, 2)]
        for G in range(384):
            if G % 4 == 2:
                i = last[G - 1]
                putend(i, wait(l=("F", (G + 3) % 384), v=bars.get(G)))
                if G in bars:
                    putend(i, barrier())
                    for x in g.stamp(): end[i].append(x)
        assert all(G % 4 == 2 for G in bars)
        for G in range(384):
            f = (G + LA) % 384
            if f >= 192 and (f - 192) % 12 == 0:
                D = (f - 192) // 12
                put(idx[(G - 1, 2)], valu("v_xor_b32", VA, lit(g.vconst(D) ^ g.vconst((D - 1) % 16)), VA))
            for k, x in enumerate(g.frag_reads(f)): put(idx[(G, k)], x)
        for u in range(2, 24):
            for k in range(8):
                G = 8 * u + k
                put(idx[(G, 0)], g.fma(u - 1, 2 * k))
                put(idx[(G, 1)], g.exp(u - 1, 2 * k))
                put(idx[(G, 2)], g.cvt(u - 1, k - 1) if k else g.cvt(u - 2, 7))
                put(idx[(G, 2)], g.fma(u - 1, 2 * k + 1))
                put(idx[(G, 3)], g.exp(u - 1, 2 * k + 1))
        put(idx[(192, 2)], g.cvt(22, 7))
        place(g.firstmax() + g.sm_stream(0, False), 8, 15, win=1)
        lo = idx[(192, 0)]
        for b in range(4):
            e = 4 * b
            st = [g.fma(23, e), g.fma(23, e + 1), g.exp(23, e), g.exp(23, e + 1), g.fma(23, e + 2), g.fma(23, e + 3),
                  g.exp(23, e + 2), g.exp(23, e + 3), g.cvt(23, 2 * b), g.cvt(23, 2 * b + 1)]
            hi = idx[(192 + o.s11 + 2 * b, 1)]
            if b < 3: hi = min(hi, lo + (idx[(192 + o.s11 + 6, 1)] - lo) // (4 - b))
            place(st, None, None, lo=lo, hi=hi, win=1)
            lo = hi + 1
        place(g.lfinal(), 192 + o.s11 + 7, 203, lo=idx[(192 + o.s11 + 7, 1)], win=1)
        putend(last[203], raw("s_cbranch_vccnz L_slow", "branch")); end[last[203]].append(label("L_back"))
        for D in range(16):
            G1 = (192 + 12 * (D + 1)) % 384
            if D == 0:
                place([wait(v=[("Q", 3)])] + g.qreads(2, 8) + g.qreads(3, 9), G1, G1 + 2, win=1)
                place(g.epilogue(D), G1 + 3, G1 + 11)
                place(g.qreads(0, 6) + g.qreads(1, 7), G1 + 12, G1 + 16)
            elif D == 15:
                place(g.epilogue(D), 0, 5, win=1)
                place(g.readback(), 6, 7, win=1)
                place(g.stores(S_OPREV) + [salu("s_mov_b32 s%d, %d" % (SO + 2, QBYTES))], o.st0, o.st1)
            elif D & 3 == 3:
                place(g.epilogue(D), G1, G1 + 7)
                place(g.readback(), G1 + 8, G1 + 11)
                place(g.stores(S_OB + (D >> 2)), G1 + 14, G1 + 40)
            else:
                place(g.epilogue(D), G1, G1 + 11)
        W = []
        W.append((g.dmaK(3, False), 0, 4)); W.append((g.dmaK(4, False), 5, 9))
        qs = dict(zip(o.qsteps, range(4)))
        for s in range(1, 12):
            t = g.dmaK(s + 4, False) if s < 8 else (g.dmaV(0, s - 8) if s < 11 else g.dmaV(1, 0))
            if s in qs:
                W.append((t, 16 * s - 6, 16 * s + 1)); W.append((g.dmaQ(qs[s], 6 + qs[s]), 16 * s + 2, 16 * s + 9))
            else:
                W.append((t, 16 * s - 6, 16 * s + 9))
        W.append((g.dmaV(1, 1), 186, 193)); W.append((g.dmaV(1, 2), 194, 205))
        W.append((g.dmaQ(4, 6), 222, 227)); W.append((g.dmaQ(5, 7), 228, 233))
        for dc in range(1, 4):
            C = 192 + 48 * dc
            for kt in range(3):
                t = g.dmaV(dc + 1, kt) if dc < 3 else g.dmaK(kt, True)
                if dc == 3 and kt == 0: t = [salu("s_mov_b32 s%d, s%d" % (SK + 2, S_KNN))] + t
                W.append((t, C - 6 + 6 * kt, C - 1 + 6 * kt))
            if dc == 2:
                W.append((g.dmaQ(6, 6), C + 12, C + 21)); W.append((g.dmaQ(7, 7), C + 22, C + 31))
        for t, a, b in W: place(t, a, b)
        place([wait(v=[("Q", 5)])] + g.qreads(4, 6) + g.qreads(5, 7), 288 + 2, 288 + 7)
        place([wait(v=[("Q", 7)])] + g.qreads(6, 6) + g.qreads(7, 7), 336 + 30, 336 + 37)
        upd = [salu("s_mov_b32 s%d, s%d" % (S_OPREV, S_OB + 3)),
               salu("s_add_u32 s%d, s%d, 32" % (S_G, S_G)),
               salu("s_add_u32 s%d, s%d, 1" % (S_R, S_R))] + g.item_vars()
        place(upd, 336 + 41, 383, hi=idx[(383, 1)])
        put(idx[(383, 2)], salu("s_cmp_lt_u32 s%d, 3" % S_R))
        for i in (idx[(383, 2)], idx[(383, 3)]):
            assert not [x for x in gap[i][:-1 if i == idx[(383, 2)] else None] if False]
        out = [label("L_item")]
        for i in range(N):
            out.append(mfs[i]); out += gap[i] + end[i]
        if o.stamps:
            out += g.stamp_flush(g.nst, None) + [salu("s_cmp_lt_u32 s%d, 3" % S_R)]
        out.append(raw("s_cbranch_scc1 L_item", "branch"))
        over = sum(max(l - 2, 0) for l in load)
        p1 = sum(max(l - 2, 0) for l in load[:idx[(192, 0)]])
        print("gaps %d, overflow slots %d (phase 1: %d), est cycles %d" % (N, over, p1, 16 * N + 4 * over), file=sys.stderr)
        return out

    def prologue(g):
        o = g.o
        L = []
        a = lambda t: L.append(salu(t))
        v = lambda *x, **k: L.append(valu(*x, **k))
        a("s_cmp_ge_u32 s2, 256")
        L.append(raw("s_cbranch_scc1 L_end", "branch"))
        L.append(raw("s_load_dwordx4 s[4:7], s[0:1], 0", "smem"))
        L.append(raw("s_load_dwordx4 s[12:15], s[0:1], 16", "smem"))
        if o.stamps:
            L.append(raw("s_load_dwordx2 s[48:49], s[0:1], 40", "smem"))
            L.append(raw("s_memtime s[56:57]", "smem")); L.append(raw("s_memrealtime s[58:59]", "smem"))
        t = [T + i for i in range(8)]
        lane, w = t[0], t[1]
        v("v_lshrrev_b32", w, "6", 0)
        v("v_and_b32", lane, "63", 0)
        L.append(I("v_readfirstlane_b32 s%d, v%d" % (S_W, w), "rfl", rd=[w]))
        a("s_and_b32 s%d, s2, 7" % S_T)
        a("s_mul_i32 s%d, s%d, 96" % (S_T, S_T))
        a("s_lshr_b32 s%d, s2, 3" % S_G)
        a("s_add_u32 s%d, s%d, s%d" % (S_G, S_G, S_T))
        a("s_mul_hi_u32 s%d, s%d, 0x55555556" % (S_PN, S_G))
        a("s_mov_b32 s%d, 0" % S_R)
        a("s_lshl_b32 s%d, s%d, 12" % (S_WL, S_W))
        v("v_lshrrev_b32", t[2], "3", lane)
        v("v_and_b32", t[3], "7", lane)
        v("v_xor_b32", t[3], t[3], t[2])
        v("v_lshlrev_b32", t[3], "4", t[3])
        v("v_lshl_add_u32", VOFF, t[2], "9", t[3])
        for p in range(1, 4): v("v_add_u32", VOFF + p, lit(3072 * p), VOFF)
        iv = []
        for x in g.item_vars(): iv.extend(x if isinstance(x, list) else [x])
        cut = [i for i, x in enumerate(iv) if x.text.startswith("s_cmp_lt_u32")][0]
        L += iv[:cut]
        L.append(raw("s_waitcnt lgkmcnt(0)", "waitall"))
        a("s_mov_b32 s8, s6"); a("s_mov_b32 s9, s7")
        a("s_mov_b32 s7, 0x20000"); a("s_mov_b32 s11, 0x20000"); a("s_mov_b32 s10, %d" % KBYTES)
        a("s_mov_b32 s6, %d" % QBYTES)
        L += g.dmaK(0, False)
        for j in range(8): L += g.dmaQ(j, j + 2, base=S_T2)
        L += g.dmaK(1, False)
        a("s_mov_b32 s16, s14"); a("s_mov_b32 s17, s15")
        a("s_mov_b32 s15, 0x20000"); a("s_mov_b32 s19, 0x20000")
        a("s_mov_b32 s14, %d" % KBYTES); a("s_mov_b32 s18, 0")
        if o.stamps: a("s_mov_b32 s50, 0x1000000"); a("s_mov_b32 s51, 0x20000")
        L += iv[cut:]
        a("s_mov_b32 s%d, s%d" % (S_OPREV, S_OB + 3))
        c = math.log2(math.e) / 16.0
        a("s_mov_b32 s%d, %s" % (S_C, f2h(c)))
        a("s_mov_b32 s%d, %s" % (S_NC, f2h(-c)))
        a("s_mov_b32 s%d, %s" % (S_TH, f2h(2.0 ** o.thr)))
        n16, g4 = t[2], t[3]
        v("v_and_b32", n16, "15", lane)
        v("v_lshrrev_b32", g4, "4", lane)
        v("v_and_b32", t[4], "7", lane)
        v("v_xor_b32", t[5], g4, t[4])
        v("v_lshlrev_b32", t[5], "4", t[5])
        v("v_lshl_add_u32", KA[0], n16, "7", t[5])
        v("v_xor_b32", KA[0] + 1, "64", KA[0])
        for x in range(2):
            v("v_add_u32", KA[1] + x, "0xc000", KA[0] + x)
            v("v_add_u32", 4 + x, "s%d" % S_WL, KA[0] + x)
            v("v_add_u32", QA + x, lit(6 * SLOT), 4 + x)
            v("v_add_u32", 4 + x, lit(2 * SLOT), 4 + x)
        v("v_lshrrev_b32", t[5], "1", g4)
        v("v_xor_b32", t[5], t[5], t[4])
        v("v_lshlrev_b32", t[5], "4", t[5])
        v("v_lshl_add_u32", t[5], n16, "7", t[5])
        v("v_and_b32", t[6], "1", g4)
        v("v_lshl_add_u32", t[5], t[6], "3", t[5])
        v("v_xor_b32", t[5], "64", t[5])
        a("s_add_u32 s%d, s%d, %s" % (S_T, S_WL, lit(8 * SLOT)))
        v("v_add_u32", OLW, "s%d" % S_T, t[5])
        v("v_lshlrev_b32", t[5], "4", lane)
        v("v_add_u32", OLR, "s%d" % S_T, t[5])
        v("v_lshrrev_b32", t[5], "2", lane)
        v("v_and_b32", t[6], "7", t[5])
        v("v_bfe_u32", t[7], lane, "1", "1")
        v("v_xor_b32", t[6], t[6], t[7])
        v("v_lshlrev_b32", t[6], "4", t[6])
        v("v_lshl_add_u32", t[6], t[5], "7", t[6])
        v("v_and_b32", t[7], "1", lane)
        v("v_lshl_add_u32", t[6], t[7], "3", t[6])
        v("v_xor_b32", VA, lit(g.vconst(15)), t[6])
        v("v_and_b32", t[5], "3", lane)
        v("v_mov_b32", t[6], "0x3f803f80")
        L.append(I("v_cmp_eq_u32 vcc, 0, v%d" % t[5], "valu", rd=[t[5]]))
        for b in range(4): v("v_mov_b32", RINV + b, "0")
        L.append(I("v_cndmask_b32 v%d, 0, v%d, vcc" % (t[6], t[6]), "valu", rd=[t[6]], wr=[t[6]]))
        for r in range(4): v("v_accvgpr_write_b32", ONES + r, t[6])
        L.append(wait(v=[("Q", 0)]))
        L += g.qreads(0, 2, qa=4, slot0=2)
        L.append(wait(l=("QR", 0)))
        L += g.dmaK(2, False)
        for j in range(1, 8):
            L.append(wait(v=[("Q", j)]))
            L += g.qreads(j, j + 2, qa=4, slot0=2) if j < 4 else g.qreads(j, j + 2)
        L.append(barrier())
        for f in range(g.LA): L += g.frag_reads(f)
        if o.stamps: L += g.stamp_flush(2, 0)
        L.append(wait(l=("F", 1)))
        return L

    def tail(g):
        L = [nop(7)]
        L += g.epilogue(15) + g.readback()
        for x in g.stores(S_OPREV): L += x
        if g.o.stamps:
            L.append(raw("s_waitcnt vmcnt(0)", "salu"))
            L += g.stamp_flush(0, 4)
        L += [label("L_end"), raw("s_endpgm")]
        return L

    def slow(g):
        L = [label("L_slow"), nop(7)]
        ko = T + 5
        L += [I("v_mbcnt_lo_u32_b32 v%d, -1, 0" % ko, "valu", wr=[ko]), I("v_mbcnt_hi_u32_b32 v%d, -1, v%d" % (ko, ko), "valu", rd=[ko], wr=[ko]),
              valu("v_lshrrev_b32", T + 6, "4", ko), valu("v_and_b32", ko, "15", ko), valu("v_lshlrev_b32", ko, "9", ko),
              valu("v_lshl_add_u32", ko, T + 6, "4", ko)]
        def stile():
            X = []
            for ks in range(8):
                X.append(I("buffer_load_dwordx4 %s, %s, %s, s%d offen offset:%d" % (rn(RB + 4 * ks, 4), rn(ko), srd(SK), S_T, 64 * ks), "ld", rd=[ko]))
            X.append(salu("s_add_u32 s%d, s%d, 0x2000" % (S_T, S_T)))
            X.append(raw("s_waitcnt vmcnt(0)", "salu"))
            for ks in range(8):
                for b in range(4): X.append(mfma(ACC[1] + 4 * b, RB + 4 * ks, Q0 + (b * 8 + ks) * 4, ks == 0))
            X.append(nop(7))
            return X
        for b in range(4): L.append(valu("v_mov_b32", NEGM + b, "0xff800000"))
        L += [salu("s_mov_b32 s%d, s%d" % (S_T, S_KVC)), salu("s_mov_b32 s%d, 0" % S_U), label("L_slowA")]
        L += stile()
        for b in range(4):
            a = ACC[1] + 4 * b
            L += [valu("v_max3_f32", NEGM + b, NEGM + b, a, a + 1), valu("v_max3_f32", NEGM + b, NEGM + b, a + 2, a + 3)]
        L += [salu("s_add_u32 s%d, s%d, 1" % (S_U, S_U)), salu("s_cmp_lt_u32 s%d, 24" % S_U), raw("s_cbranch_scc1 L_slowA", "branch")]
        L += g.xreduce(True)
        for r in range(16): L.append(valu("v_accvgpr_write_b32", LACC + r, "0"))
        L += [salu("s_mov_b32 s%d, s%d" % (S_T, S_KVC)), salu("s_mov_b32 s%d, 0" % S_U), label("L_slowB")]
        for i in range(176): L.append(valu("v_mov_b32", P0 + i, P0 + i + 16))
        for half in range(2):
            L += stile()
            for e in range(16): L.append(g.fma(1, e))
            for e in range(16): L.append(g.exp(1, e))
            for k in range(8):
                a = ACC[1] + 2 * k
                L.append(valu("v_cvt_pk_bf16_f32", P0 + (44 + (k >> 1)) * 4 + 2 * half + (k & 1), a, a + 1))
        L.append(nop(1))
        for b in range(4): L.append(mfma(LACC + 4 * b, ONES, P0 + (44 + b) * 4, False))
        L += [salu("s_add_u32 s%d, s%d, 1" % (S_U, S_U)), salu("s_cmp_lt_u32 s%d, 12" % S_U), raw("s_cbranch_scc1 L_slowB", "branch")]
        L.append(nop(7))
        for b in range(4): L.append(valu("v_accvgpr_read_b32", T + b, LACC + 4 * b))
        for b in range(4): L.append(trans("v_rcp_f32", RINV + b, T + b))
        L.append(valu("v_xor_b32", ko, lit(g.vconst(0) ^ g.vconst(1)), VA))
        for j0 in (0, 6):
            for j in range(j0, j0 + 6):
                L += [dsrtr(RB + 4 * (j - j0), ko, j * 4096), dsrtr(RB + 4 * (j - j0) + 2, ko, j * 4096 + 2048)]
            L.append(raw("s_waitcnt lgkmcnt(0)", "waitall"))
            for j in range(j0, j0 + 6):
                for b in range(4): L.append(mfma(ACC[0] + 4 * b, RB + 4 * (j - j0), P0 + (j * 4 + b) * 4, j == 0))
        L += [nop(7), raw("s_branch L_back", "branch")]
        return L

LK = ("ds_r", "ds_w"); VK = ("dma", "st", "ld")
def find(q, tag):
    for k in range(len(q) - 1, -1, -1):
        if q[k].tag == tag: return k
    raise KeyError(tag)

def resolve(path):
    lv = {}; vv = {}
    lq = []; vq = []
    for x in path:
        if x.kind in LK: lq.append(x)
        elif x.kind in VK: vq.append(x)
        elif x.kind == "wait":
            if x.need is not None:
                lv[id(x)] = min(lv.get(id(x), 15), len(lq) - 1 - find(lq, x.need))
            for t in (x.vneed or []):
                vv[id(x)] = min(vv.get(id(x), 63), len(vq) - 1 - find(vq, t))
    for x in path:
        if x.kind == "wait": x.site = lv.get(id(x)); x.vsite = vv.get(id(x))
    need_l = set(); need_v = set()
    lq = []; vq = []; ld = 0; vd = 0
    for x in path:
        if x.kind in LK: lq.append(x)
        elif x.kind in VK: vq.append(x)
        elif x.kind == "waitall": ld = len(lq)
        elif x.kind == "wait":
            if x.need is not None and find(lq, x.need) >= ld:
                need_l.add(id(x)); ld = max(ld, len(lq) - x.site)
            if x.vneed and max(find(vq, t) for t in x.vneed) >= vd:
                need_v.add(id(x)); vd = max(vd, len(vq) - x.vsite)
    for x in path:
        if x.kind == "wait":
            if id(x) not in need_l: x.site = None
            if id(x) not in need_v: x.vsite = None
            parts = (["vmcnt(%d)" % x.vsite] if x.vsite is not None else []) + (["lgkmcnt(%d)" % x.site] if x.site is not None else [])
            x.drop = not parts
            x.text = "s_waitcnt " + " ".join(parts)

def check(path, strict):
    t = 0; last_mfma = -99; m0_t = -99
    lq = []; ld = 0; vq = []; vd = 0
    wr_mfma = {}; wr_valu = {}; wr_trans = {}; rdC = {}; st_data = {}
    slot_tile = {}
    vd_bar = 0; ld_bar = 0
    errs = [0]
    def err(msg, x):
        errs[0] += 1
        if errs[0] < 30: print("HAZARD:", msg, "|", x.text, file=sys.stderr)
    for x in path:
        if x.kind == "label" or x.drop: continue
        if x.kind == "mfma" and not strict: t = max(t, last_mfma + 4)
        touched = x.rd | x.wr | x.C
        for p in lq[ld:]:
            if p.kind == "ds_r" and (p.wr & touched): err("unwaited ds_read %s" % p.text, x)
        isv = x.kind in ("valu", "trans", "perm", "rfl")
        for r in touched:
            if r in wr_mfma:
                tt, full = wr_mfma[r]
                if x.kind == "mfma" and r not in x.rd and x.wr == full: continue
                if t - tt - 1 < 8: err("mfma D -> use after %d states (%s)" % (t - tt - 1, rn(r)), x)
        if x.kind in ("mfma", "perm"):
            for r in (x.rd | x.C):
                if r in wr_valu and t - wr_valu[r] - 1 < 2: err("valu -> %s" % x.kind, x)
        if x.kind == "rfl":
            for r in x.rd:
                if r in wr_valu and t - wr_valu[r] - 1 < 1: err("valu -> readfirstlane", x)
        if isv and x.kind != "trans":
            for r in x.rd:
                if r in wr_trans and t - wr_trans[r] - 1 < 1: err("trans -> valu", x)
        if isv:
            for r in x.wr:
                if r in rdC and t - rdC[r] - 1 < 3: err("mfma C WAR", x)
        for r in x.wr:
            if r in st_data and t - st_data[r] - 1 < 2: err("store data WAR", x)
        if x.kind == "dma" and t - m0_t - 1 < 1: err("m0 -> dma", x)
        if x.kind == "dma":
            slot, tag = x.reg
            for k, p in enumerate(lq):
                if p.reg and p.reg[0] == slot:
                    lim = ld_bar if (p.kind == "ds_r" and p.reg[2] == "shared") else ld
                    if k >= lim: err("dma into slot %d before %s is known done" % (slot, p.text), x); break
            slot_tile[slot] = (tag, len(vq))
        if x.kind == "ds_r" and x.reg:
            slot, tag, mode = x.reg
            cur = slot_tile.get(slot)
            if tag == "O":
                if cur and cur[0] != "O": err("read-back of slot %d holding %s" % (slot, cur[0]), x)
            elif not cur or cur[0] != tag: err("slot %d holds %s, wanted %s" % (slot, cur, tag), x)
            elif cur[1] >= (vd_bar if mode == "shared" else vd): err("tile %s not known landed" % (tag,), x)
        if x.kind == "ds_w" and x.reg:
            slot = x.reg[0]
            cur = slot_tile.get(slot)
            if cur and cur[0] != "O":
                if cur[1] >= vd: err("staging write with a dma in flight", x)
                n = sum(1 for p in lq if p.reg and p.kind == "ds_r" and p.reg[:2] == (slot, cur[0]))
                if n % 4 or not n: err("staging write before Q reads", x)
            slot_tile[slot] = ("O", -1)
        if x.kind == "salu_m0": m0_t = t
        if x.kind == "mfma":
            last_mfma = t
            for r in x.wr: wr_mfma[r] = (t, x.wr); wr_valu.pop(r, None)
            for r in x.C: rdC[r] = t
        if isv:
            for r in x.wr:
                wr_valu[r] = t; wr_mfma.pop(r, None)
                if x.kind == "trans": wr_trans[r] = t
                else: wr_trans.pop(r, None)
        if x.kind == "st":
            for r in x.rd: st_data[r] = t
        if x.kind in LK: lq.append(x)
        if x.kind in VK: vq.append(x)
        if x.kind == "waitall": ld = len(lq)
        if x.kind == "wait":
            if x.site is not None: ld = max(ld, len(lq) - x.site)
            if x.vsite is not None: vd = max(vd, len(vq) - x.vsite)
        if x.kind == "barrier": vd_bar = vd; ld_bar = ld
        t += (x.tag + 1) if x.kind == "nop" else 1
    return errs[0]

HEADER = """; GQA attention forward, B=32 Hq=16 Hkv=8 Sq=Sk=384 D=256, bf16 in/out (emitted by my generator script).
; One persistent 4-wave workgroup per CU, three items of 256 query rows (64 per wave), K/V/Q staged by LDS-DMA.
; Per item: S^T = K Q^T in 16-key units, P = exp2(c*S - c*m) kept in registers as bf16, row sums by MFMA,
; then O^T = V^T P^T per 16-column tile.  m is the row max over the first 16 keys (never above the true max);
; @launch grid=(256,1,1) block=(256,1,1) lds=163840
.amdgcn_target "amdgcn-amd-amdhsa--gfx950"
.text
.globl {n}_kernel
.p2align 8
.type {n}_kernel,@function
{n}_kernel:
"""
FOOTER = """.section .rodata,"a"
.p2align 6
.amdhsa_kernel {n}_kernel
  .amdhsa_next_free_vgpr 512
  .amdhsa_next_free_sgpr 102
  .amdhsa_accum_offset 256
  .amdhsa_group_segment_fixed_size 0
  .amdhsa_kernarg_size 48
  .amdhsa_user_sgpr_count 2
  .amdhsa_user_sgpr_kernarg_segment_ptr 1
  .amdhsa_system_sgpr_workgroup_id_x 1
.end_amdhsa_kernel
"""

def main():
    ap = argparse.ArgumentParser()
    ap.add_argument("-o", dest="out", default="cdna_kernels/%s.s" % NAME)
    ap.add_argument("--thr", type=float, default=30.0)
    ap.add_argument("--qflag", default="")
    ap.add_argument("--kvflag", default="")
    ap.add_argument("--oflag", default="")
    ap.add_argument("--rot", type=int, default=1)
    ap.add_argument("--s11", type=int, default=3)
    ap.add_argument("--st0", type=int, default=16)
    ap.add_argument("--st1", type=int, default=40)
    ap.add_argument("--qsteps", type=lambda s: [int(x) for x in s.split(",")], default=[3, 5, 7, 9])
    ap.add_argument("--stamps", type=int, default=0)
    ap.add_argument("--strict", type=int, default=1)
    ap.add_argument("--align", type=int, default=0)
    ap.add_argument("--drop", default="")
    o = ap.parse_args()
    g = Gen(o)
    body = g.body()
    pro, tail, slow = g.prologue(), g.tail(), g.slow()
    path = pro + body + body + tail
    resolve(path)
    errs = check(path, o.strict) + check(slow, o.strict)
    if errs: print("%d hazard findings" % errs, file=sys.stderr)
    drop = set(o.drop.split(",")) if o.drop else set()
    body = [x for x in body if x.kind not in drop]
    if "valu" in drop: body = [x for x in body if "vccnz" not in (x.text or "")]
    txt = HEADER.format(n=NAME)
    al = [raw(".p2align %d" % o.align, "label")] if o.align else []
    for x in pro + al + body + tail + slow:
        if x.drop: continue
        txt += ("" if x.kind == "label" else "    ") + x.text + "\n"
    txt += FOOTER.format(n=NAME)
    open(o.out, "w").write(txt)
    print(dict(Counter(x.kind for x in body if not x.drop)), file=sys.stderr)
    return 1 if errs else 0

if __name__ == "__main__":
    sys.exit(main())
```

```python
import sys, struct, math, argparse
from collections import Counter

NAME = "standalone__gqa_softmax__near_ridge"
def f2h(x): return "0x%08x" % struct.unpack("<I", struct.pack("<f", x))[0]

class I:
    __slots__ = ("text", "kind", "rd", "wr", "tag", "need", "site", "C", "reg", "drop", "vneed", "vsite")
    def __init__(s, text, kind, rd=(), wr=(), tag=None, need=None, C=(), reg=None, vneed=None):
        s.text = text; s.kind = kind; s.rd = frozenset(rd); s.wr = frozenset(wr)
        s.tag = tag; s.need = need; s.site = None; s.C = frozenset(C); s.reg = reg; s.drop = False
        s.vneed = vneed; s.vsite = None

A = 256
def R(a, n=1): return list(range(a, a + n))
def rn(a, n=1):
    p, i = ("a", a - A) if a >= A else ("v", a)
    return "%s%d" % (p, i) if n == 1 else "%s[%d:%d]" % (p, i, i + n - 1)
def lit(x): return str(x) if -16 <= x <= 64 else "0x%x" % x

def valu(op, d, *src, kind="valu"):
    rd = [x for x in src if isinstance(x, int)]
    return I("%s %s, %s" % (op, rn(d), ", ".join(rn(x) if isinstance(x, int) else x for x in src)), kind, rd=rd, wr=[d])
def trans(op, d, s): return valu(op, d, s, kind="trans")
def perm(n, a, b): return I("v_permlane%d_swap_b32 %s, %s" % (n, rn(a), rn(b)), "perm", rd=[a, b], wr=[a, b])
def salu(t, m0=False): return I(t, "salu_m0" if m0 else "salu")
def mfma(d, a, b, first):
    return I("v_mfma_f32_16x16x32_bf16 %s, %s, %s, %s" % (rn(d, 4), rn(a, 4), rn(b, 4), "0" if first else rn(d, 4)), "mfma",
             rd=R(a, 4) + R(b, 4), wr=R(d, 4), C=() if first else R(d, 4))
def dsr128(d, a, off, tag=None, reg=None):
    return I("ds_read_b128 %s, %s offset:%d" % (rn(d, 4), rn(a), off), "ds_r", rd=[a], wr=R(d, 4), tag=tag, reg=reg)
def dsrtr(d, a, off, tag=None, reg=None):
    return I("ds_read_b64_tr_b16 %s, %s offset:%d" % (rn(d, 2), rn(a), off), "ds_r", rd=[a], wr=R(d, 2), tag=tag, reg=reg)
def dsw64(a, s, off, reg=None):
    return I("ds_write_b64 %s, %s offset:%d" % (rn(a), rn(s, 2), off), "ds_w", rd=[a] + R(s, 2), reg=reg)
def wait(l=None, v=None): return I(None, "wait", need=l, vneed=v)
def raw(t, kind="salu"): return I(t, kind)
def label(n): return I(n + ":", "label")
def nop(n): return I("s_nop %d" % n, "nop", tag=n)
def barrier(): return I("s_barrier", "barrier")

P0 = 0
ACC = [192, 208]
KA = [224, 226]; QA = 228; VA = 230; VOFF = 231; OLW = 235; OLR = 236
NEGM = 237; RINV = 241; T = 245
Q0 = A + 0; FR0 = A + 128; LACC = A + 192; ONES = A + 208; RB = A + 212

SQ = 4; SK = 8; SV = 12; SO = 16
S_W = 20; S_C = 21; S_TH = 22; S_WL = 23; S_NC = 24; S_R = 25; S_G = 26
S_KVC = 27; S_KB = 28; S_KBN = 29; S_QB = 30; S_PN = 31; S_KNN = 32; S_OPREV = 33
S_SO = 34; S_SO2 = 35; S_T = 36; S_T2 = 37; S_T3 = 38; S_U = 39
S_VB = 40; S_OB = 44
S_DBG = 48; S_ST = 56

QBYTES = 32 * 16 * 384 * 256 * 2
KBYTES = 32 * 8 * 384 * 256 * 2
SLOT = 16384
def srd(s): return "s[%d:%d]" % (s, s + 3)
def cost(x):
    if isinstance(x, list): return sum(cost(y) for y in x)
    return {"trans": 2, "label": 0}.get(x.kind, 1)

class Gen:
    def __init__(g, o):
        g.o = o; g.LA = 6; g.NF = 8
        g.nst = 0

    def dma(g, typ, slot, base, add, tag):
        o = g.o
        s = {"K": SK, "Q": SQ, "V": SV}[typ]
        fl = o.qflag if typ == "Q" else o.kvflag
        fl = " " + fl if fl else ""
        L = [salu("s_add_u32 m0, s%d, %s" % (S_WL, lit(slot * SLOT)), m0=True),
             salu("s_add_u32 s%d, s%d, %s" % (S_SO, base, lit(add)))]
        for p in range(4):
            L.append(I("buffer_load_dwordx4 %s, %s, s%d offen%s%s lds" % (rn(VOFF + p), srd(s), S_SO, " offset:%d" % (1024 * p) if p else "", fl),
                       "dma", rd=[VOFF + p], tag=tag if p == 3 else None, reg=(slot, tag)))
        return L
    def dmaK(g, c, nxt): return g.dma("K", c % 6, S_KBN if nxt else S_KB, c * SLOT, ("K", c))
    def dmaV(g, dc, kt): return g.dma("V", 3 * (dc & 1) + kt, S_VB + dc, kt * 65536, ("V", dc, kt))
    def dmaQ(g, j, slot, base=S_QB): return g.dma("Q", slot, base, (j >> 2) * 16384 + (j & 3) * 128, ("Q", j))
    def qreads(g, j, slot, qa=QA, slot0=6):
        L = []
        for bb in range(2):
            for x in range(2):
                d = Q0 + ((2 * (j >> 2) + bb) * 8 + 2 * (j & 3) + x) * 4
                L.append(dsr128(d, qa + x, (slot - slot0) * SLOT + bb * 2048, tag=("QR", j), reg=(slot, ("Q", j), "priv")))
        return L

    def frag(g, f): return FR0 + 4 * (f % g.NF)
    def frag_reads(g, f):
        d = g.frag(f)
        if f < 192:
            u, ks = divmod(f, 8); c = u >> 1
            return [dsr128(d, KA[(c % 6) // 3] + (ks & 1), (c % 3) * SLOT + (ks >> 1) * 4096 + (u & 1) * 2048,
                           tag=("F", f), reg=(c % 6, ("K", c), "shared"))]
        D, j = divmod(f - 192, 12); dc = D >> 2
        reg = (3 * (dc & 1) + (j >> 2), ("V", dc, j >> 2), "shared")
        return [dsrtr(d, VA, j * 4096, reg=reg), dsrtr(d + 2, VA, j * 4096 + 2048, tag=("F", f), reg=reg)]
    @staticmethod
    def vconst(D): return ((D & 3) << 5) ^ (((D >> 2) & 1) * 0xC000)

    def mf(g, G, b):
        if G < 192:
            u, ks = divmod(G, 8)
            return mfma(ACC[u & 1] + 4 * b, g.frag(G), Q0 + (b * 8 + ks) * 4, ks == 0)
        D, j = divmod(G - 192, 12)
        return mfma(ACC[D & 1] + 4 * b, g.frag(G), P0 + (j * 4 + b) * 4, j == 0)
    def summf(g, j, b): return mfma(LACC + 4 * b, ONES, P0 + (j * 4 + b) * 4, j == 0)

    def fma(g, u, e): a = ACC[u & 1] + e; return valu("v_fma_f32", a, a, "s%d" % S_C, NEGM + (e >> 2))
    def exp(g, u, e): a = ACC[u & 1] + e; return trans("v_exp_f32", a, a)
    def cvt(g, u, k):
        a = ACC[u & 1] + 2 * k
        return valu("v_cvt_pk_bf16_f32", P0 + ((u >> 1) * 4 + (k >> 1)) * 4 + 2 * (u & 1) + (k & 1), a, a + 1)
    def xreduce(g, pad):
        m = [NEGM + b for b in range(4)]
        n = (lambda: [nop(1)]) if pad else (lambda: [])
        L = n() + [perm(32, m[0], m[2]), perm(32, m[1], m[3]),
             valu("v_max_f32", m[0], m[0], m[2]), valu("v_max_f32", m[1], m[1], m[3])] + [nop(1)] + \
            [perm(16, m[0], m[1]), valu("v_max_f32", m[0], m[0], m[1]),
             valu("v_mul_f32", m[0], "s%d" % S_NC, m[0]), valu("v_mov_b32", m[1], m[0])] + [nop(1)] + \
            [perm(16, m[0], m[1]), valu("v_mov_b32", m[2], m[0]), valu("v_mov_b32", m[3], m[1])] + [nop(0)] + \
            [perm(32, m[0], m[2])] + [perm(32, m[1], m[3])]
        return L
    def firstmax(g):
        L = []
        for b in range(4):
            a = ACC[0] + 4 * b
            L += [valu("v_max3_f32", NEGM + b, a, a + 1, a + 2), valu("v_max_f32", NEGM + b, NEGM + b, a + 3)]
        return L + g.xreduce(True)
    def sm_stream(g, u, last_cvt):
        L = []
        for k in range(8):
            L += [g.fma(u, 2 * k), g.fma(u, 2 * k + 1), g.exp(u, 2 * k)]
            if k: L.append(g.cvt(u, k - 1))
            L.append(g.exp(u, 2 * k + 1))
        if last_cvt: L += [g.cvt(u, 7)]
        return L
    def lfinal(g):
        L = []
        for b in range(4): L.append(valu("v_accvgpr_read_b32", T + b, LACC + 4 * b))
        L.append(valu("v_max3_f32", T + 4, T, T + 1, T + 2))
        L.append(trans("v_rcp_f32", RINV, T))
        L.append(valu("v_max_f32", T + 4, T + 4, T + 3))
        L.append(trans("v_rcp_f32", RINV + 1, T + 1))
        L.append(I("v_cmp_lt_f32 vcc, s%d, %s" % (S_TH, rn(T + 4)), "valu", rd=[T + 4]))
        L.append(trans("v_rcp_f32", RINV + 2, T + 2))
        L.append(trans("v_rcp_f32", RINV + 3, T + 3))
        return L

    def epilogue(g, D):
        t = D & 3
        L = [valu("v_xor_b32", OLW, lit((t ^ ((t - 1) & 3)) << 5), OLW)]
        for b in range(4):
            a = ACC[D & 1] + 4 * b
            for r in range(4): L.append(valu("v_mul_f32", a + r, RINV + b, a + r))
            L.append(valu("v_cvt_pk_bf16_f32", a, a, a + 1))
            L.append(valu("v_cvt_pk_bf16_f32", a + 1, a + 2, a + 3))
            L.append(dsw64(OLW, a, (b >> 1) * SLOT + (b & 1) * 2048, reg=(8 + (b >> 1), "O")))
        return L
    def readback(g):
        return [dsr128(RB + 4 * n, OLR, (n >> 2) * SLOT + (n & 3) * 1024, tag=("RB", n), reg=(8 + (n >> 2), "O", "priv")) for n in range(8)]
    def stores(g, base):
        fl = " " + g.o.oflag if g.o.oflag else ""
        L = []
        for n in range(8):
            x = []
            if n == 4: x.append(salu("s_add_u32 s%d, s%d, 0x4000" % (S_SO2, base)))
            x.append(wait(l=("RB", n)))
            p = n & 3
            x.append(I("buffer_store_dwordx4 %s, %s, %s, s%d offen%s%s" % (rn(RB + 4 * n, 4), rn(VOFF + p), srd(SO), base if n < 4 else S_SO2,
                       " offset:%d" % (1024 * p) if p else "", fl), "st", rd=[VOFF + p] + R(RB + 4 * n, 4)))
            L.append(x)
        return L

    def item_vars(g):
        L = []
        a = lambda t: L.append(salu(t))
        a("s_and_b32 s%d, s%d, %d" % (S_T, S_PN, 3 if g.o.rot else 0))
        a("s_lshl_b32 s%d, s%d, 7" % (S_T, S_T))
        a("s_mul_i32 s%d, s%d, 196608" % (S_KVC, S_PN))
        a("s_lshr_b32 s%d, s%d, 5" % (S_KB, S_WL))
        a("s_add_u32 s%d, s%d, s%d" % (S_KB, S_KB, S_KVC))
        a("s_lshl2_add_u32 s%d, s%d, s%d" % (S_T3, S_WL, S_KVC))
        a("s_lshl_b32 s%d, s%d, 17" % (S_T2, S_G))
        a("s_lshl3_add_u32 s%d, s%d, s%d" % (S_T2, S_WL, S_T2))
        for dc in range(4):
            a("s_add_u32 s%d, s%d, s%d" % (S_VB + dc, S_T3, S_T))
            a("s_add_u32 s%d, s%d, s%d" % (S_OB + dc, S_T2, S_T))
            if dc < 3:
                a("s_add_u32 s%d, s%d, 128" % (S_T, S_T))
                a("s_and_b32 s%d, s%d, 0x180" % (S_T, S_T))
        L.append([salu("s_cmp_lt_u32 s%d, 2" % S_R),
                  salu("s_cselect_b32 s%d, 32, 0" % S_T),
                  salu("s_cselect_b32 s%d, %d, 0" % (S_KNN, KBYTES)),
                  salu("s_cselect_b32 s%d, %d, 0" % (SQ + 2, QBYTES))])
        a("s_add_u32 s%d, s%d, s%d" % (S_T, S_G, S_T))
        a("s_mul_hi_u32 s%d, s%d, 0x55555556" % (S_PN, S_T))
        a("s_lshl_b32 s%d, s%d, 17" % (S_QB, S_T))
        a("s_lshl3_add_u32 s%d, s%d, s%d" % (S_QB, S_WL, S_QB))
        a("s_mul_i32 s%d, s%d, 196608" % (S_KBN, S_PN))
        a("s_lshr_b32 s%d, s%d, 5" % (S_T, S_WL))
        a("s_add_u32 s%d, s%d, s%d" % (S_KBN, S_KBN, S_T))
        return L

    def stamp(g):
        if not g.o.stamps: return []
        k = g.nst; g.nst += 1
        return [raw("s_memtime s[%d:%d]" % (S_ST + 2 * k, S_ST + 2 * k + 1), "smem")]
    def stamp_flush(g, n, row):
        L = [raw("s_memrealtime s[52:53]", "smem"), raw("s_memtime s[54:55]", "smem"), raw("s_waitcnt lgkmcnt(0)", "waitall")]
        for k in range(n): L.append(raw("v_writelane_b32 v%d, s%d, %d" % (T + 9, S_ST + 2 * k, k)))
        L.append(raw("v_writelane_b32 v%d, s52, 30" % (T + 9)))
        L.append(raw("v_writelane_b32 v%d, s54, 31" % (T + 9)))
        L += [raw("v_mbcnt_lo_u32_b32 v%d, -1, 0" % (T + 10)), raw("v_mbcnt_hi_u32_b32 v%d, -1, v%d" % (T + 10, T + 10)),
              raw("v_lshlrev_b32 v%d, 2, v%d" % (T + 10, T + 10))]
        L.append(salu("s_lshl_b32 s52, s2, 13"))
        L.append(salu("s_lshr_b32 s53, s%d, 1" % S_WL))
        L.append(salu("s_add_u32 s52, s52, s53"))
        if row is None:
            L.append(salu("s_lshl_b32 s53, s%d, 8" % S_R)); L.append(salu("s_add_u32 s52, s52, s53"))
        else:
            L.append(salu("s_add_u32 s52, s52, %d" % (row * 256)))
        L.append(raw("buffer_store_dword v%d, v%d, s[48:51], s52 offen" % (T + 9, T + 10), "salu"))
        return L

    def body(g):
        o = g.o; LA = g.LA
        mfs = []; idx = {}; last = {}
        sums = {}
        for j in range(11):
            for b in range(4): sums[16 * (j + 1) + 4 * b + 5] = (j, b)
        s11 = {192 + o.s11 + 2 * b: (11, b) for b in range(4)}
        for G in range(384):
            for b in range(4):
                idx[(G, b)] = len(mfs); mfs.append(g.mf(G, b))
            for sm in (sums, s11):
                if G in sm: mfs.append(g.summf(*sm[G]))
            last[G] = len(mfs) - 1
        N = len(mfs)
        gap = [[] for _ in range(N)]; end = [[] for _ in range(N)]
        load = [0] * N
        def put(i, x):
            gap[i].extend(x if isinstance(x, list) else [x]); load[i] += cost(x)
        def putend(i, x):
            end[i].append(x); load[i] += cost(x)
        def place(L, g0, g1, lo=None, hi=None, win=3):
            lo = idx[(g0, 0)] if lo is None else lo
            hi = last[g1] if hi is None else hi
            tot = sum(cost(x) for x in L); acc = 0; prev = lo
            for x in L:
                tgt = lo + int((acc + 0.5 * cost(x)) * (hi - lo + 1) / tot); acc += cost(x)
                c0 = max(prev, tgt - win); c1 = max(c0, min(hi, tgt + win))
                best = min(range(c0, c1 + 1), key=lambda i: (max(load[i] + cost(x) - 2, 0), abs(i - tgt)))
                put(best, x); prev = best
        bars = {}
        for s in range(12): bars[(16 * s - LA) % 384] = [("K", s)]
        for dc in range(4):
            C = 192 + 48 * dc
            bars[C - LA] = [("V", dc, 0)]
            bars[C - LA + 4] = [("V", dc, 1), ("V", dc, 2)]
        for G in range(384):
            if G % 4 == 2:
                i = last[G - 1]
                putend(i, wait(l=("F", (G + 3) % 384), v=bars.get(G)))
                if G in bars:
                    putend(i, barrier())
                    for x in g.stamp(): end[i].append(x)
        assert all(G % 4 == 2 for G in bars)
        for G in range(384):
            f = (G + LA) % 384
            if f >= 192 and (f - 192) % 12 == 0:
                D = (f - 192) // 12
                put(idx[(G - 1, 2)], valu("v_xor_b32", VA, lit(g.vconst(D) ^ g.vconst((D - 1) % 16)), VA))
            for k, x in enumerate(g.frag_reads(f)): put(idx[(G, k)], x)
        for u in range(2, 24):
            for k in range(8):
                G = 8 * u + k
                put(idx[(G, 0)], g.fma(u - 1, 2 * k))
                put(idx[(G, 1)], g.exp(u - 1, 2 * k))
                put(idx[(G, 2)], g.cvt(u - 1, k - 1) if k else g.cvt(u - 2, 7))
                put(idx[(G, 2)], g.fma(u - 1, 2 * k + 1))
                put(idx[(G, 3)], g.exp(u - 1, 2 * k + 1))
        put(idx[(192, 2)], g.cvt(22, 7))
        place(g.firstmax() + g.sm_stream(0, False), 8, 15, win=1)
        lo = idx[(192, 0)]
        for b in range(4):
            e = 4 * b
            st = [g.fma(23, e), g.fma(23, e + 1), g.exp(23, e), g.exp(23, e + 1), g.fma(23, e + 2), g.fma(23, e + 3),
                  g.exp(23, e + 2), g.exp(23, e + 3), g.cvt(23, 2 * b), g.cvt(23, 2 * b + 1)]
            hi = idx[(192 + o.s11 + 2 * b, 1)]
            if b < 3: hi = min(hi, lo + (idx[(192 + o.s11 + 6, 1)] - lo) // (4 - b))
            place(st, None, None, lo=lo, hi=hi, win=1)
            lo = hi + 1
        place(g.lfinal(), 192 + o.s11 + 7, 203, lo=idx[(192 + o.s11 + 7, 1)], win=1)
        putend(last[203], raw("s_cbranch_vccnz L_slow", "branch")); end[last[203]].append(label("L_back"))
        for D in range(16):
            G1 = (192 + 12 * (D + 1)) % 384
            if D == 0:
                place([wait(v=[("Q", 3)])] + g.qreads(2, 8) + g.qreads(3, 9), G1, G1 + 2, win=1)
                place(g.epilogue(D), G1 + 3, G1 + 11)
                place(g.qreads(0, 6) + g.qreads(1, 7), G1 + 12, G1 + 16)
            elif D == 15:
                place(g.epilogue(D), 0, 5, win=1)
                place(g.readback(), 6, 7, win=1)
                place(g.stores(S_OPREV) + [salu("s_mov_b32 s%d, %d" % (SO + 2, QBYTES))], o.st0, o.st1)
            elif D & 3 == 3:
                place(g.epilogue(D), G1, G1 + 7)
                place(g.readback(), G1 + 8, G1 + 11)
                place(g.stores(S_OB + (D >> 2)), G1 + 14, G1 + 40)
            else:
                place(g.epilogue(D), G1, G1 + 11)
        W = []
        W.append((g.dmaK(3, False), 0, 4)); W.append((g.dmaK(4, False), 5, 9))
        qs = dict(zip(o.qsteps, range(4)))
        for s in range(1, 12):
            t = g.dmaK(s + 4, False) if s < 8 else (g.dmaV(0, s - 8) if s < 11 else g.dmaV(1, 0))
            if s in qs:
                W.append((t, 16 * s - 6, 16 * s + 1)); W.append((g.dmaQ(qs[s], 6 + qs[s]), 16 * s + 2, 16 * s + 9))
            else:
                W.append((t, 16 * s - 6, 16 * s + 9))
        W.append((g.dmaV(1, 1), 186, 193)); W.append((g.dmaV(1, 2), 194, 205))
        W.append((g.dmaQ(4, 6), 222, 227)); W.append((g.dmaQ(5, 7), 228, 233))
        for dc in range(1, 4):
            C = 192 + 48 * dc
            for kt in range(3):
                t = g.dmaV(dc + 1, kt) if dc < 3 else g.dmaK(kt, True)
                if dc == 3 and kt == 0: t = [salu("s_mov_b32 s%d, s%d" % (SK + 2, S_KNN))] + t
                W.append((t, C - 6 + 6 * kt, C - 1 + 6 * kt))
            if dc == 2:
                W.append((g.dmaQ(6, 6), C + 12, C + 21)); W.append((g.dmaQ(7, 7), C + 22, C + 31))
        for t, a, b in W: place(t, a, b)
        place([wait(v=[("Q", 5)])] + g.qreads(4, 6) + g.qreads(5, 7), 288 + 2, 288 + 7)
        place([wait(v=[("Q", 7)])] + g.qreads(6, 6) + g.qreads(7, 7), 336 + 30, 336 + 37)
        upd = [salu("s_mov_b32 s%d, s%d" % (S_OPREV, S_OB + 3)),
               salu("s_add_u32 s%d, s%d, 32" % (S_G, S_G)),
               salu("s_add_u32 s%d, s%d, 1" % (S_R, S_R))] + g.item_vars()
        place(upd, 336 + 41, 383, hi=idx[(383, 1)])
        put(idx[(383, 2)], salu("s_cmp_lt_u32 s%d, 3" % S_R))
        for i in (idx[(383, 2)], idx[(383, 3)]):
            assert not [x for x in gap[i][:-1 if i == idx[(383, 2)] else None] if False]
        out = [label("L_item")]
        for i in range(N):
            out.append(mfs[i]); out += gap[i] + end[i]
        if o.stamps:
            out += g.stamp_flush(g.nst, None) + [salu("s_cmp_lt_u32 s%d, 3" % S_R)]
        out.append(raw("s_cbranch_scc1 L_item", "branch"))
        over = sum(max(l - 2, 0) for l in load)
        p1 = sum(max(l - 2, 0) for l in load[:idx[(192, 0)]])
        print("gaps %d, overflow slots %d (phase 1: %d), est cycles %d" % (N, over, p1, 16 * N + 4 * over), file=sys.stderr)
        return out

    def prologue(g):
        o = g.o
        L = []
        a = lambda t: L.append(salu(t))
        v = lambda *x, **k: L.append(valu(*x, **k))
        a("s_cmp_ge_u32 s2, 256")
        L.append(raw("s_cbranch_scc1 L_end", "branch"))
        L.append(raw("s_load_dwordx4 s[4:7], s[0:1], 0", "smem"))
        L.append(raw("s_load_dwordx4 s[12:15], s[0:1], 16", "smem"))
        if o.stamps:
            L.append(raw("s_load_dwordx2 s[48:49], s[0:1], 40", "smem"))
            L.append(raw("s_memtime s[56:57]", "smem")); L.append(raw("s_memrealtime s[58:59]", "smem"))
        t = [T + i for i in range(8)]
        lane, w = t[0], t[1]
        v("v_lshrrev_b32", w, "6", 0)
        v("v_and_b32", lane, "63", 0)
        L.append(I("v_readfirstlane_b32 s%d, v%d" % (S_W, w), "rfl", rd=[w]))
        a("s_and_b32 s%d, s2, 7" % S_T)
        a("s_mul_i32 s%d, s%d, 96" % (S_T, S_T))
        a("s_lshr_b32 s%d, s2, 3" % S_G)
        a("s_add_u32 s%d, s%d, s%d" % (S_G, S_G, S_T))
        a("s_mul_hi_u32 s%d, s%d, 0x55555556" % (S_PN, S_G))
        a("s_mov_b32 s%d, 0" % S_R)
        a("s_lshl_b32 s%d, s%d, 12" % (S_WL, S_W))
        v("v_lshrrev_b32", t[2], "3", lane)
        v("v_and_b32", t[3], "7", lane)
        v("v_xor_b32", t[3], t[3], t[2])
        v("v_lshlrev_b32", t[3], "4", t[3])
        v("v_lshl_add_u32", VOFF, t[2], "9", t[3])
        for p in range(1, 4): v("v_add_u32", VOFF + p, lit(3072 * p), VOFF)
        if o.cpre:
            a("s_getpc_b64 s[52:53]")
            v("v_lshlrev_b32", 2, "7", 0)
            v("v_mov_b32", 3, "s53")
            L.append(I("v_add_co_u32 v2, vcc, s52, v2", "valu", rd=[2], wr=[2]))
            L.append(nop(1))
            L.append(I("v_addc_co_u32 v3, vcc, 0, v3, vcc", "valu", rd=[3], wr=[3]))
            L.append(I("global_load_dword v8, v[2:3], off", "ld", rd=[2, 3]))
        iv = []
        for x in g.item_vars(): iv.extend(x if isinstance(x, list) else [x])
        cut = [i for i, x in enumerate(iv) if x.text.startswith("s_cmp_lt_u32")][0]
        L += iv[:cut]
        L.append(raw("s_waitcnt lgkmcnt(0)", "waitall"))
        a("s_mov_b32 s8, s6"); a("s_mov_b32 s9, s7")
        a("s_mov_b32 s7, 0x20000"); a("s_mov_b32 s11, 0x20000"); a("s_mov_b32 s10, %d" % KBYTES)
        a("s_mov_b32 s6, %d" % QBYTES)
        L += g.dmaK(0, False)
        for j in range(8): L += g.dmaQ(j, j + 2, base=S_T2)
        L += g.dmaK(1, False)
        a("s_mov_b32 s16, s14"); a("s_mov_b32 s17, s15")
        a("s_mov_b32 s15, 0x20000"); a("s_mov_b32 s19, 0x20000")
        a("s_mov_b32 s14, %d" % KBYTES); a("s_mov_b32 s18, 0")
        if o.stamps: a("s_mov_b32 s50, 0x1000000"); a("s_mov_b32 s51, 0x20000")
        L += iv[cut:]
        a("s_mov_b32 s%d, s%d" % (S_OPREV, S_OB + 3))
        c = math.log2(math.e) / 16.0
        a("s_mov_b32 s%d, %s" % (S_C, f2h(c)))
        a("s_mov_b32 s%d, %s" % (S_NC, f2h(-c)))
        a("s_mov_b32 s%d, %s" % (S_TH, f2h(2.0 ** o.thr)))
        n16, g4 = t[2], t[3]
        v("v_and_b32", n16, "15", lane)
        v("v_lshrrev_b32", g4, "4", lane)
        v("v_and_b32", t[4], "7", lane)
        v("v_xor_b32", t[5], g4, t[4])
        v("v_lshlrev_b32", t[5], "4", t[5])
        v("v_lshl_add_u32", KA[0], n16, "7", t[5])
        v("v_xor_b32", KA[0] + 1, "64", KA[0])
        for x in range(2):
            v("v_add_u32", KA[1] + x, "0xc000", KA[0] + x)
            v("v_add_u32", 4 + x, "s%d" % S_WL, KA[0] + x)
            v("v_add_u32", QA + x, lit(6 * SLOT), 4 + x)
            v("v_add_u32", 4 + x, lit(2 * SLOT), 4 + x)
        v("v_lshrrev_b32", t[5], "1", g4)
        v("v_xor_b32", t[5], t[5], t[4])
        v("v_lshlrev_b32", t[5], "4", t[5])
        v("v_lshl_add_u32", t[5], n16, "7", t[5])
        v("v_and_b32", t[6], "1", g4)
        v("v_lshl_add_u32", t[5], t[6], "3", t[5])
        v("v_xor_b32", t[5], "64", t[5])
        a("s_add_u32 s%d, s%d, %s" % (S_T, S_WL, lit(8 * SLOT)))
        v("v_add_u32", OLW, "s%d" % S_T, t[5])
        v("v_lshlrev_b32", t[5], "4", lane)
        v("v_add_u32", OLR, "s%d" % S_T, t[5])
        v("v_lshrrev_b32", t[5], "2", lane)
        v("v_and_b32", t[6], "7", t[5])
        v("v_bfe_u32", t[7], lane, "1", "1")
        v("v_xor_b32", t[6], t[6], t[7])
        v("v_lshlrev_b32", t[6], "4", t[6])
        v("v_lshl_add_u32", t[6], t[5], "7", t[6])
        v("v_and_b32", t[7], "1", lane)
        v("v_lshl_add_u32", t[6], t[7], "3", t[6])
        v("v_xor_b32", VA, lit(g.vconst(15)), t[6])
        v("v_and_b32", t[5], "3", lane)
        v("v_mov_b32", t[6], "0x3f803f80")
        L.append(I("v_cmp_eq_u32 vcc, 0, v%d" % t[5], "valu", rd=[t[5]]))
        for b in range(4): v("v_mov_b32", RINV + b, "0")
        L.append(I("v_cndmask_b32 v%d, 0, v%d, vcc" % (t[6], t[6]), "valu", rd=[t[6]], wr=[t[6]]))
        for r in range(4): v("v_accvgpr_write_b32", ONES + r, t[6])
        L.append(wait(v=[("Q", 0)]))
        L += g.qreads(0, 2, qa=4, slot0=2)
        L.append(wait(l=("QR", 0)))
        L += g.dmaK(2, False)
        for j in range(1, 8):
            L.append(wait(v=[("Q", j)]))
            L += g.qreads(j, j + 2, qa=4, slot0=2) if j < 4 else g.qreads(j, j + 2)
        L.append(barrier())
        for f in range(g.LA): L += g.frag_reads(f)
        if o.stamps: L += g.stamp_flush(2, 0)
        L.append(wait(l=("F", 1)))
        return L

    def tail(g):
        L = [nop(7)]
        L += g.epilogue(15) + g.readback()
        for x in g.stores(S_OPREV): L += x
        if g.o.stamps:
            L.append(raw("s_waitcnt vmcnt(0)", "salu"))
            L += g.stamp_flush(0, 4)
        L += [label("L_end"), raw("s_endpgm")]
        return L

    def slow(g):
        L = [label("L_slow"), nop(7)]
        ko = T + 5
        L += [I("v_mbcnt_lo_u32_b32 v%d, -1, 0" % ko, "valu", wr=[ko]), I("v_mbcnt_hi_u32_b32 v%d, -1, v%d" % (ko, ko), "valu", rd=[ko], wr=[ko]),
              valu("v_lshrrev_b32", T + 6, "4", ko), valu("v_and_b32", ko, "15", ko), valu("v_lshlrev_b32", ko, "9", ko),
              valu("v_lshl_add_u32", ko, T + 6, "4", ko)]
        def stile():
            X = []
            for ks in range(8):
                X.append(I("buffer_load_dwordx4 %s, %s, %s, s%d offen offset:%d" % (rn(RB + 4 * ks, 4), rn(ko), srd(SK), S_T, 64 * ks), "ld", rd=[ko]))
            X.append(salu("s_add_u32 s%d, s%d, 0x2000" % (S_T, S_T)))
            X.append(raw("s_waitcnt vmcnt(0)", "salu"))
            for ks in range(8):
                for b in range(4): X.append(mfma(ACC[1] + 4 * b, RB + 4 * ks, Q0 + (b * 8 + ks) * 4, ks == 0))
            X.append(nop(7))
            return X
        for b in range(4): L.append(valu("v_mov_b32", NEGM + b, "0xff800000"))
        L += [salu("s_mov_b32 s%d, s%d" % (S_T, S_KVC)), salu("s_mov_b32 s%d, 0" % S_U), label("L_slowA")]
        L += stile()
        for b in range(4):
            a = ACC[1] + 4 * b
            L += [valu("v_max3_f32", NEGM + b, NEGM + b, a, a + 1), valu("v_max3_f32", NEGM + b, NEGM + b, a + 2, a + 3)]
        L += [salu("s_add_u32 s%d, s%d, 1" % (S_U, S_U)), salu("s_cmp_lt_u32 s%d, 24" % S_U), raw("s_cbranch_scc1 L_slowA", "branch")]
        L += g.xreduce(True)
        for r in range(16): L.append(valu("v_accvgpr_write_b32", LACC + r, "0"))
        L += [salu("s_mov_b32 s%d, s%d" % (S_T, S_KVC)), salu("s_mov_b32 s%d, 0" % S_U), label("L_slowB")]
        for i in range(176): L.append(valu("v_mov_b32", P0 + i, P0 + i + 16))
        for half in range(2):
            L += stile()
            for e in range(16): L.append(g.fma(1, e))
            for e in range(16): L.append(g.exp(1, e))
            for k in range(8):
                a = ACC[1] + 2 * k
                L.append(valu("v_cvt_pk_bf16_f32", P0 + (44 + (k >> 1)) * 4 + 2 * half + (k & 1), a, a + 1))
        L.append(nop(1))
        for b in range(4): L.append(mfma(LACC + 4 * b, ONES, P0 + (44 + b) * 4, False))
        L += [salu("s_add_u32 s%d, s%d, 1" % (S_U, S_U)), salu("s_cmp_lt_u32 s%d, 12" % S_U), raw("s_cbranch_scc1 L_slowB", "branch")]
        L.append(nop(7))
        for b in range(4): L.append(valu("v_accvgpr_read_b32", T + b, LACC + 4 * b))
        for b in range(4): L.append(trans("v_rcp_f32", RINV + b, T + b))
        L.append(valu("v_xor_b32", ko, lit(g.vconst(0) ^ g.vconst(1)), VA))
        for j0 in (0, 6):
            for j in range(j0, j0 + 6):
                L += [dsrtr(RB + 4 * (j - j0), ko, j * 4096), dsrtr(RB + 4 * (j - j0) + 2, ko, j * 4096 + 2048)]
            L.append(raw("s_waitcnt lgkmcnt(0)", "waitall"))
            for j in range(j0, j0 + 6):
                for b in range(4): L.append(mfma(ACC[0] + 4 * b, RB + 4 * (j - j0), P0 + (j * 4 + b) * 4, j == 0))
        L += [nop(7), raw("s_branch L_back", "branch")]
        return L

LK = ("ds_r", "ds_w"); VK = ("dma", "st", "ld")
def find(q, tag):
    for k in range(len(q) - 1, -1, -1):
        if q[k].tag == tag: return k
    raise KeyError(tag)

def resolve(path):
    lv = {}; vv = {}
    lq = []; vq = []
    for x in path:
        if x.kind in LK: lq.append(x)
        elif x.kind in VK: vq.append(x)
        elif x.kind == "wait":
            if x.need is not None:
                lv[id(x)] = min(lv.get(id(x), 15), len(lq) - 1 - find(lq, x.need))
            for t in (x.vneed or []):
                vv[id(x)] = min(vv.get(id(x), 63), len(vq) - 1 - find(vq, t))
    for x in path:
        if x.kind == "wait": x.site = lv.get(id(x)); x.vsite = vv.get(id(x))
    need_l = set(); need_v = set()
    lq = []; vq = []; ld = 0; vd = 0
    for x in path:
        if x.kind in LK: lq.append(x)
        elif x.kind in VK: vq.append(x)
        elif x.kind == "waitall": ld = len(lq)
        elif x.kind == "wait":
            if x.need is not None and find(lq, x.need) >= ld:
                need_l.add(id(x)); ld = max(ld, len(lq) - x.site)
            if x.vneed and max(find(vq, t) for t in x.vneed) >= vd:
                need_v.add(id(x)); vd = max(vd, len(vq) - x.vsite)
    for x in path:
        if x.kind == "wait":
            if id(x) not in need_l: x.site = None
            if id(x) not in need_v: x.vsite = None
            parts = (["vmcnt(%d)" % x.vsite] if x.vsite is not None else []) + (["lgkmcnt(%d)" % x.site] if x.site is not None else [])
            x.drop = not parts
            x.text = "s_waitcnt " + " ".join(parts)

def check(path, strict):
    t = 0; last_mfma = -99; m0_t = -99
    lq = []; ld = 0; vq = []; vd = 0
    wr_mfma = {}; wr_valu = {}; wr_trans = {}; rdC = {}; st_data = {}
    slot_tile = {}
    vd_bar = 0; ld_bar = 0
    errs = [0]
    def err(msg, x):
        errs[0] += 1
        if errs[0] < 30: print("HAZARD:", msg, "|", x.text, file=sys.stderr)
    for x in path:
        if x.kind == "label" or x.drop: continue
        if x.kind == "mfma" and not strict: t = max(t, last_mfma + 4)
        touched = x.rd | x.wr | x.C
        for p in lq[ld:]:
            if p.kind == "ds_r" and (p.wr & touched): err("unwaited ds_read %s" % p.text, x)
        isv = x.kind in ("valu", "trans", "perm", "rfl")
        for r in touched:
            if r in wr_mfma:
                tt, full = wr_mfma[r]
                if x.kind == "mfma" and r not in x.rd and x.wr == full: continue
                if t - tt - 1 < 8: err("mfma D -> use after %d states (%s)" % (t - tt - 1, rn(r)), x)
        if x.kind in ("mfma", "perm"):
            for r in (x.rd | x.C):
                if r in wr_valu and t - wr_valu[r] - 1 < 2: err("valu -> %s" % x.kind, x)
        if x.kind == "rfl":
            for r in x.rd:
                if r in wr_valu and t - wr_valu[r] - 1 < 1: err("valu -> readfirstlane", x)
        if isv and x.kind != "trans":
            for r in x.rd:
                if r in wr_trans and t - wr_trans[r] - 1 < 1: err("trans -> valu", x)
        if isv:
            for r in x.wr:
                if r in rdC and t - rdC[r] - 1 < 3: err("mfma C WAR", x)
        for r in x.wr:
            if r in st_data and t - st_data[r] - 1 < 2: err("store data WAR", x)
        if x.kind == "dma" and t - m0_t - 1 < 1: err("m0 -> dma", x)
        if x.kind == "dma":
            slot, tag = x.reg
            for k, p in enumerate(lq):
                if p.reg and p.reg[0] == slot:
                    lim = ld_bar if (p.kind == "ds_r" and p.reg[2] == "shared") else ld
                    if k >= lim: err("dma into slot %d before %s is known done" % (slot, p.text), x); break
            slot_tile[slot] = (tag, len(vq))
        if x.kind == "ds_r" and x.reg:
            slot, tag, mode = x.reg
            cur = slot_tile.get(slot)
            if tag == "O":
                if cur and cur[0] != "O": err("read-back of slot %d holding %s" % (slot, cur[0]), x)
            elif not cur or cur[0] != tag: err("slot %d holds %s, wanted %s" % (slot, cur, tag), x)
            elif cur[1] >= (vd_bar if mode == "shared" else vd): err("tile %s not known landed" % (tag,), x)
        if x.kind == "ds_w" and x.reg:
            slot = x.reg[0]
            cur = slot_tile.get(slot)
            if cur and cur[0] != "O":
                if cur[1] >= vd: err("staging write with a dma in flight", x)
                n = sum(1 for p in lq if p.reg and p.kind == "ds_r" and p.reg[:2] == (slot, cur[0]))
                if n % 4 or not n: err("staging write before Q reads", x)
            slot_tile[slot] = ("O", -1)
        if x.kind == "salu_m0": m0_t = t
        if x.kind == "mfma":
            last_mfma = t
            for r in x.wr: wr_mfma[r] = (t, x.wr); wr_valu.pop(r, None)
            for r in x.C: rdC[r] = t
        if isv:
            for r in x.wr:
                wr_valu[r] = t; wr_mfma.pop(r, None)
                if x.kind == "trans": wr_trans[r] = t
                else: wr_trans.pop(r, None)
        if x.kind == "st":
            for r in x.rd: st_data[r] = t
        if x.kind in LK: lq.append(x)
        if x.kind in VK: vq.append(x)
        if x.kind == "waitall": ld = len(lq)
        if x.kind == "wait":
            if x.site is not None: ld = max(ld, len(lq) - x.site)
            if x.vsite is not None: vd = max(vd, len(vq) - x.vsite)
        if x.kind == "barrier": vd_bar = vd; ld_bar = ld
        t += (x.tag + 1) if x.kind == "nop" else 1
    return errs[0]

HEADER = """; GQA attention forward, B=32 Hq=16 Hkv=8 Sq=Sk=384 D=256, bf16 in/out (emitted by my generator script).
; One persistent 4-wave workgroup per CU, three items of 256 query rows (64 per wave), K/V/Q staged by LDS-DMA.
; Per item: S^T = K Q^T in 16-key units, P = exp2(c*S - c*m) kept in registers as bf16, row sums by MFMA,
; then O^T = V^T P^T per 16-column tile.  m is the row max over the first 16 keys (never above the true max);
; @launch grid=(256,1,1) block=(256,1,1) lds=163840
.amdgcn_target "amdgcn-amd-amdhsa--gfx950"
.text
.globl {n}_kernel
.p2align 8
.type {n}_kernel,@function
{n}_kernel:
"""
FOOTER = """.section .rodata,"a"
.p2align 6
.amdhsa_kernel {n}_kernel
  .amdhsa_next_free_vgpr 512
  .amdhsa_next_free_sgpr 102
  .amdhsa_accum_offset 256
  .amdhsa_group_segment_fixed_size 0
  .amdhsa_kernarg_size 48
  .amdhsa_user_sgpr_count 2
  .amdhsa_user_sgpr_kernarg_segment_ptr 1
  .amdhsa_system_sgpr_workgroup_id_x 1
.end_amdhsa_kernel
"""

def main():
    ap = argparse.ArgumentParser()
    ap.add_argument("-o", dest="out", default="cdna_kernels/%s.s" % NAME)
    ap.add_argument("--thr", type=float, default=30.0)
    ap.add_argument("--qflag", default="")
    ap.add_argument("--kvflag", default="")
    ap.add_argument("--oflag", default="")
    ap.add_argument("--rot", type=int, default=1)
    ap.add_argument("--s11", type=int, default=3)
    ap.add_argument("--st0", type=int, default=16)
    ap.add_argument("--st1", type=int, default=40)
    ap.add_argument("--qsteps", type=lambda s: [int(x) for x in s.split(",")], default=[3, 5, 7, 9])
    ap.add_argument("--stamps", type=int, default=0)
    ap.add_argument("--strict", type=int, default=1)
    ap.add_argument("--align", type=int, default=0)
    ap.add_argument("--drop", default="")
    ap.add_argument("--dbgst", type=int, default=-1)
    ap.add_argument("--cpre", type=int, default=0)
    o = ap.parse_args()
    g = Gen(o)
    body = g.body()
    pro, tail, slow = g.prologue(), g.tail(), g.slow()
    path = pro + body + body + tail
    resolve(path)
    errs = check(path, o.strict) + check(slow, o.strict)
    if errs: print("%d hazard findings" % errs, file=sys.stderr)
    drop = set(o.drop.split(",")) if o.drop else set()
    body = [x for x in body if x.kind not in drop]
    if "valu" in drop: body = [x for x in body if "vccnz" not in (x.text or "")]
    if o.dbgst >= 0:
        pro[2:2] = [raw("s_memrealtime s[60:61]"), raw("s_memtime s[80:81]"), raw("s_load_dwordx2 s[48:49], s[0:1], 32")]
        pro[len(pro) - 1:len(pro) - 1] = [raw("s_memrealtime s[62:63]"), raw("s_memtime s[82:83]"), raw("s_mov_b32 s50, 256"), raw("s_mov_b32 s51, 0x20000")]
        e = len(body) - 1
        body[e:e] = [raw("s_mov_b64 s[64:65], s[66:67]"), raw("s_mov_b64 s[66:67], s[68:69]"), raw("s_memrealtime s[68:69]"),
                     raw("s_mov_b64 s[84:85], s[86:87]"), raw("s_mov_b64 s[86:87], s[88:89]"), raw("s_memtime s[88:89]")]
        e = len(tail) - 2
        x = ["s_waitcnt vmcnt(0)", "s_memrealtime s[70:71]", "s_memtime s[90:91]", "s_waitcnt lgkmcnt(0)",
             "s_cmp_lg_u32 s2, %d" % o.dbgst, "s_cbranch_scc1 L_end", "s_cmp_lg_u32 s20, 0", "s_cbranch_scc1 L_end"]
        for k in range(5):
            x += ["s_sub_u32 s74, s%d, s%d" % (62 + 2 * k, 60 + 2 * k), "v_mov_b32 v0, s74", "buffer_store_dword v0, off, s[48:51], 0 offset:%d" % (4 * k), "s_nop 1"]
            x += ["s_sub_u32 s74, s%d, s%d" % (82 + 2 * k, 80 + 2 * k), "v_mov_b32 v0, s74", "buffer_store_dword v0, off, s[48:51], 0 offset:%d" % (32 + 4 * k), "s_nop 1"]
        tail[e:e] = [raw(y) for y in x]
    txt = HEADER.format(n=NAME)
    al = [raw(".p2align %d" % o.align, "label")] if o.align else []
    for x in pro + al + body + tail + slow:
        if x.drop: continue
        txt += ("" if x.kind == "label" else "    ") + x.text + "\n"
    txt += FOOTER.format(n=NAME)
    open(o.out, "w").write(txt)
    print(dict(Counter(x.kind for x in body if not x.drop)), file=sys.stderr)
    return 1 if errs else 0

if __name__ == "__main__":
    sys.exit(main())
```

```python
import sys, struct, math, argparse
from collections import Counter

NAME = "standalone__gqa_softmax__near_ridge"
def f2h(x): return "0x%08x" % struct.unpack("<I", struct.pack("<f", x))[0]

class I:
    __slots__ = ("text", "kind", "rd", "wr", "tag", "need", "site", "C", "reg", "drop", "vneed", "vsite")
    def __init__(s, text, kind, rd=(), wr=(), tag=None, need=None, C=(), reg=None, vneed=None):
        s.text = text; s.kind = kind; s.rd = frozenset(rd); s.wr = frozenset(wr)
        s.tag = tag; s.need = need; s.site = None; s.C = frozenset(C); s.reg = reg; s.drop = False
        s.vneed = vneed; s.vsite = None

A = 256
def R(a, n=1): return list(range(a, a + n))
def rn(a, n=1):
    p, i = ("a", a - A) if a >= A else ("v", a)
    return "%s%d" % (p, i) if n == 1 else "%s[%d:%d]" % (p, i, i + n - 1)
def lit(x): return str(x) if -16 <= x <= 64 else "0x%x" % x

def valu(op, d, *src, kind="valu"):
    rd = [x for x in src if isinstance(x, int)]
    return I("%s %s, %s" % (op, rn(d), ", ".join(rn(x) if isinstance(x, int) else x for x in src)), kind, rd=rd, wr=[d])
def trans(op, d, s): return valu(op, d, s, kind="trans")
def perm(n, a, b): return I("v_permlane%d_swap_b32 %s, %s" % (n, rn(a), rn(b)), "perm", rd=[a, b], wr=[a, b])
def salu(t, m0=False): return I(t, "salu_m0" if m0 else "salu")
def mfma(d, a, b, first):
    return I("v_mfma_f32_16x16x32_bf16 %s, %s, %s, %s" % (rn(d, 4), rn(a, 4), rn(b, 4), "0" if first else rn(d, 4)), "mfma",
             rd=R(a, 4) + R(b, 4), wr=R(d, 4), C=() if first else R(d, 4))
def dsr128(d, a, off, tag=None, reg=None):
    return I("ds_read_b128 %s, %s offset:%d" % (rn(d, 4), rn(a), off), "ds_r", rd=[a], wr=R(d, 4), tag=tag, reg=reg)
def dsrtr(d, a, off, tag=None, reg=None):
    return I("ds_read_b64_tr_b16 %s, %s offset:%d" % (rn(d, 2), rn(a), off), "ds_r", rd=[a], wr=R(d, 2), tag=tag, reg=reg)
def dsw64(a, s, off, reg=None):
    return I("ds_write_b64 %s, %s offset:%d" % (rn(a), rn(s, 2), off), "ds_w", rd=[a] + R(s, 2), reg=reg)
def wait(l=None, v=None): return I(None, "wait", need=l, vneed=v)
def raw(t, kind="salu"): return I(t, kind)
def label(n): return I(n + ":", "label")
def nop(n): return I("s_nop %d" % n, "nop", tag=n)
def barrier(): return I("s_barrier", "barrier")

P0 = 0
ACC = [192, 208]
KA = [224, 226]; QA = 228; VA = 230; VOFF = 231; OLW = 235; OLR = 236
NEGM = 237; RINV = 241; T = 245
Q0 = A + 0; FR0 = A + 128; QS = A + 160; LACC = A + 192; ONES = A + 208; RB = A + 212

SQ = 4; SK = 8; SV = 12; SO = 16
S_W = 20; S_C = 21; S_TH = 22; S_WL = 23; S_NC = 24; S_R = 25; S_G = 26
S_KVC = 27; S_KB = 28; S_KBN = 29; S_QB = 30; S_PN = 31; S_KNN = 32; S_OPREV = 33
S_SO = 34; S_SO2 = 35; S_T = 36; S_T2 = 37; S_T3 = 38; S_U = 39
S_VB = 40; S_OB = 44
S_DBG = 48; S_ST = 56

QBYTES = 32 * 16 * 384 * 256 * 2
KBYTES = 32 * 8 * 384 * 256 * 2
SLOT = 16384
def srd(s): return "s[%d:%d]" % (s, s + 3)
COST = {"trans": 2, "label": 0}
DUR = {"trans": 8, "label": 0, "ds_w": 16, "dma": 20, "st": 24}
def dur(x):
    if x.kind == "wait" and x.tag == "free": return 0
    if x.kind == "nop": return 4 * (x.tag + 1)
    return DUR.get(x.kind, 4)
def cost(x):
    if isinstance(x, list): return sum(cost(y) for y in x)
    if x.kind == "wait" and x.tag == "free": return 0
    return COST.get(x.kind, 1)

class Gen:
    def __init__(g, o):
        g.o = o; g.LA = 6; g.NF = 8
        g.nst = 0

    def dma(g, typ, slot, base, add, tag):
        o = g.o
        s = {"K": SK, "Q": SQ, "V": SV}[typ]
        fl = o.qflag if typ == "Q" else o.kvflag
        fl = " " + fl if fl else ""
        L = [salu("s_add_u32 m0, s%d, %s" % (S_WL, lit(slot * SLOT)), m0=True),
             salu("s_add_u32 s%d, s%d, %s" % (S_SO, base, lit(add)))]
        for p in range(4):
            L.append(I("buffer_load_dwordx4 %s, %s, s%d offen%s%s lds" % (rn(VOFF + p), srd(s), S_SO, " offset:%d" % (1024 * p) if p else "", fl),
                       "dma", rd=[VOFF + p], tag=tag if p == 3 else None, reg=(slot, tag)))
        return L
    def dmaK(g, c, nxt): return g.dma("K", c % 6, S_KBN if nxt else S_KB, c * SLOT, ("K", c))
    def dmaV(g, dc, kt): return g.dma("V", 3 * (dc & 1) + kt, S_VB + dc, kt * 65536, ("V", dc, kt))
    def dmaQ(g, j, slot, base=S_QB): return g.dma("Q", slot, base, (j >> 2) * 16384 + (j & 3) * 128, ("Q", j))
    def qreg(g, j, bb, x): return Q0 + ((2 * (j >> 2) + bb) * 8 + 2 * (j & 3) + x) * 4
    def qmoves(g, j):
        return [valu("v_accvgpr_mov_b32", g.qreg(j, bb, x) + r, QS + 16 * j + 8 * bb + 4 * x + r)
                for bb in range(2) for x in range(2) for r in range(4)]
    def qreads(g, j, slot, qa=QA, slot0=6, spare=False):
        L = []
        for bb in range(2):
            for x in range(2):
                d = QS + 16 * j + 8 * bb + 4 * x if spare else g.qreg(j, bb, x)
                L.append(dsr128(d, qa + x, (slot - slot0) * SLOT + bb * 2048, tag=("QR", j), reg=(slot, ("Q", j), "priv")))
        return L

    def frag(g, f): return FR0 + 4 * (f % g.NF)
    def frag_reads(g, f):
        d = g.frag(f)
        if f < 192:
            u, ks = divmod(f, 8); c = u >> 1
            return [dsr128(d, KA[(c % 6) // 3] + (ks & 1), (c % 3) * SLOT + (ks >> 1) * 4096 + (u & 1) * 2048,
                           tag=("F", f), reg=(c % 6, ("K", c), "shared"))]
        D, j = divmod(f - 192, 12); dc = D >> 2
        reg = (3 * (dc & 1) + (j >> 2), ("V", dc, j >> 2), "shared")
        return [dsrtr(d, VA, j * 4096, reg=reg), dsrtr(d + 2, VA, j * 4096 + 2048, tag=("F", f), reg=reg)]
    @staticmethod
    def vconst(D): return ((D & 3) << 5) ^ (((D >> 2) & 1) * 0xC000)

    def mf(g, G, b):
        if G < 192:
            u, ks = divmod(G, 8)
            return mfma(ACC[u & 1] + 4 * b, g.frag(G), Q0 + (b * 8 + ks) * 4, ks == 0)
        D, j = divmod(G - 192, 12)
        return mfma(ACC[D & 1] + 4 * b, g.frag(G), P0 + (j * 4 + b) * 4, j == 0)
    def summf(g, j, b): return mfma(LACC + 4 * b, ONES, P0 + (j * 4 + b) * 4, j == 0)

    def fma(g, u, e): a = ACC[u & 1] + e; return valu("v_fma_f32", a, a, "s%d" % S_C, NEGM + (e >> 2))
    def exp(g, u, e): a = ACC[u & 1] + e; return trans("v_exp_f32", a, a)
    def cvt(g, u, k):
        a = ACC[u & 1] + 2 * k
        return valu("v_cvt_pk_bf16_f32", P0 + ((u >> 1) * 4 + (k >> 1)) * 4 + 2 * (u & 1) + (k & 1), a, a + 1)
    def xreduce(g, pad):
        m = [NEGM + b for b in range(4)]
        n = (lambda: [nop(1)]) if pad else (lambda: [])
        L = n() + [perm(32, m[0], m[2]), perm(32, m[1], m[3]),
             valu("v_max_f32", m[0], m[0], m[2]), valu("v_max_f32", m[1], m[1], m[3])] + [nop(1)] + \
            [perm(16, m[0], m[1]), valu("v_max_f32", m[0], m[0], m[1]),
             valu("v_mul_f32", m[0], "s%d" % S_NC, m[0]), valu("v_mov_b32", m[1], m[0])] + [nop(1)] + \
            [perm(16, m[0], m[1]), valu("v_mov_b32", m[2], m[0]), valu("v_mov_b32", m[3], m[1])] + [nop(0)] + \
            [perm(32, m[0], m[2])] + [perm(32, m[1], m[3])]
        return L
    def firstmax(g):
        L = []
        for b in range(4):
            a = ACC[0] + 4 * b
            L += [valu("v_max3_f32", NEGM + b, a, a + 1, a + 2), valu("v_max_f32", NEGM + b, NEGM + b, a + 3)]
        return L + g.xreduce(True)
    def sm_stream(g, u, last_cvt):
        L = []
        for k in range(8):
            L += [g.fma(u, 2 * k), g.fma(u, 2 * k + 1), g.exp(u, 2 * k)]
            if k: L.append(g.cvt(u, k - 1))
            L.append(g.exp(u, 2 * k + 1))
        if last_cvt: L += [g.cvt(u, 7)]
        return L
    def lfinal(g):
        L = []
        for b in range(4): L.append(valu("v_accvgpr_read_b32", T + b, LACC + 4 * b))
        L.append(valu("v_max3_f32", T + 4, T, T + 1, T + 2))
        L.append(trans("v_rcp_f32", RINV, T))
        L.append(valu("v_max_f32", T + 4, T + 4, T + 3))
        L.append(trans("v_rcp_f32", RINV + 1, T + 1))
        L.append(I("v_cmp_lt_f32 vcc, s%d, %s" % (S_TH, rn(T + 4)), "valu", rd=[T + 4]))
        L.append(trans("v_rcp_f32", RINV + 2, T + 2))
        L.append(trans("v_rcp_f32", RINV + 3, T + 3))
        return L

    def epilogue(g, D):
        t = D & 3
        L = [valu("v_xor_b32", OLW, lit((t ^ ((t - 1) & 3)) << 5), OLW)]
        for b in range(4):
            a = ACC[D & 1] + 4 * b
            for r in range(4): L.append(valu("v_mul_f32", a + r, RINV + b, a + r))
            L.append(valu("v_cvt_pk_bf16_f32", a, a, a + 1))
            L.append(valu("v_cvt_pk_bf16_f32", a + 1, a + 2, a + 3))
            L.append(dsw64(OLW, a, (b >> 1) * SLOT + (b & 1) * 2048, reg=(8 + (b >> 1), "O")))
        return L
    def readback(g):
        return [dsr128(RB + 4 * n, OLR, (n >> 2) * SLOT + (n & 3) * 1024, tag=("RB", n), reg=(8 + (n >> 2), "O", "priv")) for n in range(8)]
    def stores(g, base):
        fl = " " + g.o.oflag if g.o.oflag else ""
        L = []
        for n in range(8):
            x = []
            if n == 4: L.append([salu("s_add_u32 s%d, s%d, 0x4000" % (S_SO2, base))])
            x.append(wait(l=("RB", n))); x[-1].tag = "free"
            p = n & 3
            x.append(I("buffer_store_dwordx4 %s, %s, %s, s%d offen%s%s" % (rn(RB + 4 * n, 4), rn(VOFF + p), srd(SO), base if n < 4 else S_SO2,
                       " offset:%d" % (1024 * p) if p else "", fl), "st", rd=[VOFF + p] + R(RB + 4 * n, 4)))
            L.append(x)
        return L

    def item_vars(g):
        L = []
        a = lambda t: L.append(salu(t))
        a("s_and_b32 s%d, s%d, %d" % (S_T, S_PN, 3 if g.o.rot else 0))
        a("s_lshl_b32 s%d, s%d, 7" % (S_T, S_T))
        a("s_mul_i32 s%d, s%d, 196608" % (S_KVC, S_PN))
        a("s_lshr_b32 s%d, s%d, 5" % (S_KB, S_WL))
        a("s_add_u32 s%d, s%d, s%d" % (S_KB, S_KB, S_KVC))
        a("s_lshl2_add_u32 s%d, s%d, s%d" % (S_T3, S_WL, S_KVC))
        a("s_lshl_b32 s%d, s%d, 17" % (S_T2, S_G))
        a("s_lshl3_add_u32 s%d, s%d, s%d" % (S_T2, S_WL, S_T2))
        for dc in range(4):
            a("s_add_u32 s%d, s%d, s%d" % (S_VB + dc, S_T3, S_T))
            a("s_add_u32 s%d, s%d, s%d" % (S_OB + dc, S_T2, S_T))
            if dc < 3:
                a("s_add_u32 s%d, s%d, 128" % (S_T, S_T))
                a("s_and_b32 s%d, s%d, 0x180" % (S_T, S_T))
        L.append([salu("s_cmp_lt_u32 s%d, 2" % S_R),
                  salu("s_cselect_b32 s%d, 32, 0" % S_T),
                  salu("s_cselect_b32 s%d, %d, 0" % (S_KNN, KBYTES)),
                  salu("s_cselect_b32 s%d, %d, 0" % (SQ + 2, QBYTES))])
        a("s_add_u32 s%d, s%d, s%d" % (S_T, S_G, S_T))
        a("s_mul_hi_u32 s%d, s%d, 0x55555556" % (S_PN, S_T))
        a("s_lshl_b32 s%d, s%d, 17" % (S_QB, S_T))
        a("s_lshl3_add_u32 s%d, s%d, s%d" % (S_QB, S_WL, S_QB))
        a("s_mul_i32 s%d, s%d, 196608" % (S_KBN, S_PN))
        a("s_lshr_b32 s%d, s%d, 5" % (S_T, S_WL))
        a("s_add_u32 s%d, s%d, s%d" % (S_KBN, S_KBN, S_T))
        return L

    def stamp(g):
        if not g.o.stamps: return []
        k = g.nst; g.nst += 1
        return [raw("v_writelane_b32 v%d, s56, %d" % (T + 9, k)), raw("v_writelane_b32 v%d, s58, %d" % (T + 9, 32 + k)),
                raw("s_memtime s[56:57]", "smem"), raw("s_memrealtime s[58:59]", "smem")]
    def stamp_flush(g, row):
        L = g.stamp() + [raw("s_waitcnt lgkmcnt(0)", "waitall"),
             raw("v_writelane_b32 v%d, s56, 31" % (T + 9)), raw("v_writelane_b32 v%d, s58, 63" % (T + 9))]
        L += [raw("v_mbcnt_lo_u32_b32 v%d, -1, 0" % (T + 10)), raw("v_mbcnt_hi_u32_b32 v%d, -1, v%d" % (T + 10, T + 10)),
              raw("v_lshlrev_b32 v%d, 2, v%d" % (T + 10, T + 10))]
        L.append(salu("s_lshl_b32 s52, s2, 13"))
        L.append(salu("s_lshr_b32 s53, s%d, 1" % S_WL))
        L.append(salu("s_add_u32 s52, s52, s53"))
        if row is None:
            L.append(salu("s_lshl_b32 s53, s%d, 8" % S_R)); L.append(salu("s_add_u32 s52, s52, s53"))
        else:
            L.append(salu("s_add_u32 s52, s52, %d" % (row * 256)))
        L.append(raw("buffer_store_dword v%d, v%d, s[48:51], s52 offen" % (T + 9, T + 10), "salu"))
        g.nst = 0
        return L

    def body(g):
        o = g.o; LA = g.LA
        mfs = []; idx = {}; last = {}
        sums = {}
        for j in range(11):
            for b in range(4): sums[16 * (j + 1) + 4 * b + 5] = (j, b)
        s11 = {192 + o.s11 + 2 * b: (11, b) for b in range(4)}
        for G in range(384):
            for b in range(4):
                idx[(G, b)] = len(mfs); mfs.append(g.mf(G, b))
            for sm in (sums, s11):
                if G in sm: mfs.append(g.summf(*sm[G]))
            last[G] = len(mfs) - 1
        N = len(mfs)
        front = [[] for _ in range(N)]; gap = [[] for _ in range(N)]; end = [[] for _ in range(N)]
        VEC = ("valu", "trans", "perm", "nop")
        def flat(x): return x if isinstance(x, list) else [x]
        def isvec(x): return any(y.kind in VEC for y in flat(x))
        PRI = {"st": 1, "ds_r": 2, "dma": 3, "ds_w": 4}
        def order(F): return sorted(F, key=lambda y: PRI.get(y.kind, 0))
        def gtime(L):
            t = 4; floor = 16; prev = None
            for y in L:
                k = y.kind
                if k == "label" or (k == "wait" and y.tag == "free"): continue
                if k in ("valu", "perm"): t = max(t, 8) + 4
                elif k == "trans": t = max(t, 8) + 8
                elif k == "nop": t += 4 * (y.tag + 1)
                elif k in ("branch", "barrier"): t += 10
                elif k in PRI:
                    t = max(t, 8)
                    if prev in ("valu", "perm", "trans"): t += 8
                    if k == "ds_r": t += 16 if prev == "ds_w" else 4
                    elif k == "ds_w": t += 12
                    elif k == "dma": t += 10 if prev == "dma" else 16
                    else: floor = max(floor, t) + (o.stc if floor == 16 else 24); t += 4
                else: t += 4
                prev = k
            return max(floor, t)
        def now(i): return gtime(order(front[i]) + gap[i] + end[i])
        def incr(i, x):
            if isvec(x): return gtime(order(front[i]) + gap[i] + flat(x) + end[i]) - now(i)
            return gtime(order(front[i] + flat(x)) + gap[i] + end[i]) - now(i)
        def put(i, x): (gap if isvec(x) else front)[i].extend(flat(x))
        def putend(i, x): end[i].append(x)
        def cls(x): return 9 if isvec(x) else PRI.get(flat(x)[0].kind, 0) if flat(x)[0].tag != "free" else 1
        def place(L, g0, g1, lo=None, hi=None, win=3):
            lo = idx[(g0, 0)] if lo is None else lo
            hi = last[g1] if hi is None else hi
            tot = sum(cost(x) for x in L); acc = 0; prev = lo; pc = -1
            for n, x in enumerate(L):
                tgt = lo + int((acc + 0.5 * cost(x)) * (hi - lo + 1) / tot); acc += cost(x)
                need = sum(1 for p, q in zip(L[n:], L[n + 1:]) if cls(q) < cls(p))
                top = hi - need
                c0 = max(prev + (1 if cls(x) < pc else 0), min(tgt - win, top))
                c1 = max(c0, min(top, tgt + win))
                assert c0 <= hi, (flat(x)[0].text, g0, g1)
                best = min(range(c0, c1 + 1), key=lambda i: (incr(i, x), 1 if (cls(x) in (0, 2, 9) and not front[i] and not gap[i]) else 0, abs(i - tgt)))
                put(best, x); prev = best; pc = cls(x)
        bars = {}
        for s in range(12): bars[(16 * s - LA) % 384] = [("K", s)]
        for dc in range(4):
            C = 192 + 48 * dc
            bars[C - LA] = [("V", dc, 0)]
            bars[C - LA + 4] = [("V", dc, 1), ("V", dc, 2)]
        for G in range(384):
            if G % 4 == 2:
                put(idx[(G - 1, 3)], wait(l=("F", (G + 3) % 384), v=bars.get(G)))
                if G in bars:
                    put(last[G - 1], barrier())
        assert all(G % 4 == 2 for G in bars)
        for G in list(range(16, 192, 16)) + list(range(192, 384, 12)):
            end[last[G - 1]] += g.stamp()
        for G in range(384):
            f = (G + LA) % 384
            if f >= 192 and (f - 192) % 12 == 0:
                D = (f - 192) // 12
                put(idx[(G - 1, 2 if G <= 192 else 1)], valu("v_xor_b32", VA, lit(g.vconst(D) ^ g.vconst((D - 1) % 16)), VA))
            for k, x in enumerate(g.frag_reads(f)): put(idx[(G, k if o.rd2 == 0 or G < 192 else 0)], x)
        for u in range(2, 24):
            for k in range(8):
                G = 8 * u + k
                put(idx[(G, 0)], g.fma(u - 1, 2 * k))
                put(idx[(G, 1)], g.exp(u - 1, 2 * k))
                put(idx[(G, 2)], g.cvt(u - 1, k - 1) if k else g.cvt(u - 2, 7))
                put(idx[(G, 2)], g.fma(u - 1, 2 * k + 1))
                put(idx[(G, 3)], g.exp(u - 1, 2 * k + 1))
        put(idx[(192, 2)], g.cvt(22, 7))
        place(g.firstmax() + g.sm_stream(0, False), 8, 15, win=1)
        lo = idx[(192, 0)]
        for b in range(4):
            e = 4 * b
            st = [g.fma(23, e), g.fma(23, e + 1), g.exp(23, e), g.exp(23, e + 1), g.fma(23, e + 2), g.fma(23, e + 3),
                  g.exp(23, e + 2), g.exp(23, e + 3), g.cvt(23, 2 * b), g.cvt(23, 2 * b + 1)]
            hi = idx[(192 + o.s11 + 2 * b, 1)]
            if b < 3: hi = min(hi, lo + (idx[(192 + o.s11 + 6, 1)] - lo) // (4 - b))
            place(st, None, None, lo=lo, hi=hi, win=1)
            lo = hi + 1
        place(g.lfinal(), 192 + o.s11 + 7, 203, lo=idx[(192 + o.s11 + 7, 1)], win=1)
        putend(last[203], raw("s_cbranch_vccnz L_slow", "branch")); end[last[203]].append(label("L_back"))
        W = []
        W.append((g.dmaK(3, False), 0, 4)); W.append((g.dmaK(4, False), 5, 9))
        nq = len(o.qsteps)
        qs = dict(zip(o.qsteps, range(nq)))
        qslot = [6, 7, 8, 9, 6, 7, 6, 7]
        for s in range(1, 12):
            t = g.dmaK(s + 4, False) if s < 8 else (g.dmaV(0, s - 8) if s < 11 else g.dmaV(1, 0))
            if s in qs:
                W.append((t, 16 * s - 6, 16 * s + 1)); W.append((g.dmaQ(qs[s], qslot[qs[s]]), 16 * s + 2, 16 * s + 9))
            else:
                W.append((t, 16 * s - 6, 16 * s + 9))
        W.append((g.dmaV(1, 1), 186, 193)); W.append((g.dmaV(1, 2), 194, 205))
        qa, qb = (4, 5) if nq == 4 else (6, 7)
        W.append((g.dmaQ(qa, 6), o.q2a, (o.q2a + 233) // 2)); W.append((g.dmaQ(qb, 7), (o.q2a + 233) // 2 + 1, 233))
        for dc in range(1, 4):
            C = 192 + 48 * dc
            for kt in range(3):
                t = g.dmaV(dc + 1, kt) if dc < 3 else g.dmaK(kt, True)
                if dc == 3 and kt == 0: t = [salu("s_mov_b32 s%d, s%d" % (SK + 2, S_KNN))] + t
                W.append((t, C - 6 + o.vw * kt, C - 7 + o.vw * (kt + 1)))
            if dc == 2 and nq == 4:
                W.append((g.dmaQ(6, 6), C + 12, C + 21)); W.append((g.dmaQ(7, 7), C + 22, C + 31))
        for dc in range(3):
            G1 = 192 + 48 * (dc + 1)
            place(g.stores(S_OB + dc), G1 + 14, min(G1 + o.stw, 376), win=o.dwin)
        place(g.stores(S_OPREV) + [salu("s_mov_b32 s%d, %d" % (SO + 2, QBYTES))], o.st0, o.st1, win=o.dwin)
        for t, a, b in W: place(t, a, b, win=o.dwin)
        for D in range(16):
            G1 = (192 + 12 * (D + 1)) % 384
            if D == 0:
                x, y = (0, 1) if nq == 4 else (4, 5)
                place([wait(v=[("Q", nq - 1)])] + g.qreads(2, 8) + g.qreads(3, 9) + g.qreads(x, 6) + g.qreads(y, 7), G1, G1 + 3, win=1)
                place(g.epilogue(D), G1 + 4, G1 + 11, win=1)
            elif D == 15:
                place(g.epilogue(D), 0, 5, win=1)
                place(g.readback(), 6, 7, win=1)
            elif D & 3 == 3:
                place(g.epilogue(D), G1, G1 + 7)
                place(g.readback(), G1 + 8, G1 + 11)
            else:
                place(g.epilogue(D), G1, G1 + 11)
        if nq == 4:
            place([wait(v=[("Q", 5)])] + g.qreads(4, 6) + g.qreads(5, 7), 288 + 2, 288 + 7)
        else:
            G1 = 16 * o.qsteps[4] + 2
            place([wait(v=[("Q", 1)])] + g.qreads(0, 6, spare=True) + g.qreads(1, 7, spare=True), G1 - 30, G1 - 8, win=8)
            place(g.qmoves(0) + g.qmoves(1), 252, 287, win=4)
        place([wait(v=[("Q", 7)])] + g.qreads(6, 6) + g.qreads(7, 7), 336 + 16, 336 + 37)
        if o.warm:
            hops = list(range(o.warm // 2, 384, o.warm))
            for k, G in enumerate(hops):
                place([[label("L_hop%d" % k), raw("s_cbranch_execz %s" % ("L_hop%d" % (k + 1) if k + 1 < len(hops) else "L_hopend"), "branch")]], G, G, win=4)
        upd = [salu("s_mov_b32 s%d, s%d" % (S_OPREV, S_OB + 3)),
               salu("s_add_u32 s%d, s%d, 32" % (S_G, S_G)),
               salu("s_add_u32 s%d, s%d, 1" % (S_R, S_R))] + g.item_vars()
        place(upd, 336 + 41, 383, hi=idx[(383, 1)])
        put(idx[(383, 2)], salu("s_cmp_lt_u32 s%d, 3" % S_R))
        out = [label("L_item")]
        for i in range(N):
            out.append(mfs[i]); out += order(front[i]) + gap[i] + end[i]
        if o.stamps:
            out += g.stamp_flush(None) + [salu("s_cmp_lt_u32 s%d, 3" % S_R)]
        out.append(raw("s_cbranch_scc1 L_item", "branch"))
        print("gaps %d, est cycles phase 1 %d, phase 2 %d" % (N, sum(now(i) for i in range(idx[(192, 0)])), sum(now(i) for i in range(idx[(192, 0)], N))), file=sys.stderr)
        return out

    def prologue(g):
        o = g.o
        L = []
        a = lambda t: L.append(salu(t))
        v = lambda *x, **k: L.append(valu(*x, **k))
        a("s_cmp_ge_u32 s2, 256")
        L.append(raw("s_cbranch_scc1 L_end", "branch"))
        L.append(raw("s_load_dwordx4 s[4:7], s[0:1], 0", "smem"))
        L.append(raw("s_load_dwordx4 s[12:15], s[0:1], 16", "smem"))
        if o.stamps:
            L.append(raw("s_load_dwordx2 s[48:49], s[0:1], 40", "smem"))
            L.append(raw("s_memtime s[56:57]", "smem")); L.append(raw("s_memrealtime s[58:59]", "smem"))
        t = [T + i for i in range(8)]
        lane, w = t[0], t[1]
        v("v_lshrrev_b32", w, "6", 0)
        v("v_and_b32", lane, "63", 0)
        L.append(I("v_readfirstlane_b32 s%d, v%d" % (S_W, w), "rfl", rd=[w]))
        a("s_and_b32 s%d, s2, 7" % S_T)
        a("s_mul_i32 s%d, s%d, 96" % (S_T, S_T))
        a("s_lshr_b32 s%d, s2, 3" % S_G)
        a("s_add_u32 s%d, s%d, s%d" % (S_G, S_G, S_T))
        a("s_mul_hi_u32 s%d, s%d, 0x55555556" % (S_PN, S_G))
        a("s_mov_b32 s%d, 0" % S_R)
        a("s_lshl_b32 s%d, s%d, 12" % (S_WL, S_W))
        v("v_lshrrev_b32", t[2], "3", lane)
        v("v_and_b32", t[3], "7", lane)
        v("v_xor_b32", t[3], t[3], t[2])
        v("v_lshlrev_b32", t[3], "4", t[3])
        v("v_lshl_add_u32", VOFF, t[2], "9", t[3])
        for p in range(1, 4): v("v_add_u32", VOFF + p, lit(3072 * p), VOFF)
        if o.cpre:
            a("s_getpc_b64 s[52:53]")
            v("v_lshlrev_b32", 2, "7", 0)
            v("v_mov_b32", 3, "s53")
            L.append(I("v_add_co_u32 v2, vcc, s52, v2", "valu", rd=[2], wr=[2]))
            L.append(nop(1))
            L.append(I("v_addc_co_u32 v3, vcc, 0, v3, vcc", "valu", rd=[3], wr=[3]))
            L.append(I("global_load_dword v8, v[2:3], off", "ld", rd=[2, 3]))
        iv = []
        for x in g.item_vars(): iv.extend(x if isinstance(x, list) else [x])
        cut = [i for i, x in enumerate(iv) if x.text.startswith("s_cmp_lt_u32")][0]
        L += iv[:cut]
        L.append(raw("s_waitcnt lgkmcnt(0)", "waitall"))
        a("s_mov_b32 s8, s6"); a("s_mov_b32 s9, s7")
        a("s_mov_b32 s7, 0x20000"); a("s_mov_b32 s11, 0x20000"); a("s_mov_b32 s10, %d" % KBYTES)
        a("s_mov_b32 s6, %d" % QBYTES)
        L += g.dmaK(0, False)
        for j in range(8): L += g.dmaQ(j, j + 2, base=S_T2)
        L += g.dmaK(1, False)
        a("s_mov_b32 s16, s14"); a("s_mov_b32 s17, s15")
        a("s_mov_b32 s15, 0x20000"); a("s_mov_b32 s19, 0x20000")
        a("s_mov_b32 s14, %d" % KBYTES); a("s_mov_b32 s18, 0")
        if o.stamps: a("s_mov_b32 s50, 0x1000000"); a("s_mov_b32 s51, 0x20000")
        L += iv[cut:]
        a("s_mov_b32 s%d, s%d" % (S_OPREV, S_OB + 3))
        c = math.log2(math.e) / 16.0
        a("s_mov_b32 s%d, %s" % (S_C, f2h(c)))
        a("s_mov_b32 s%d, %s" % (S_NC, f2h(-c)))
        a("s_mov_b32 s%d, %s" % (S_TH, f2h(2.0 ** o.thr)))
        n16, g4 = t[2], t[3]
        v("v_and_b32", n16, "15", lane)
        v("v_lshrrev_b32", g4, "4", lane)
        v("v_and_b32", t[4], "7", lane)
        v("v_xor_b32", t[5], g4, t[4])
        v("v_lshlrev_b32", t[5], "4", t[5])
        v("v_lshl_add_u32", KA[0], n16, "7", t[5])
        v("v_xor_b32", KA[0] + 1, "64", KA[0])
        for x in range(2):
            v("v_add_u32", KA[1] + x, "0xc000", KA[0] + x)
            v("v_add_u32", 4 + x, "s%d" % S_WL, KA[0] + x)
            v("v_add_u32", QA + x, lit(6 * SLOT), 4 + x)
            v("v_add_u32", 4 + x, lit(2 * SLOT), 4 + x)
        v("v_lshrrev_b32", t[5], "1", g4)
        v("v_xor_b32", t[5], t[5], t[4])
        v("v_lshlrev_b32", t[5], "4", t[5])
        v("v_lshl_add_u32", t[5], n16, "7", t[5])
        v("v_and_b32", t[6], "1", g4)
        v("v_lshl_add_u32", t[5], t[6], "3", t[5])
        v("v_xor_b32", t[5], "64", t[5])
        a("s_add_u32 s%d, s%d, %s" % (S_T, S_WL, lit(8 * SLOT)))
        v("v_add_u32", OLW, "s%d" % S_T, t[5])
        v("v_lshlrev_b32", t[5], "4", lane)
        v("v_add_u32", OLR, "s%d" % S_T, t[5])
        v("v_lshrrev_b32", t[5], "2", lane)
        v("v_and_b32", t[6], "7", t[5])
        v("v_bfe_u32", t[7], lane, "1", "1")
        v("v_xor_b32", t[6], t[6], t[7])
        v("v_lshlrev_b32", t[6], "4", t[6])
        v("v_lshl_add_u32", t[6], t[5], "7", t[6])
        v("v_and_b32", t[7], "1", lane)
        v("v_lshl_add_u32", t[6], t[7], "3", t[6])
        v("v_xor_b32", VA, lit(g.vconst(15)), t[6])
        v("v_and_b32", t[5], "3", lane)
        v("v_mov_b32", t[6], "0x3f803f80")
        L.append(I("v_cmp_eq_u32 vcc, 0, v%d" % t[5], "valu", rd=[t[5]]))
        for b in range(4): v("v_mov_b32", RINV + b, "0")
        L.append(I("v_cndmask_b32 v%d, 0, v%d, vcc" % (t[6], t[6]), "valu", rd=[t[6]], wr=[t[6]]))
        for r in range(4): v("v_accvgpr_write_b32", ONES + r, t[6])
        if o.warm:
            L += [salu("s_mov_b64 exec, 0"), raw("s_branch L_hop0", "branch"), label("L_hopend"), salu("s_mov_b64 exec, -1")]
        L.append(wait(v=[("Q", 0)]))
        L += g.qreads(0, 2, qa=4, slot0=2)
        L.append(wait(l=("QR", 0)))
        L += g.dmaK(2, False)
        for j in range(1, 8):
            L.append(wait(v=[("Q", j)]))
            L += g.qreads(j, j + 2, qa=4, slot0=2) if j < 4 else g.qreads(j, j + 2)
        L.append(barrier())
        for f in range(g.LA): L += g.frag_reads(f)
        if o.stamps: L += g.stamp_flush(0)
        L.append(wait(l=("F", 1)))
        return L

    def tail(g):
        L = [nop(7)]
        L += g.epilogue(15) + g.readback()
        for x in g.stores(S_OPREV): L += x
        if g.o.stamps:
            L.append(raw("s_waitcnt vmcnt(0)", "salu"))
            L += g.stamp_flush(4)
        L += [label("L_end"), raw("s_endpgm")]
        return L

    def slow(g):
        L = [label("L_slow"), nop(7)]
        ko = T + 5
        L += [I("v_mbcnt_lo_u32_b32 v%d, -1, 0" % ko, "valu", wr=[ko]), I("v_mbcnt_hi_u32_b32 v%d, -1, v%d" % (ko, ko), "valu", rd=[ko], wr=[ko]),
              valu("v_lshrrev_b32", T + 6, "4", ko), valu("v_and_b32", ko, "15", ko), valu("v_lshlrev_b32", ko, "9", ko),
              valu("v_lshl_add_u32", ko, T + 6, "4", ko)]
        def stile():
            X = []
            for ks in range(8):
                X.append(I("buffer_load_dwordx4 %s, %s, %s, s%d offen offset:%d" % (rn(RB + 4 * ks, 4), rn(ko), srd(SK), S_T, 64 * ks), "ld", rd=[ko]))
            X.append(salu("s_add_u32 s%d, s%d, 0x2000" % (S_T, S_T)))
            X.append(raw("s_waitcnt vmcnt(0)", "salu"))
            for ks in range(8):
                for b in range(4): X.append(mfma(ACC[1] + 4 * b, RB + 4 * ks, Q0 + (b * 8 + ks) * 4, ks == 0))
            X.append(nop(7))
            return X
        for b in range(4): L.append(valu("v_mov_b32", NEGM + b, "0xff800000"))
        L += [salu("s_mov_b32 s%d, s%d" % (S_T, S_KVC)), salu("s_mov_b32 s%d, 0" % S_U), label("L_slowA")]
        L += stile()
        for b in range(4):
            a = ACC[1] + 4 * b
            L += [valu("v_max3_f32", NEGM + b, NEGM + b, a, a + 1), valu("v_max3_f32", NEGM + b, NEGM + b, a + 2, a + 3)]
        L += [salu("s_add_u32 s%d, s%d, 1" % (S_U, S_U)), salu("s_cmp_lt_u32 s%d, 24" % S_U), raw("s_cbranch_scc1 L_slowA", "branch")]
        L += g.xreduce(True)
        for r in range(16): L.append(valu("v_accvgpr_write_b32", LACC + r, "0"))
        L += [salu("s_mov_b32 s%d, s%d" % (S_T, S_KVC)), salu("s_mov_b32 s%d, 0" % S_U), label("L_slowB")]
        for i in range(176): L.append(valu("v_mov_b32", P0 + i, P0 + i + 16))
        for half in range(2):
            L += stile()
            for e in range(16): L.append(g.fma(1, e))
            for e in range(16): L.append(g.exp(1, e))
            for k in range(8):
                a = ACC[1] + 2 * k
                L.append(valu("v_cvt_pk_bf16_f32", P0 + (44 + (k >> 1)) * 4 + 2 * half + (k & 1), a, a + 1))
        L.append(nop(1))
        for b in range(4): L.append(mfma(LACC + 4 * b, ONES, P0 + (44 + b) * 4, False))
        L += [salu("s_add_u32 s%d, s%d, 1" % (S_U, S_U)), salu("s_cmp_lt_u32 s%d, 12" % S_U), raw("s_cbranch_scc1 L_slowB", "branch")]
        L.append(nop(7))
        for b in range(4): L.append(valu("v_accvgpr_read_b32", T + b, LACC + 4 * b))
        for b in range(4): L.append(trans("v_rcp_f32", RINV + b, T + b))
        L.append(valu("v_xor_b32", ko, lit(g.vconst(0) ^ g.vconst(1)), VA))
        for j0 in (0, 6):
            for j in range(j0, j0 + 6):
                L += [dsrtr(RB + 4 * (j - j0), ko, j * 4096), dsrtr(RB + 4 * (j - j0) + 2, ko, j * 4096 + 2048)]
            L.append(raw("s_waitcnt lgkmcnt(0)", "waitall"))
            for j in range(j0, j0 + 6):
                for b in range(4): L.append(mfma(ACC[0] + 4 * b, RB + 4 * (j - j0), P0 + (j * 4 + b) * 4, j == 0))
        L += [nop(7), raw("s_branch L_back", "branch")]
        return L

LK = ("ds_r", "ds_w"); VK = ("dma", "st", "ld")
def find(q, tag):
    for k in range(len(q) - 1, -1, -1):
        if q[k].tag == tag: return k
    raise KeyError(tag)

def resolve(path):
    lv = {}; vv = {}
    lq = []; vq = []
    for x in path:
        if x.kind in LK: lq.append(x)
        elif x.kind in VK: vq.append(x)
        elif x.kind == "wait":
            if x.need is not None:
                lv[id(x)] = min(lv.get(id(x), 15), len(lq) - 1 - find(lq, x.need))
            for t in (x.vneed or []):
                vv[id(x)] = min(vv.get(id(x), 63), len(vq) - 1 - find(vq, t))
    for x in path:
        if x.kind == "wait": x.site = lv.get(id(x)); x.vsite = vv.get(id(x))
    need_l = set(); need_v = set()
    lq = []; vq = []; ld = 0; vd = 0
    for x in path:
        if x.kind in LK: lq.append(x)
        elif x.kind in VK: vq.append(x)
        elif x.kind == "waitall": ld = len(lq)
        elif x.kind == "wait":
            if x.need is not None and find(lq, x.need) >= ld:
                need_l.add(id(x)); ld = max(ld, len(lq) - x.site)
            if x.vneed and max(find(vq, t) for t in x.vneed) >= vd:
                need_v.add(id(x)); vd = max(vd, len(vq) - x.vsite)
    for x in path:
        if x.kind == "wait":
            if id(x) not in need_l: x.site = None
            if id(x) not in need_v: x.vsite = None
            parts = (["vmcnt(%d)" % x.vsite] if x.vsite is not None else []) + (["lgkmcnt(%d)" % x.site] if x.site is not None else [])
            x.drop = not parts
            x.text = "s_waitcnt " + " ".join(parts)

def check(path, strict):
    t = 0; last_mfma = -99; m0_t = -99
    lq = []; ld = 0; vq = []; vd = 0
    wr_mfma = {}; wr_valu = {}; wr_trans = {}; rdC = {}; st_data = {}
    slot_tile = {}
    vd_bar = 0; ld_bar = 0
    errs = [0]
    def err(msg, x):
        errs[0] += 1
        if errs[0] < 30: print("HAZARD:", msg, "|", x.text, file=sys.stderr)
    for x in path:
        if x.kind == "label" or x.drop: continue
        if x.kind == "mfma" and not strict: t = max(t, last_mfma + 4)
        touched = x.rd | x.wr | x.C
        for p in lq[ld:]:
            if p.kind == "ds_r" and (p.wr & touched): err("unwaited ds_read %s" % p.text, x)
        isv = x.kind in ("valu", "trans", "perm", "rfl")
        for r in touched:
            if r in wr_mfma:
                tt, full = wr_mfma[r]
                if x.kind == "mfma" and r not in x.rd and x.wr == full: continue
                if t - tt - 1 < 8: err("mfma D -> use after %d states (%s)" % (t - tt - 1, rn(r)), x)
        if x.kind in ("mfma", "perm"):
            for r in (x.rd | x.C):
                if r in wr_valu and t - wr_valu[r] - 1 < 2: err("valu -> %s" % x.kind, x)
        if x.kind == "rfl":
            for r in x.rd:
                if r in wr_valu and t - wr_valu[r] - 1 < 1: err("valu -> readfirstlane", x)
        if isv and x.kind != "trans":
            for r in x.rd:
                if r in wr_trans and t - wr_trans[r] - 1 < 1: err("trans -> valu", x)
        if isv:
            for r in x.wr:
                if r in rdC and t - rdC[r] - 1 < 3: err("mfma C WAR", x)
        for r in x.wr:
            if r in st_data and t - st_data[r] - 1 < 2: err("store data WAR", x)
        if x.kind == "dma" and t - m0_t - 1 < 1: err("m0 -> dma", x)
        if x.kind == "dma":
            slot, tag = x.reg
            for k, p in enumerate(lq):
                if p.reg and p.reg[0] == slot:
                    lim = ld_bar if (p.kind == "ds_r" and p.reg[2] == "shared") else ld
                    if k >= lim: err("dma into slot %d before %s is known done" % (slot, p.text), x); break
            slot_tile[slot] = (tag, len(vq))
        if x.kind == "ds_r" and x.reg:
            slot, tag, mode = x.reg
            cur = slot_tile.get(slot)
            if tag == "O":
                if cur and cur[0] != "O": err("read-back of slot %d holding %s" % (slot, cur[0]), x)
            elif not cur or cur[0] != tag: err("slot %d holds %s, wanted %s" % (slot, cur, tag), x)
            elif cur[1] >= (vd_bar if mode == "shared" else vd): err("tile %s not known landed" % (tag,), x)
        if x.kind == "ds_w" and x.reg:
            slot = x.reg[0]
            cur = slot_tile.get(slot)
            if cur and cur[0] != "O":
                if cur[1] >= vd: err("staging write with a dma in flight", x)
                n = sum(1 for p in lq if p.reg and p.kind == "ds_r" and p.reg[:2] == (slot, cur[0]))
                if n % 4 or not n: err("staging write before Q reads", x)
            slot_tile[slot] = ("O", -1)
        if x.kind == "salu_m0": m0_t = t
        if x.kind == "mfma":
            last_mfma = t
            for r in x.wr: wr_mfma[r] = (t, x.wr); wr_valu.pop(r, None)
            for r in x.C: rdC[r] = t
        if isv:
            for r in x.wr:
                wr_valu[r] = t; wr_mfma.pop(r, None)
                if x.kind == "trans": wr_trans[r] = t
                else: wr_trans.pop(r, None)
        if x.kind == "st":
            for r in x.rd: st_data[r] = t
        if x.kind in LK: lq.append(x)
        if x.kind in VK: vq.append(x)
        if x.kind == "waitall": ld = len(lq)
        if x.kind == "wait":
            if x.site is not None: ld = max(ld, len(lq) - x.site)
            if x.vsite is not None: vd = max(vd, len(vq) - x.vsite)
        if x.kind == "barrier": vd_bar = vd; ld_bar = ld
        t += (x.tag + 1) if x.kind == "nop" else 1
    return errs[0]

HEADER = """; GQA attention forward, B=32 Hq=16 Hkv=8 Sq=Sk=384 D=256, bf16 in/out (emitted by my generator script).
; One persistent 4-wave workgroup per CU, three items of 256 query rows (64 per wave), K/V/Q staged by LDS-DMA.
; Per item: S^T = K Q^T in 16-key units, P = exp2(c*S - c*m) kept in registers as bf16, row sums by MFMA,
; then O^T = V^T P^T per 16-column tile.  m is the row max over the first 16 keys (never above the true max);
; @launch grid=(256,1,1) block=(256,1,1) lds=163840
.amdgcn_target "amdgcn-amd-amdhsa--gfx950"
.text
.globl {n}_kernel
.p2align 8
.type {n}_kernel,@function
{n}_kernel:
"""
FOOTER = """.section .rodata,"a"
.p2align 6
.amdhsa_kernel {n}_kernel
  .amdhsa_next_free_vgpr 512
  .amdhsa_next_free_sgpr 102
  .amdhsa_accum_offset 256
  .amdhsa_group_segment_fixed_size 0
  .amdhsa_kernarg_size 48
  .amdhsa_user_sgpr_count 2
  .amdhsa_user_sgpr_kernarg_segment_ptr 1
  .amdhsa_system_sgpr_workgroup_id_x 1
.end_amdhsa_kernel
"""

def main():
    ap = argparse.ArgumentParser()
    ap.add_argument("-o", dest="out", default="cdna_kernels/%s.s" % NAME)
    ap.add_argument("--thr", type=float, default=30.0)
    ap.add_argument("--qflag", default="")
    ap.add_argument("--kvflag", default="")
    ap.add_argument("--oflag", default="")
    ap.add_argument("--rot", type=int, default=1)
    ap.add_argument("--s11", type=int, default=3)
    ap.add_argument("--st0", type=int, default=16)
    ap.add_argument("--st1", type=int, default=40)
    ap.add_argument("--qsteps", type=lambda s: [int(x) for x in s.split(",")], default=[3, 5, 7, 9])
    ap.add_argument("--stamps", type=int, default=0)
    ap.add_argument("--strict", type=int, default=1)
    ap.add_argument("--align", type=int, default=0)
    ap.add_argument("--drop", default="")
    ap.add_argument("--dbgst", type=int, default=-1)
    ap.add_argument("--cpre", type=int, default=0)
    ap.add_argument("--warm", type=int, default=0)
    ap.add_argument("--q2a", type=int, default=214)
    ap.add_argument("--vw", type=int, default=6)
    ap.add_argument("--stw", type=int, default=40)
    ap.add_argument("--dwin", type=int, default=3)
    ap.add_argument("--cw", type=int, default=1)
    ap.add_argument("--stc", type=int, default=21)
    ap.add_argument("--rd2", type=int, default=0)
    ap.add_argument("--cv", type=int, default=1)
    o = ap.parse_args()
    COST.update({"ds_w": o.cw, "dma": 8, "st": 8})
    g = Gen(o)
    body = g.body()
    pro, tail, slow = g.prologue(), g.tail(), g.slow()
    path = pro + body + body + tail
    resolve(path)
    errs = check(path, o.strict) + check(slow, o.strict)
    if errs: print("%d hazard findings" % errs, file=sys.stderr)
    drop = set(o.drop.split(",")) if o.drop else set()
    body = [x for x in body if x.kind not in drop]
    if "valu" in drop: body = [x for x in body if "vccnz" not in (x.text or "")]
    if o.dbgst >= 0:
        pro[2:2] = [raw("s_memrealtime s[60:61]"), raw("s_memtime s[80:81]"), raw("s_load_dwordx2 s[48:49], s[0:1], 32")]
        pro[len(pro) - 1:len(pro) - 1] = [raw("s_memrealtime s[62:63]"), raw("s_memtime s[82:83]"), raw("s_mov_b32 s50, 256"), raw("s_mov_b32 s51, 0x20000")]
        e = len(body) - 1
        body[e:e] = [raw("s_mov_b64 s[64:65], s[66:67]"), raw("s_mov_b64 s[66:67], s[68:69]"), raw("s_memrealtime s[68:69]"),
                     raw("s_mov_b64 s[84:85], s[86:87]"), raw("s_mov_b64 s[86:87], s[88:89]"), raw("s_memtime s[88:89]")]
        e = len(tail) - 2
        x = ["s_waitcnt vmcnt(0)", "s_memrealtime s[70:71]", "s_memtime s[90:91]", "s_waitcnt lgkmcnt(0)",
             "s_cmp_lg_u32 s2, %d" % o.dbgst, "s_cbranch_scc1 L_end", "s_cmp_lg_u32 s20, 0", "s_cbranch_scc1 L_end"]
        for k in range(5):
            x += ["s_sub_u32 s74, s%d, s%d" % (62 + 2 * k, 60 + 2 * k), "v_mov_b32 v0, s74", "buffer_store_dword v0, off, s[48:51], 0 offset:%d" % (4 * k), "s_nop 1"]
            x += ["s_sub_u32 s74, s%d, s%d" % (82 + 2 * k, 80 + 2 * k), "v_mov_b32 v0, s74", "buffer_store_dword v0, off, s[48:51], 0 offset:%d" % (32 + 4 * k), "s_nop 1"]
        tail[e:e] = [raw(y) for y in x]
    txt = HEADER.format(n=NAME)
    al = [raw(".p2align %d" % o.align, "label")] if o.align else []
    for x in pro + al + body + tail + slow:
        if x.drop: continue
        txt += ("" if x.kind == "label" else "    ") + x.text + "\n"
    txt += FOOTER.format(n=NAME)
    open(o.out, "w").write(txt)
    print(dict(Counter(x.kind for x in body if not x.drop)), file=sys.stderr)
    return 1 if errs else 0

if __name__ == "__main__":
    sys.exit(main())
```

```python
import sys, struct, math, argparse
from collections import Counter

NAME = "standalone__gqa_softmax__near_ridge"
def f2h(x): return "0x%08x" % struct.unpack("<I", struct.pack("<f", x))[0]

class I:
    __slots__ = ("text", "kind", "rd", "wr", "tag", "need", "site", "C", "reg", "drop", "vneed", "vsite")
    def __init__(s, text, kind, rd=(), wr=(), tag=None, need=None, C=(), reg=None, vneed=None):
        s.text = text; s.kind = kind; s.rd = frozenset(rd); s.wr = frozenset(wr)
        s.tag = tag; s.need = need; s.site = None; s.C = frozenset(C); s.reg = reg; s.drop = False
        s.vneed = vneed; s.vsite = None

A = 256
def R(a, n=1): return list(range(a, a + n))
def rn(a, n=1):
    p, i = ("a", a - A) if a >= A else ("v", a)
    return "%s%d" % (p, i) if n == 1 else "%s[%d:%d]" % (p, i, i + n - 1)
def lit(x): return str(x) if -16 <= x <= 64 else "0x%x" % x

def valu(op, d, *src, kind="valu"):
    rd = [x for x in src if isinstance(x, int)]
    return I("%s %s, %s" % (op, rn(d), ", ".join(rn(x) if isinstance(x, int) else x for x in src)), kind, rd=rd, wr=[d])
def trans(op, d, s): return valu(op, d, s, kind="trans")
def perm(n, a, b): return I("v_permlane%d_swap_b32 %s, %s" % (n, rn(a), rn(b)), "perm", rd=[a, b], wr=[a, b])
def salu(t, m0=False): return I(t, "salu_m0" if m0 else "salu")
def mfma(d, a, b, first):
    return I("v_mfma_f32_16x16x32_bf16 %s, %s, %s, %s" % (rn(d, 4), rn(a, 4), rn(b, 4), "0" if first else rn(d, 4)), "mfma",
             rd=R(a, 4) + R(b, 4), wr=R(d, 4), C=() if first else R(d, 4))
def dsr128(d, a, off, tag=None, reg=None):
    return I("ds_read_b128 %s, %s offset:%d" % (rn(d, 4), rn(a), off), "ds_r", rd=[a], wr=R(d, 4), tag=tag, reg=reg)
def dsrtr(d, a, off, tag=None, reg=None):
    return I("ds_read_b64_tr_b16 %s, %s offset:%d" % (rn(d, 2), rn(a), off), "ds_r", rd=[a], wr=R(d, 2), tag=tag, reg=reg)
def dsw64(a, s, off, reg=None):
    return I("ds_write_b64 %s, %s offset:%d" % (rn(a), rn(s, 2), off), "ds_w", rd=[a] + R(s, 2), reg=reg)
def wait(l=None, v=None): return I(None, "wait", need=l, vneed=v)
def raw(t, kind="salu"): return I(t, kind)
def label(n): return I(n + ":", "label")
def nop(n): return I("s_nop %d" % n, "nop", tag=n)
def barrier(): return I("s_barrier", "barrier")

P0 = 0
ACC = [192, 208]
KA = [224, 226]; QA = 228; VA = 230; VOFF = 231; OLW = 235; OLR = 236
NEGM = 237; RINV = 241; T = 245
Q0 = A + 0; FR0 = A + 128; QS = A + 160; LACC = A + 192; ONES = A + 208; RB = A + 212

SQ = 4; SK = 8; SV = 12; SO = 16
S_W = 20; S_C = 21; S_TH = 22; S_WL = 23; S_NC = 24; S_R = 25; S_G = 26
S_KVC = 27; S_KB = 28; S_KBN = 29; S_QB = 30; S_PN = 31; S_KNN = 32; S_OPREV = 33
S_SO = 34; S_SO2 = 35; S_T = 36; S_T2 = 37; S_T3 = 38; S_U = 39
S_VB = 40; S_OB = 44
S_DBG = 48; S_ST = 56

QBYTES = 32 * 16 * 384 * 256 * 2
KBYTES = 32 * 8 * 384 * 256 * 2
SLOT = 16384
def srd(s): return "s[%d:%d]" % (s, s + 3)
COST = {"trans": 2, "label": 0}
DUR = {"trans": 8, "label": 0, "ds_w": 16, "dma": 20, "st": 24}
def dur(x):
    if x.kind == "wait" and x.tag == "free": return 0
    if x.kind == "nop": return 4 * (x.tag + 1)
    return DUR.get(x.kind, 4)
def cost(x):
    if isinstance(x, list): return sum(cost(y) for y in x)
    if x.kind == "wait" and x.tag == "free": return 0
    return COST.get(x.kind, 1)

class Gen:
    def __init__(g, o):
        g.o = o; g.LA = 6; g.NF = 8
        g.nst = 0

    def dma(g, typ, slot, base, add, tag):
        o = g.o
        s = {"K": SK, "Q": SQ, "V": SV}[typ]
        fl = o.qflag if typ == "Q" else o.kvflag
        fl = " " + fl if fl else ""
        L = [salu("s_add_u32 m0, s%d, %s" % (S_WL, lit(slot * SLOT)), m0=True),
             salu("s_add_u32 s%d, s%d, %s" % (S_SO, base, lit(add)))]
        for p in range(4):
            L.append(I("buffer_load_dwordx4 %s, %s, s%d offen%s%s lds" % (rn(VOFF + p), srd(s), S_SO, " offset:%d" % (1024 * p) if p else "", fl),
                       "dma", rd=[VOFF + p], tag=tag if p == 3 else None, reg=(slot, tag)))
        return L
    def dmaK(g, c, nxt): return g.dma("K", c % 6, S_KBN if nxt else S_KB, c * SLOT, ("K", c))
    def dmaV(g, dc, kt): return g.dma("V", 3 * (dc & 1) + kt, S_VB + dc, kt * 65536, ("V", dc, kt))
    def dmaQ(g, j, slot, base=S_QB): return g.dma("Q", slot, base, (j >> 2) * 16384 + (j & 3) * 128, ("Q", j))
    def qreg(g, j, bb, x): return Q0 + ((2 * (j >> 2) + bb) * 8 + 2 * (j & 3) + x) * 4
    def qmoves(g, j):
        return [valu("v_accvgpr_mov_b32", g.qreg(j, bb, x) + r, QS + 16 * j + 8 * bb + 4 * x + r)
                for bb in range(2) for x in range(2) for r in range(4)]
    def qreads(g, j, slot, qa=QA, slot0=6, spare=False):
        L = []
        for bb in range(2):
            for x in range(2):
                d = QS + 16 * j + 8 * bb + 4 * x if spare else g.qreg(j, bb, x)
                L.append(dsr128(d, qa + x, (slot - slot0) * SLOT + bb * 2048, tag=("QR", j), reg=(slot, ("Q", j), "priv")))
        return L

    def frag(g, f): return FR0 + 4 * (f % g.NF)
    def frag_reads(g, f):
        d = g.frag(f)
        if f < 192:
            u, ks = divmod(f, 8); c = u >> 1
            return [dsr128(d, KA[(c % 6) // 3] + (ks & 1), (c % 3) * SLOT + (ks >> 1) * 4096 + (u & 1) * 2048,
                           tag=("F", f), reg=(c % 6, ("K", c), "shared"))]
        D, j = divmod(f - 192, 12); dc = D >> 2
        reg = (3 * (dc & 1) + (j >> 2), ("V", dc, j >> 2), "shared")
        return [dsrtr(d, VA, j * 4096, reg=reg), dsrtr(d + 2, VA, j * 4096 + 2048, tag=("F", f), reg=reg)]
    @staticmethod
    def vconst(D): return ((D & 3) << 5) ^ (((D >> 2) & 1) * 0xC000)

    def mf(g, G, b):
        if G < 192:
            u, ks = divmod(G, 8)
            return mfma(ACC[u & 1] + 4 * b, g.frag(G), Q0 + (b * 8 + ks) * 4, ks == 0)
        D, j = divmod(G - 192, 12)
        return mfma(ACC[D & 1] + 4 * b, g.frag(G), P0 + (j * 4 + b) * 4, j == 0)
    def summf(g, j, b): return mfma(LACC + 4 * b, ONES, P0 + (j * 4 + b) * 4, j == 0)

    def fma(g, u, e): a = ACC[u & 1] + e; return valu("v_fma_f32", a, a, "s%d" % S_C, NEGM + (e >> 2))
    def exp(g, u, e): a = ACC[u & 1] + e; return trans("v_exp_f32", a, a)
    def cvt(g, u, k):
        a = ACC[u & 1] + 2 * k
        return valu("v_cvt_pk_bf16_f32", P0 + ((u >> 1) * 4 + (k >> 1)) * 4 + 2 * (u & 1) + (k & 1), a, a + 1)
    def xreduce(g, pad):
        m = [NEGM + b for b in range(4)]
        n = (lambda: [nop(1)]) if pad else (lambda: [])
        L = n() + [perm(32, m[0], m[2]), perm(32, m[1], m[3]),
             valu("v_max_f32", m[0], m[0], m[2]), valu("v_max_f32", m[1], m[1], m[3])] + [nop(1)] + \
            [perm(16, m[0], m[1]), valu("v_max_f32", m[0], m[0], m[1]),
             valu("v_mul_f32", m[0], "s%d" % S_NC, m[0]), valu("v_mov_b32", m[1], m[0])] + [nop(1)] + \
            [perm(16, m[0], m[1]), valu("v_mov_b32", m[2], m[0]), valu("v_mov_b32", m[3], m[1])] + [nop(0)] + \
            [perm(32, m[0], m[2])] + [perm(32, m[1], m[3])]
        return L
    def firstmax(g):
        L = []
        for b in range(4):
            a = ACC[0] + 4 * b
            L += [valu("v_max3_f32", NEGM + b, a, a + 1, a + 2), valu("v_max_f32", NEGM + b, NEGM + b, a + 3)]
        return L + g.xreduce(True)
    def sm_stream(g, u, last_cvt):
        L = []
        for k in range(8):
            L += [g.fma(u, 2 * k), g.fma(u, 2 * k + 1), g.exp(u, 2 * k)]
            if k: L.append(g.cvt(u, k - 1))
            L.append(g.exp(u, 2 * k + 1))
        if last_cvt: L += [g.cvt(u, 7)]
        return L
    def lfinal(g):
        L = []
        for b in range(4): L.append(valu("v_accvgpr_read_b32", T + b, LACC + 4 * b))
        L.append(valu("v_max3_f32", T + 4, T, T + 1, T + 2))
        L.append(trans("v_rcp_f32", RINV, T))
        L.append(valu("v_max_f32", T + 4, T + 4, T + 3))
        L.append(trans("v_rcp_f32", RINV + 1, T + 1))
        L.append(I("v_cmp_lt_f32 vcc, s%d, %s" % (S_TH, rn(T + 4)), "valu", rd=[T + 4]))
        L.append(trans("v_rcp_f32", RINV + 2, T + 2))
        L.append(trans("v_rcp_f32", RINV + 3, T + 3))
        return L

    def epilogue(g, D):
        t = D & 3
        L = [valu("v_xor_b32", OLW, lit((t ^ ((t - 1) & 3)) << 5), OLW)]
        for b in range(4):
            a = ACC[D & 1] + 4 * b
            for r in range(4): L.append(valu("v_mul_f32", a + r, RINV + b, a + r))
            L.append(valu("v_cvt_pk_bf16_f32", a, a, a + 1))
            L.append(valu("v_cvt_pk_bf16_f32", a + 1, a + 2, a + 3))
            L.append(dsw64(OLW, a, (b >> 1) * SLOT + (b & 1) * 2048, reg=(8 + (b >> 1), "O")))
        return L
    def readback(g):
        return [dsr128(RB + 4 * n, OLR, (n >> 2) * SLOT + (n & 3) * 1024, tag=("RB", n), reg=(8 + (n >> 2), "O", "priv")) for n in range(8)]
    def stores(g, base):
        fl = " " + g.o.oflag if g.o.oflag else ""
        L = []
        for n in range(8):
            x = []
            if n == 4: L.append([salu("s_add_u32 s%d, s%d, 0x4000" % (S_SO2, base))])
            x.append(wait(l=("RB", n))); x[-1].tag = "free"
            p = n & 3
            x.append(I("buffer_store_dwordx4 %s, %s, %s, s%d offen%s%s" % (rn(RB + 4 * n, 4), rn(VOFF + p), srd(SO), base if n < 4 else S_SO2,
                       " offset:%d" % (1024 * p) if p else "", fl), "st", rd=[VOFF + p] + R(RB + 4 * n, 4)))
            L.append(x)
        return L

    def item_vars(g):
        L = []
        a = lambda t: L.append(salu(t))
        a("s_and_b32 s%d, s%d, %d" % (S_T, S_PN, 3 if g.o.rot else 0))
        a("s_lshl_b32 s%d, s%d, 7" % (S_T, S_T))
        a("s_mul_i32 s%d, s%d, 196608" % (S_KVC, S_PN))
        a("s_lshr_b32 s%d, s%d, 5" % (S_KB, S_WL))
        a("s_add_u32 s%d, s%d, s%d" % (S_KB, S_KB, S_KVC))
        a("s_lshl2_add_u32 s%d, s%d, s%d" % (S_T3, S_WL, S_KVC))
        a("s_lshl_b32 s%d, s%d, 17" % (S_T2, S_G))
        a("s_lshl3_add_u32 s%d, s%d, s%d" % (S_T2, S_WL, S_T2))
        for dc in range(4):
            a("s_add_u32 s%d, s%d, s%d" % (S_VB + dc, S_T3, S_T))
            a("s_add_u32 s%d, s%d, s%d" % (S_OB + dc, S_T2, S_T))
            if dc < 3:
                a("s_add_u32 s%d, s%d, 128" % (S_T, S_T))
                a("s_and_b32 s%d, s%d, 0x180" % (S_T, S_T))
        L.append([salu("s_cmp_lt_u32 s%d, 2" % S_R),
                  salu("s_cselect_b32 s%d, 32, 0" % S_T),
                  salu("s_cselect_b32 s%d, %d, 0" % (S_KNN, KBYTES)),
                  salu("s_cselect_b32 s%d, %d, 0" % (SQ + 2, QBYTES))])
        a("s_add_u32 s%d, s%d, s%d" % (S_T, S_G, S_T))
        a("s_mul_hi_u32 s%d, s%d, 0x55555556" % (S_PN, S_T))
        a("s_lshl_b32 s%d, s%d, 17" % (S_QB, S_T))
        a("s_lshl3_add_u32 s%d, s%d, s%d" % (S_QB, S_WL, S_QB))
        a("s_mul_i32 s%d, s%d, 196608" % (S_KBN, S_PN))
        a("s_lshr_b32 s%d, s%d, 5" % (S_T, S_WL))
        a("s_add_u32 s%d, s%d, s%d" % (S_KBN, S_KBN, S_T))
        return L

    def stamp(g):
        if not g.o.stamps: return []
        k = g.nst; g.nst += 1
        return [raw("v_writelane_b32 v%d, s56, %d" % (T + 9, k)), raw("v_writelane_b32 v%d, s58, %d" % (T + 9, 32 + k)),
                raw("s_memtime s[56:57]", "smem"), raw("s_memrealtime s[58:59]", "smem")]
    def stamp_flush(g, row):
        L = g.stamp() + [raw("s_waitcnt lgkmcnt(0)", "waitall"),
             raw("v_writelane_b32 v%d, s56, 31" % (T + 9)), raw("v_writelane_b32 v%d, s58, 63" % (T + 9))]
        L += [raw("v_mbcnt_lo_u32_b32 v%d, -1, 0" % (T + 10)), raw("v_mbcnt_hi_u32_b32 v%d, -1, v%d" % (T + 10, T + 10)),
              raw("v_lshlrev_b32 v%d, 2, v%d" % (T + 10, T + 10))]
        L.append(salu("s_lshl_b32 s52, s2, 13"))
        L.append(salu("s_lshr_b32 s53, s%d, 1" % S_WL))
        L.append(salu("s_add_u32 s52, s52, s53"))
        if row is None:
            L.append(salu("s_lshl_b32 s53, s%d, 8" % S_R)); L.append(salu("s_add_u32 s52, s52, s53"))
        else:
            L.append(salu("s_add_u32 s52, s52, %d" % (row * 256)))
        L.append(raw("buffer_store_dword v%d, v%d, s[48:51], s52 offen" % (T + 9, T + 10), "salu"))
        g.nst = 0
        return L

    def body(g):
        o = g.o; LA = g.LA
        mfs = []; idx = {}; last = {}
        sums = {}
        for j in range(11):
            for b in range(4): sums[16 * (j + 1) + 4 * b + 5] = (j, b)
        s11 = {192 + o.s11 + 2 * b: (11, b) for b in range(4)}
        for G in range(384):
            for b in range(4):
                idx[(G, b)] = len(mfs); mfs.append(g.mf(G, b))
            for sm in (sums, s11):
                if G in sm: mfs.append(g.summf(*sm[G]))
            last[G] = len(mfs) - 1
        N = len(mfs)
        front = [[] for _ in range(N)]; gap = [[] for _ in range(N)]; end = [[] for _ in range(N)]
        VEC = ("valu", "trans", "perm", "nop")
        def flat(x): return x if isinstance(x, list) else [x]
        def isvec(x): return any(y.kind in VEC for y in flat(x))
        PRI = {"st": 1, "ds_r": 2, "dma": 3, "ds_w": 4}
        def order(F): return sorted(F, key=lambda y: PRI.get(y.kind, 0))
        def gtime(L):
            t = 4; floor = 16; prev = None
            for y in L:
                k = y.kind
                if k == "label" or (k == "wait" and y.tag == "free"): continue
                if k in ("valu", "perm"): t = max(t, 8) + 4
                elif k == "trans": t = max(t, 8) + 8
                elif k == "nop": t += 4 * (y.tag + 1)
                elif k in ("branch", "barrier"): t += 10
                elif k in PRI:
                    t = max(t, 8)
                    if prev in ("valu", "perm", "trans"): t += 8
                    if k == "ds_r": t += 16 if prev == "ds_w" else 4
                    elif k == "ds_w": t += 12
                    elif k == "dma": t += 10 if prev == "dma" else 16
                    else: floor = max(floor, t) + (o.stc if floor == 16 else 24); t += 4
                else: t += 4
                prev = k
            return max(floor, t)
        def now(i): return gtime(order(front[i]) + gap[i] + end[i])
        def incr(i, x):
            if isvec(x): return gtime(order(front[i]) + gap[i] + flat(x) + end[i]) - now(i)
            return gtime(order(front[i] + flat(x)) + gap[i] + end[i]) - now(i)
        def put(i, x): (gap if isvec(x) else front)[i].extend(flat(x))
        def putend(i, x): end[i].append(x)
        def cls(x): return 9 if isvec(x) else PRI.get(flat(x)[0].kind, 0) if flat(x)[0].tag != "free" else 1
        def place(L, g0, g1, lo=None, hi=None, win=3):
            lo = idx[(g0, 0)] if lo is None else lo
            hi = last[g1] if hi is None else hi
            tot = sum(cost(x) for x in L); acc = 0; prev = lo; pc = -1
            for n, x in enumerate(L):
                tgt = lo + int((acc + 0.5 * cost(x)) * (hi - lo + 1) / tot); acc += cost(x)
                need = sum(1 for p, q in zip(L[n:], L[n + 1:]) if cls(q) < cls(p))
                top = hi - need
                c0 = max(prev + (1 if cls(x) < pc else 0), min(tgt - win, top))
                c1 = max(c0, min(top, tgt + win))
                assert c0 <= hi, (flat(x)[0].text, g0, g1)
                best = min(range(c0, c1 + 1), key=lambda i: (incr(i, x), 1 if (cls(x) in (0, 2, 9) and not front[i] and not gap[i]) else 0, abs(i - tgt)))
                put(best, x); prev = best; pc = cls(x)
        bars = {}
        for s in range(12): bars[(16 * s - LA) % 384] = [("K", s)]
        for dc in range(4):
            C = 192 + 48 * dc
            bars[C - LA] = [("V", dc, 0)]
            bars[C - LA + 4] = [("V", dc, 1), ("V", dc, 2)]
        for G in range(384):
            if G % 4 == 2:
                put(idx[(G - 1, 3)], wait(l=("F", (G + 3) % 384), v=bars.get(G)))
                if G in bars:
                    put(last[G - 1], barrier())
        assert all(G % 4 == 2 for G in bars)
        for G in list(range(16, 192, 16)) + list(range(192, 384, 12)):
            end[last[G - 1]] += g.stamp()
        for G in range(384):
            f = (G + LA) % 384
            if f >= 192 and (f - 192) % 12 == 0:
                D = (f - 192) // 12
                put(idx[(G - 1, 2 if G <= 192 else 1)], valu("v_xor_b32", VA, lit(g.vconst(D) ^ g.vconst((D - 1) % 16)), VA))
            for k, x in enumerate(g.frag_reads(f)): put(idx[(G, k if o.rd2 == 0 or G < 192 else 0)], x)
        for u in range(2, 24):
            for k in range(8):
                G = 8 * u + k
                put(idx[(G, 0)], g.fma(u - 1, 2 * k))
                put(idx[(G, 1)], g.exp(u - 1, 2 * k))
                put(idx[(G, 2)], g.cvt(u - 1, k - 1) if k else g.cvt(u - 2, 7))
                put(idx[(G, 2)], g.fma(u - 1, 2 * k + 1))
                put(idx[(G, 3)], g.exp(u - 1, 2 * k + 1))
        put(idx[(192, 2)], g.cvt(22, 7))
        place(g.firstmax() + g.sm_stream(0, False), 8, 15, win=1)
        lo = idx[(192, 0)]
        for b in range(4):
            e = 4 * b
            st = [g.fma(23, e), g.fma(23, e + 1), g.exp(23, e), g.exp(23, e + 1), g.fma(23, e + 2), g.fma(23, e + 3),
                  g.exp(23, e + 2), g.exp(23, e + 3), g.cvt(23, 2 * b), g.cvt(23, 2 * b + 1)]
            hi = idx[(192 + o.s11 + 2 * b, 1)]
            if b < 3: hi = min(hi, lo + (idx[(192 + o.s11 + 6, 1)] - lo) // (4 - b))
            place(st, None, None, lo=lo, hi=hi, win=1)
            lo = hi + 1
        place(g.lfinal(), 192 + o.s11 + 7, 203, lo=idx[(192 + o.s11 + 7, 1)], win=1)
        putend(last[203], raw("s_cbranch_vccnz L_slow", "branch")); end[last[203]].append(label("L_back"))
        W = []
        W.append((g.dmaK(3, False), 0, 4)); W.append((g.dmaK(4, False), 5, 9))
        nq = len(o.qsteps)
        qs = dict(zip(o.qsteps, range(nq)))
        qslot = [6, 7, 8, 9, 6, 7, 6, 7]
        for s in range(1, 12):
            t = g.dmaK(s + 4, False) if s < 8 else (g.dmaV(0, s - 8) if s < 11 else g.dmaV(1, 0))
            if s in qs:
                W.append((t, 16 * s - 6, 16 * s + 1)); W.append((g.dmaQ(qs[s], qslot[qs[s]]), 16 * s + 2, 16 * s + 9))
            else:
                W.append((t, 16 * s - 6, 16 * s + 9))
        W.append((g.dmaV(1, 1), 186, 193)); W.append((g.dmaV(1, 2), 194, 205))
        qa, qb = (4, 5) if nq == 4 else (6, 7)
        W.append((g.dmaQ(qa, 6), o.q2a, (o.q2a + 233) // 2)); W.append((g.dmaQ(qb, 7), (o.q2a + 233) // 2 + 1, 233))
        for dc in range(1, 4):
            C = 192 + 48 * dc
            for kt in range(3):
                t = g.dmaV(dc + 1, kt) if dc < 3 else g.dmaK(kt, True)
                if dc == 3 and kt == 0: t = [salu("s_mov_b32 s%d, s%d" % (SK + 2, S_KNN))] + t
                W.append((t, C - 6 + o.vw * kt, C - 7 + o.vw * (kt + 1)))
            if dc == 2 and nq == 4:
                W.append((g.dmaQ(6, 6), C + 12, C + 21)); W.append((g.dmaQ(7, 7), C + 22, C + 31))
        for dc in range(3):
            G1 = 192 + 48 * (dc + 1)
            place(g.stores(S_OB + dc), G1 + 14, min(G1 + o.stw, 376), win=o.dwin)
        place(g.stores(S_OPREV) + [salu("s_mov_b32 s%d, %d" % (SO + 2, QBYTES))], o.st0, o.st1, win=o.dwin)
        for t, a, b in W: place(t, a, b, win=o.dwin)
        for D in range(16):
            G1 = (192 + 12 * (D + 1)) % 384
            if D == 0:
                x, y = (0, 1) if nq == 4 else (4, 5)
                place([wait(v=[("Q", nq - 1)])] + g.qreads(2, 8) + g.qreads(3, 9) + g.qreads(x, 6) + g.qreads(y, 7), G1, G1 + 3, win=1)
                place(g.epilogue(D), G1 + 4, G1 + 11, win=1)
            elif D == 15:
                place(g.epilogue(D), 0, 5, win=1)
                place(g.readback(), 6, 7, win=1)
            elif D & 3 == 3:
                place(g.epilogue(D), G1, G1 + 7)
                place(g.readback(), G1 + 8, G1 + 11)
            else:
                place(g.epilogue(D), G1, G1 + 11)
        if nq == 4:
            place([wait(v=[("Q", 5)])] + g.qreads(4, 6) + g.qreads(5, 7), 288 + 2, 288 + 7)
        else:
            G1 = 16 * o.qsteps[4] + 2
            place([wait(v=[("Q", 1)])] + g.qreads(0, 6, spare=True) + g.qreads(1, 7, spare=True), G1 - 30, G1 - 8, win=8)
            place(g.qmoves(0) + g.qmoves(1), 252, 287, win=4)
        place([wait(v=[("Q", 7)])] + g.qreads(6, 6) + g.qreads(7, 7), 336 + 16, 336 + 37)
        if o.warm:
            hops = list(range(o.warm // 2, 384, o.warm))
            for k, G in enumerate(hops):
                place([[label("L_hop%d" % k), raw("s_cbranch_execz %s" % ("L_hop%d" % (k + 1) if k + 1 < len(hops) else "L_hopend"), "branch")]], G, G, win=4)
        upd = [salu("s_mov_b32 s%d, s%d" % (S_OPREV, S_OB + 3)),
               salu("s_add_u32 s%d, s%d, 32" % (S_G, S_G)),
               salu("s_add_u32 s%d, s%d, 1" % (S_R, S_R))] + g.item_vars()
        place(upd, 336 + 41, 383, hi=idx[(383, 1)])
        put(idx[(383, 2)], salu("s_cmp_lt_u32 s%d, 3" % S_R))
        out = [label("L_item")]
        for i in range(N):
            out.append(mfs[i]); out += order(front[i]) + gap[i] + end[i]
        if o.stamps:
            out += g.stamp_flush(None) + [salu("s_cmp_lt_u32 s%d, 3" % S_R)]
        out.append(raw("s_cbranch_scc1 L_item", "branch"))
        print("gaps %d, est cycles phase 1 %d, phase 2 %d" % (N, sum(now(i) for i in range(idx[(192, 0)])), sum(now(i) for i in range(idx[(192, 0)], N))), file=sys.stderr)
        return out

    def prologue(g):
        o = g.o
        L = []
        a = lambda t: L.append(salu(t))
        v = lambda *x, **k: L.append(valu(*x, **k))
        a("s_cmp_ge_u32 s2, 256")
        L.append(raw("s_cbranch_scc1 L_end", "branch"))
        L.append(raw("s_load_dwordx4 s[4:7], s[0:1], 0", "smem"))
        L.append(raw("s_load_dwordx4 s[12:15], s[0:1], 16", "smem"))
        if o.stamps:
            L.append(raw("s_load_dwordx2 s[48:49], s[0:1], 40", "smem"))
            L.append(raw("s_memtime s[56:57]", "smem")); L.append(raw("s_memrealtime s[58:59]", "smem"))
        t = [T + i for i in range(8)]
        lane, w = t[0], t[1]
        v("v_lshrrev_b32", w, "6", 0)
        v("v_and_b32", lane, "63", 0)
        L.append(I("v_readfirstlane_b32 s%d, v%d" % (S_W, w), "rfl", rd=[w]))
        a("s_and_b32 s%d, s2, 7" % S_T)
        a("s_mul_i32 s%d, s%d, 96" % (S_T, S_T))
        a("s_lshr_b32 s%d, s2, 3" % S_G)
        a("s_add_u32 s%d, s%d, s%d" % (S_G, S_G, S_T))
        a("s_mul_hi_u32 s%d, s%d, 0x55555556" % (S_PN, S_G))
        a("s_mov_b32 s%d, 0" % S_R)
        a("s_lshl_b32 s%d, s%d, 12" % (S_WL, S_W))
        v("v_lshrrev_b32", t[2], "3", lane)
        v("v_and_b32", t[3], "7", lane)
        v("v_xor_b32", t[3], t[3], t[2])
        v("v_lshlrev_b32", t[3], "4", t[3])
        v("v_lshl_add_u32", VOFF, t[2], "9", t[3])
        for p in range(1, 4): v("v_add_u32", VOFF + p, lit(3072 * p), VOFF)
        if o.cpre:
            a("s_getpc_b64 s[52:53]")
            v("v_lshlrev_b32", 2, "7", 0)
            v("v_mov_b32", 3, "s53")
            L.append(I("v_add_co_u32 v2, vcc, s52, v2", "valu", rd=[2], wr=[2]))
            L.append(nop(1))
            L.append(I("v_addc_co_u32 v3, vcc, 0, v3, vcc", "valu", rd=[3], wr=[3]))
            L.append(I("global_load_dword v8, v[2:3], off", "ld", rd=[2, 3]))
        iv = []
        for x in g.item_vars(): iv.extend(x if isinstance(x, list) else [x])
        cut = [i for i, x in enumerate(iv) if x.text.startswith("s_cmp_lt_u32")][0]
        L += iv[:cut]
        L.append(raw("s_waitcnt lgkmcnt(0)", "waitall"))
        a("s_mov_b32 s8, s6"); a("s_mov_b32 s9, s7")
        a("s_mov_b32 s7, 0x20000"); a("s_mov_b32 s11, 0x20000"); a("s_mov_b32 s10, %d" % KBYTES)
        a("s_mov_b32 s6, %d" % QBYTES)
        L += g.dmaK(0, False)
        for j in range(8): L += g.dmaQ(j, j + 2, base=S_T2)
        L += g.dmaK(1, False)
        a("s_mov_b32 s16, s14"); a("s_mov_b32 s17, s15")
        a("s_mov_b32 s15, 0x20000"); a("s_mov_b32 s19, 0x20000")
        a("s_mov_b32 s14, %d" % KBYTES); a("s_mov_b32 s18, 0")
        if o.stamps: a("s_mov_b32 s50, 0x1000000"); a("s_mov_b32 s51, 0x20000")
        L += iv[cut:]
        if o.tpre:
            v("v_and_b32", 10, "3", 0)
            v("v_min_u32", 10, "2", 10)
            v("v_lshlrev_b32", 10, "5", 10)
            v("v_add_u32", 10, "s%d" % S_G, 10)
            a("s_mov_b32 s%d, 0x55555556" % S_T)
            v("v_mul_hi_u32", 11, "s%d" % S_T, 10)
            v("v_mul_u32_u24", 11, "0x30000", 11)
            v("v_bfe_u32", 12, 0, "2", "1")
            v("v_mul_u32_u24", 12, "0x2ff80", 12)
            v("v_add_u32", 11, 11, 12)
            v("v_lshlrev_b32", 10, "17", 10)
            L.append(I("buffer_load_dword v13, v11, %s, 0 offen" % srd(SV), "ld", rd=[11]))
            L.append(I("buffer_load_dword v14, v11, %s, 0 offen" % srd(SK), "ld", rd=[11]))
            L.append(I("buffer_load_dword v15, v10, %s, 0 offen" % srd(SQ), "ld", rd=[10]))
        a("s_mov_b32 s%d, s%d" % (S_OPREV, S_OB + 3))
        c = math.log2(math.e) / 16.0
        a("s_mov_b32 s%d, %s" % (S_C, f2h(c)))
        a("s_mov_b32 s%d, %s" % (S_NC, f2h(-c)))
        a("s_mov_b32 s%d, %s" % (S_TH, f2h(2.0 ** o.thr)))
        n16, g4 = t[2], t[3]
        v("v_and_b32", n16, "15", lane)
        v("v_lshrrev_b32", g4, "4", lane)
        v("v_and_b32", t[4], "7", lane)
        v("v_xor_b32", t[5], g4, t[4])
        v("v_lshlrev_b32", t[5], "4", t[5])
        v("v_lshl_add_u32", KA[0], n16, "7", t[5])
        v("v_xor_b32", KA[0] + 1, "64", KA[0])
        for x in range(2):
            v("v_add_u32", KA[1] + x, "0xc000", KA[0] + x)
            v("v_add_u32", 4 + x, "s%d" % S_WL, KA[0] + x)
            v("v_add_u32", QA + x, lit(6 * SLOT), 4 + x)
            v("v_add_u32", 4 + x, lit(2 * SLOT), 4 + x)
        v("v_lshrrev_b32", t[5], "1", g4)
        v("v_xor_b32", t[5], t[5], t[4])
        v("v_lshlrev_b32", t[5], "4", t[5])
        v("v_lshl_add_u32", t[5], n16, "7", t[5])
        v("v_and_b32", t[6], "1", g4)
        v("v_lshl_add_u32", t[5], t[6], "3", t[5])
        v("v_xor_b32", t[5], "64", t[5])
        a("s_add_u32 s%d, s%d, %s" % (S_T, S_WL, lit(8 * SLOT)))
        v("v_add_u32", OLW, "s%d" % S_T, t[5])
        v("v_lshlrev_b32", t[5], "4", lane)
        v("v_add_u32", OLR, "s%d" % S_T, t[5])
        v("v_lshrrev_b32", t[5], "2", lane)
        v("v_and_b32", t[6], "7", t[5])
        v("v_bfe_u32", t[7], lane, "1", "1")
        v("v_xor_b32", t[6], t[6], t[7])
        v("v_lshlrev_b32", t[6], "4", t[6])
        v("v_lshl_add_u32", t[6], t[5], "7", t[6])
        v("v_and_b32", t[7], "1", lane)
        v("v_lshl_add_u32", t[6], t[7], "3", t[6])
        v("v_xor_b32", VA, lit(g.vconst(15)), t[6])
        v("v_and_b32", t[5], "3", lane)
        v("v_mov_b32", t[6], "0x3f803f80")
        L.append(I("v_cmp_eq_u32 vcc, 0, v%d" % t[5], "valu", rd=[t[5]]))
        for b in range(4): v("v_mov_b32", RINV + b, "0")
        L.append(I("v_cndmask_b32 v%d, 0, v%d, vcc" % (t[6], t[6]), "valu", rd=[t[6]], wr=[t[6]]))
        for r in range(4): v("v_accvgpr_write_b32", ONES + r, t[6])
        if o.warm:
            L += [salu("s_mov_b64 exec, 0"), raw("s_branch L_hop0", "branch"), label("L_hopend"), salu("s_mov_b64 exec, -1")]
        L.append(wait(v=[("Q", 0)]))
        L += g.qreads(0, 2, qa=4, slot0=2)
        L.append(wait(l=("QR", 0)))
        L += g.dmaK(2, False)
        for j in range(1, 8):
            L.append(wait(v=[("Q", j)]))
            L += g.qreads(j, j + 2, qa=4, slot0=2) if j < 4 else g.qreads(j, j + 2)
        L.append(barrier())
        for f in range(g.LA): L += g.frag_reads(f)
        if o.stamps: L += g.stamp_flush(0)
        L.append(wait(l=("F", 1)))
        return L

    def tail(g):
        L = [nop(7)]
        L += g.epilogue(15) + g.readback()
        for x in g.stores(S_OPREV): L += x
        if g.o.stamps:
            L.append(raw("s_waitcnt vmcnt(0)", "salu"))
            L += g.stamp_flush(4)
        L += [label("L_end"), raw("s_endpgm")]
        return L

    def slow(g):
        L = [label("L_slow"), nop(7)]
        ko = T + 5
        L += [I("v_mbcnt_lo_u32_b32 v%d, -1, 0" % ko, "valu", wr=[ko]), I("v_mbcnt_hi_u32_b32 v%d, -1, v%d" % (ko, ko), "valu", rd=[ko], wr=[ko]),
              valu("v_lshrrev_b32", T + 6, "4", ko), valu("v_and_b32", ko, "15", ko), valu("v_lshlrev_b32", ko, "9", ko),
              valu("v_lshl_add_u32", ko, T + 6, "4", ko)]
        def stile():
            X = []
            for ks in range(8):
                X.append(I("buffer_load_dwordx4 %s, %s, %s, s%d offen offset:%d" % (rn(RB + 4 * ks, 4), rn(ko), srd(SK), S_T, 64 * ks), "ld", rd=[ko]))
            X.append(salu("s_add_u32 s%d, s%d, 0x2000" % (S_T, S_T)))
            X.append(raw("s_waitcnt vmcnt(0)", "salu"))
            for ks in range(8):
                for b in range(4): X.append(mfma(ACC[1] + 4 * b, RB + 4 * ks, Q0 + (b * 8 + ks) * 4, ks == 0))
            X.append(nop(7))
            return X
        for b in range(4): L.append(valu("v_mov_b32", NEGM + b, "0xff800000"))
        L += [salu("s_mov_b32 s%d, s%d" % (S_T, S_KVC)), salu("s_mov_b32 s%d, 0" % S_U), label("L_slowA")]
        L += stile()
        for b in range(4):
            a = ACC[1] + 4 * b
            L += [valu("v_max3_f32", NEGM + b, NEGM + b, a, a + 1), valu("v_max3_f32", NEGM + b, NEGM + b, a + 2, a + 3)]
        L += [salu("s_add_u32 s%d, s%d, 1" % (S_U, S_U)), salu("s_cmp_lt_u32 s%d, 24" % S_U), raw("s_cbranch_scc1 L_slowA", "branch")]
        L += g.xreduce(True)
        for r in range(16): L.append(valu("v_accvgpr_write_b32", LACC + r, "0"))
        L += [salu("s_mov_b32 s%d, s%d" % (S_T, S_KVC)), salu("s_mov_b32 s%d, 0" % S_U), label("L_slowB")]
        for i in range(176): L.append(valu("v_mov_b32", P0 + i, P0 + i + 16))
        for half in range(2):
            L += stile()
            for e in range(16): L.append(g.fma(1, e))
            for e in range(16): L.append(g.exp(1, e))
            for k in range(8):
                a = ACC[1] + 2 * k
                L.append(valu("v_cvt_pk_bf16_f32", P0 + (44 + (k >> 1)) * 4 + 2 * half + (k & 1), a, a + 1))
        L.append(nop(1))
        for b in range(4): L.append(mfma(LACC + 4 * b, ONES, P0 + (44 + b) * 4, False))
        L += [salu("s_add_u32 s%d, s%d, 1" % (S_U, S_U)), salu("s_cmp_lt_u32 s%d, 12" % S_U), raw("s_cbranch_scc1 L_slowB", "branch")]
        L.append(nop(7))
        for b in range(4): L.append(valu("v_accvgpr_read_b32", T + b, LACC + 4 * b))
        for b in range(4): L.append(trans("v_rcp_f32", RINV + b, T + b))
        L.append(valu("v_xor_b32", ko, lit(g.vconst(0) ^ g.vconst(1)), VA))
        for j0 in (0, 6):
            for j in range(j0, j0 + 6):
                L += [dsrtr(RB + 4 * (j - j0), ko, j * 4096), dsrtr(RB + 4 * (j - j0) + 2, ko, j * 4096 + 2048)]
            L.append(raw("s_waitcnt lgkmcnt(0)", "waitall"))
            for j in range(j0, j0 + 6):
                for b in range(4): L.append(mfma(ACC[0] + 4 * b, RB + 4 * (j - j0), P0 + (j * 4 + b) * 4, j == 0))
        L += [nop(7), raw("s_branch L_back", "branch")]
        return L

LK = ("ds_r", "ds_w"); VK = ("dma", "st", "ld")
def find(q, tag):
    for k in range(len(q) - 1, -1, -1):
        if q[k].tag == tag: return k
    raise KeyError(tag)

def resolve(path):
    lv = {}; vv = {}
    lq = []; vq = []
    for x in path:
        if x.kind in LK: lq.append(x)
        elif x.kind in VK: vq.append(x)
        elif x.kind == "wait":
            if x.need is not None:
                lv[id(x)] = min(lv.get(id(x), 15), len(lq) - 1 - find(lq, x.need))
            for t in (x.vneed or []):
                vv[id(x)] = min(vv.get(id(x), 63), len(vq) - 1 - find(vq, t))
    for x in path:
        if x.kind == "wait": x.site = lv.get(id(x)); x.vsite = vv.get(id(x))
    need_l = set(); need_v = set()
    lq = []; vq = []; ld = 0; vd = 0
    for x in path:
        if x.kind in LK: lq.append(x)
        elif x.kind in VK: vq.append(x)
        elif x.kind == "waitall": ld = len(lq)
        elif x.kind == "wait":
            if x.need is not None and find(lq, x.need) >= ld:
                need_l.add(id(x)); ld = max(ld, len(lq) - x.site)
            if x.vneed and max(find(vq, t) for t in x.vneed) >= vd:
                need_v.add(id(x)); vd = max(vd, len(vq) - x.vsite)
    for x in path:
        if x.kind == "wait":
            if id(x) not in need_l: x.site = None
            if id(x) not in need_v: x.vsite = None
            parts = (["vmcnt(%d)" % x.vsite] if x.vsite is not None else []) + (["lgkmcnt(%d)" % x.site] if x.site is not None else [])
            x.drop = not parts
            x.text = "s_waitcnt " + " ".join(parts)

def check(path, strict):
    t = 0; last_mfma = -99; m0_t = -99
    lq = []; ld = 0; vq = []; vd = 0
    wr_mfma = {}; wr_valu = {}; wr_trans = {}; rdC = {}; st_data = {}
    slot_tile = {}
    vd_bar = 0; ld_bar = 0
    errs = [0]
    def err(msg, x):
        errs[0] += 1
        if errs[0] < 30: print("HAZARD:", msg, "|", x.text, file=sys.stderr)
    for x in path:
        if x.kind == "label" or x.drop: continue
        if x.kind == "mfma" and not strict: t = max(t, last_mfma + 4)
        touched = x.rd | x.wr | x.C
        for p in lq[ld:]:
            if p.kind == "ds_r" and (p.wr & touched): err("unwaited ds_read %s" % p.text, x)
        isv = x.kind in ("valu", "trans", "perm", "rfl")
        for r in touched:
            if r in wr_mfma:
                tt, full = wr_mfma[r]
                if x.kind == "mfma" and r not in x.rd and x.wr == full: continue
                if t - tt - 1 < 8: err("mfma D -> use after %d states (%s)" % (t - tt - 1, rn(r)), x)
        if x.kind in ("mfma", "perm"):
            for r in (x.rd | x.C):
                if r in wr_valu and t - wr_valu[r] - 1 < 2: err("valu -> %s" % x.kind, x)
        if x.kind == "rfl":
            for r in x.rd:
                if r in wr_valu and t - wr_valu[r] - 1 < 1: err("valu -> readfirstlane", x)
        if isv and x.kind != "trans":
            for r in x.rd:
                if r in wr_trans and t - wr_trans[r] - 1 < 1: err("trans -> valu", x)
        if isv:
            for r in x.wr:
                if r in rdC and t - rdC[r] - 1 < 3: err("mfma C WAR", x)
        for r in x.wr:
            if r in st_data and t - st_data[r] - 1 < 2: err("store data WAR", x)
        if x.kind == "dma" and t - m0_t - 1 < 1: err("m0 -> dma", x)
        if x.kind == "dma":
            slot, tag = x.reg
            for k, p in enumerate(lq):
                if p.reg and p.reg[0] == slot:
                    lim = ld_bar if (p.kind == "ds_r" and p.reg[2] == "shared") else ld
                    if k >= lim: err("dma into slot %d before %s is known done" % (slot, p.text), x); break
            slot_tile[slot] = (tag, len(vq))
        if x.kind == "ds_r" and x.reg:
            slot, tag, mode = x.reg
            cur = slot_tile.get(slot)
            if tag == "O":
                if cur and cur[0] != "O": err("read-back of slot %d holding %s" % (slot, cur[0]), x)
            elif not cur or cur[0] != tag: err("slot %d holds %s, wanted %s" % (slot, cur, tag), x)
            elif cur[1] >= (vd_bar if mode == "shared" else vd): err("tile %s not known landed" % (tag,), x)
        if x.kind == "ds_w" and x.reg:
            slot = x.reg[0]
            cur = slot_tile.get(slot)
            if cur and cur[0] != "O":
                if cur[1] >= vd: err("staging write with a dma in flight", x)
                n = sum(1 for p in lq if p.reg and p.kind == "ds_r" and p.reg[:2] == (slot, cur[0]))
                if n % 4 or not n: err("staging write before Q reads", x)
            slot_tile[slot] = ("O", -1)
        if x.kind == "salu_m0": m0_t = t
        if x.kind == "mfma":
            last_mfma = t
            for r in x.wr: wr_mfma[r] = (t, x.wr); wr_valu.pop(r, None)
            for r in x.C: rdC[r] = t
        if isv:
            for r in x.wr:
                wr_valu[r] = t; wr_mfma.pop(r, None)
                if x.kind == "trans": wr_trans[r] = t
                else: wr_trans.pop(r, None)
        if x.kind == "st":
            for r in x.rd: st_data[r] = t
        if x.kind in LK: lq.append(x)
        if x.kind in VK: vq.append(x)
        if x.kind == "waitall": ld = len(lq)
        if x.kind == "wait":
            if x.site is not None: ld = max(ld, len(lq) - x.site)
            if x.vsite is not None: vd = max(vd, len(vq) - x.vsite)
        if x.kind == "barrier": vd_bar = vd; ld_bar = ld
        t += (x.tag + 1) if x.kind == "nop" else 1
    return errs[0]

HEADER = """; GQA attention forward, B=32 Hq=16 Hkv=8 Sq=Sk=384 D=256, bf16 in/out (emitted by my generator script).
; One persistent 4-wave workgroup per CU, three items of 256 query rows (64 per wave), K/V/Q staged by LDS-DMA.
; Per item: S^T = K Q^T in 16-key units, P = exp2(c*S - c*m) kept in registers as bf16, row sums by MFMA,
; then O^T = V^T P^T per 16-column tile.  m is the row max over the first 16 keys (never above the true max);
; @launch grid=(256,1,1) block=(256,1,1) lds=163840
.amdgcn_target "amdgcn-amd-amdhsa--gfx950"
.text
.globl {n}_kernel
.p2align 8
.type {n}_kernel,@function
{n}_kernel:
"""
FOOTER = """.section .rodata,"a"
.p2align 6
.amdhsa_kernel {n}_kernel
  .amdhsa_next_free_vgpr 512
  .amdhsa_next_free_sgpr 102
  .amdhsa_accum_offset 256
  .amdhsa_group_segment_fixed_size 0
  .amdhsa_kernarg_size 48
  .amdhsa_user_sgpr_count 2
  .amdhsa_user_sgpr_kernarg_segment_ptr 1
  .amdhsa_system_sgpr_workgroup_id_x 1
.end_amdhsa_kernel
"""

def main():
    ap = argparse.ArgumentParser()
    ap.add_argument("-o", dest="out", default="cdna_kernels/%s.s" % NAME)
    ap.add_argument("--thr", type=float, default=30.0)
    ap.add_argument("--qflag", default="")
    ap.add_argument("--kvflag", default="")
    ap.add_argument("--oflag", default="")
    ap.add_argument("--rot", type=int, default=1)
    ap.add_argument("--s11", type=int, default=3)
    ap.add_argument("--st0", type=int, default=16)
    ap.add_argument("--st1", type=int, default=40)
    ap.add_argument("--qsteps", type=lambda s: [int(x) for x in s.split(",")], default=[3, 5, 7, 9])
    ap.add_argument("--stamps", type=int, default=0)
    ap.add_argument("--strict", type=int, default=1)
    ap.add_argument("--align", type=int, default=0)
    ap.add_argument("--drop", default="")
    ap.add_argument("--dbgst", type=int, default=-1)
    ap.add_argument("--cpre", type=int, default=0)
    ap.add_argument("--warm", type=int, default=0)
    ap.add_argument("--q2a", type=int, default=214)
    ap.add_argument("--vw", type=int, default=6)
    ap.add_argument("--stw", type=int, default=40)
    ap.add_argument("--dwin", type=int, default=3)
    ap.add_argument("--cw", type=int, default=1)
    ap.add_argument("--tpre", type=int, default=0)
    ap.add_argument("--stc", type=int, default=21)
    ap.add_argument("--rd2", type=int, default=0)
    ap.add_argument("--cv", type=int, default=1)
    o = ap.parse_args()
    COST.update({"ds_w": o.cw, "dma": 8, "st": 8})
    g = Gen(o)
    body = g.body()
    pro, tail, slow = g.prologue(), g.tail(), g.slow()
    path = pro + body + body + tail
    resolve(path)
    errs = check(path, o.strict) + check(slow, o.strict)
    if errs: print("%d hazard findings" % errs, file=sys.stderr)
    drop = set(o.drop.split(",")) if o.drop else set()
    body = [x for x in body if x.kind not in drop]
    if "valu" in drop: body = [x for x in body if "vccnz" not in (x.text or "")]
    if o.dbgst >= 0:
        pro[2:2] = [raw("s_memrealtime s[60:61]"), raw("s_memtime s[80:81]"), raw("s_load_dwordx2 s[48:49], s[0:1], 32")]
        pro[len(pro) - 1:len(pro) - 1] = [raw("s_memrealtime s[62:63]"), raw("s_memtime s[82:83]"), raw("s_mov_b32 s50, 256"), raw("s_mov_b32 s51, 0x20000")]
        e = len(body) - 1
        body[e:e] = [raw("s_mov_b64 s[64:65], s[66:67]"), raw("s_mov_b64 s[66:67], s[68:69]"), raw("s_memrealtime s[68:69]"),
                     raw("s_mov_b64 s[84:85], s[86:87]"), raw("s_mov_b64 s[86:87], s[88:89]"), raw("s_memtime s[88:89]")]
        e = len(tail) - 2
        x = ["s_waitcnt vmcnt(0)", "s_memrealtime s[70:71]", "s_memtime s[90:91]", "s_waitcnt lgkmcnt(0)",
             "s_cmp_lg_u32 s2, %d" % o.dbgst, "s_cbranch_scc1 L_end", "s_cmp_lg_u32 s20, 0", "s_cbranch_scc1 L_end"]
        for k in range(5):
            x += ["s_sub_u32 s74, s%d, s%d" % (62 + 2 * k, 60 + 2 * k), "v_mov_b32 v0, s74", "buffer_store_dword v0, off, s[48:51], 0 offset:%d" % (4 * k), "s_nop 1"]
            x += ["s_sub_u32 s74, s%d, s%d" % (82 + 2 * k, 80 + 2 * k), "v_mov_b32 v0, s74", "buffer_store_dword v0, off, s[48:51], 0 offset:%d" % (32 + 4 * k), "s_nop 1"]
        tail[e:e] = [raw(y) for y in x]
    txt = HEADER.format(n=NAME)
    al = [raw(".p2align %d" % o.align, "label")] if o.align else []
    for x in pro + al + body + tail + slow:
        if x.drop: continue
        txt += ("" if x.kind == "label" else "    ") + x.text + "\n"
    txt += FOOTER.format(n=NAME)
    open(o.out, "w").write(txt)
    print(dict(Counter(x.kind for x in body if not x.drop)), file=sys.stderr)
    return 1 if errs else 0

if __name__ == "__main__":
    sys.exit(main())
```

```python
import sys, struct, math, argparse
from collections import Counter

NAME = "standalone__gqa_softmax__near_ridge"
def f2h(x): return "0x%08x" % struct.unpack("<I", struct.pack("<f", x))[0]

class I:
    __slots__ = ("text", "kind", "rd", "wr", "tag", "need", "site", "C", "reg", "drop", "vneed", "vsite")
    def __init__(s, text, kind, rd=(), wr=(), tag=None, need=None, C=(), reg=None, vneed=None):
        s.text = text; s.kind = kind; s.rd = frozenset(rd); s.wr = frozenset(wr)
        s.tag = tag; s.need = need; s.site = None; s.C = frozenset(C); s.reg = reg; s.drop = False
        s.vneed = vneed; s.vsite = None

A = 256
def R(a, n=1): return list(range(a, a + n))
def rn(a, n=1):
    p, i = ("a", a - A) if a >= A else ("v", a)
    return "%s%d" % (p, i) if n == 1 else "%s[%d:%d]" % (p, i, i + n - 1)
def lit(x): return str(x) if -16 <= x <= 64 else "0x%x" % x

def valu(op, d, *src, kind="valu"):
    rd = [x for x in src if isinstance(x, int)]
    return I("%s %s, %s" % (op, rn(d), ", ".join(rn(x) if isinstance(x, int) else x for x in src)), kind, rd=rd, wr=[d])
def trans(op, d, s): return valu(op, d, s, kind="trans")
def perm(n, a, b): return I("v_permlane%d_swap_b32 %s, %s" % (n, rn(a), rn(b)), "perm", rd=[a, b], wr=[a, b])
def salu(t, m0=False): return I(t, "salu_m0" if m0 else "salu")
def mfma(d, a, b, first):
    return I("v_mfma_f32_16x16x32_bf16 %s, %s, %s, %s" % (rn(d, 4), rn(a, 4), rn(b, 4), "0" if first else rn(d, 4)), "mfma",
             rd=R(a, 4) + R(b, 4), wr=R(d, 4), C=() if first else R(d, 4))
def dsr128(d, a, off, tag=None, reg=None):
    return I("ds_read_b128 %s, %s offset:%d" % (rn(d, 4), rn(a), off), "ds_r", rd=[a], wr=R(d, 4), tag=tag, reg=reg)
def dsrtr(d, a, off, tag=None, reg=None):
    return I("ds_read_b64_tr_b16 %s, %s offset:%d" % (rn(d, 2), rn(a), off), "ds_r", rd=[a], wr=R(d, 2), tag=tag, reg=reg)
def dsw64(a, s, off, reg=None):
    return I("ds_write_b64 %s, %s offset:%d" % (rn(a), rn(s, 2), off), "ds_w", rd=[a] + R(s, 2), reg=reg)
def wait(l=None, v=None): return I(None, "wait", need=l, vneed=v)
def raw(t, kind="salu"): return I(t, kind)
def label(n): return I(n + ":", "label")
def nop(n): return I("s_nop %d" % n, "nop", tag=n)
def barrier(): return I("s_barrier", "barrier")

P0 = 0
ACC = [192, 208]
KA = [224, 226]; QA = 228; VA = 230; VOFF = 232; OLW = 236; OLR = 237
NEGM = 238; RINV = 242; T = 246
KSLOT = [5, 0, 1, 6, 2, 3, 4, 0, 1, 2, 3, 4]
VSLOT = [[0, 1, 2], [3, 4, 5], [6, 0, 1], [2, 3, 4]]
Q0 = A + 0; FR0 = A + 128; QS = A + 160; LACC = A + 192; ONES = A + 208; RB = A + 212

SQ = 4; SK = 8; SV = 12; SO = 16
S_W = 20; S_C = 21; S_TH = 22; S_WL = 23; S_NC = 24; S_R = 25; S_G = 26
S_KVC = 27; S_KB = 28; S_KBN = 29; S_QB = 30; S_PN = 31; S_KNN = 32; S_OPREV = 33
S_SO = 34; S_SO2 = 35; S_T = 36; S_T2 = 37; S_T3 = 38; S_U = 39
S_VB = 40; S_OB = 44
S_DBG = 48; S_ST = 56

QBYTES = 32 * 16 * 384 * 256 * 2
KBYTES = 32 * 8 * 384 * 256 * 2
SLOT = 16384
def srd(s): return "s[%d:%d]" % (s, s + 3)
COST = {"trans": 2, "label": 0}
DUR = {"trans": 8, "label": 0, "ds_w": 16, "dma": 20, "st": 24}
def dur(x):
    if x.kind == "wait" and x.tag == "free": return 0
    if x.kind == "nop": return 4 * (x.tag + 1)
    return DUR.get(x.kind, 4)
def cost(x):
    if isinstance(x, list): return sum(cost(y) for y in x)
    if x.kind == "wait" and x.tag == "free": return 0
    return COST.get(x.kind, 1)

class Gen:
    def __init__(g, o):
        g.o = o; g.LA = 6; g.NF = 8
        g.nst = 0

    def dma(g, typ, slot, base, add, tag):
        o = g.o
        s = {"K": SK, "Q": SQ, "V": SV}[typ]
        fl = o.qflag if typ == "Q" else o.kvflag
        fl = " " + fl if fl else ""
        L = [salu("s_add_u32 m0, s%d, %s" % (S_WL, lit(slot * SLOT)), m0=True),
             salu("s_add_u32 s%d, s%d, %s" % (S_SO, base, lit(add)))]
        for p in range(4):
            L.append(I("buffer_load_dwordx4 %s, %s, s%d offen%s%s lds" % (rn(VOFF + p), srd(s), S_SO, " offset:%d" % (1024 * p) if p else "", fl),
                       "dma", rd=[VOFF + p], tag=tag if p == 3 else None, reg=(slot, tag)))
        return L
    def dmaK(g, c, nxt): return g.dma("K", KSLOT[c], S_KBN if nxt else S_KB, c * SLOT, ("K", c))
    def dmaV(g, dc, kt): return g.dma("V", VSLOT[dc][kt], S_VB + dc, kt * 65536, ("V", dc, kt))
    def dmaQ(g, j, slot, base=S_QB): return g.dma("Q", slot, base, (j >> 2) * 16384 + (j & 3) * 128, ("Q", j))
    def qreg(g, j, bb, x): return Q0 + ((2 * (j >> 2) + bb) * 8 + 2 * (j & 3) + x) * 4
    def qmoves(g, j):
        return [valu("v_accvgpr_mov_b32", g.qreg(j, bb, x) + r, QS + 16 * j + 8 * bb + 4 * x + r)
                for bb in range(2) for x in range(2) for r in range(4)]
    def qreads(g, j, slot, qa=QA, slot0=6, spare=False):
        L = []
        for bb in range(2):
            for x in range(2):
                d = QS + 16 * j + 8 * bb + 4 * x if spare else g.qreg(j, bb, x)
                L.append(dsr128(d, qa + x, (slot - slot0) * SLOT + bb * 2048, tag=("QR", j), reg=(slot, ("Q", j), "priv")))
        return L

    def frag(g, f): return FR0 + 4 * (f % g.NF)
    def frag_reads(g, f):
        d = g.frag(f)
        if f < 192:
            u, ks = divmod(f, 8); c = u >> 1; sl = KSLOT[c]
            return [dsr128(d, KA[sl >> 2] + (ks & 1), (sl & 3) * SLOT + (ks >> 1) * 4096 + (u & 1) * 2048,
                           tag=("F", f), reg=(sl, ("K", c), "shared"))]
        D, j = divmod(f - 192, 12); dc = D >> 2; sl = VSLOT[dc][j >> 2]
        reg = (sl, ("V", dc, j >> 2), "shared")
        off = (sl & 3) * SLOT + (j & 3) * 4096
        return [dsrtr(d, VA + (sl >> 2), off, reg=reg), dsrtr(d + 2, VA + (sl >> 2), off + 2048, tag=("F", f), reg=reg)]
    @staticmethod
    def vconst(D): return (D & 3) << 5

    def mf(g, G, b):
        if G < 192:
            u, ks = divmod(G, 8)
            return mfma(ACC[u & 1] + 4 * b, g.frag(G), Q0 + (b * 8 + ks) * 4, ks == 0)
        D, j = divmod(G - 192, 12)
        return mfma(ACC[D & 1] + 4 * b, g.frag(G), P0 + (j * 4 + b) * 4, j == 0)
    def summf(g, j, b): return mfma(LACC + 4 * b, ONES, P0 + (j * 4 + b) * 4, j == 0)

    def fma(g, u, e): a = ACC[u & 1] + e; return valu("v_fma_f32", a, a, "s%d" % S_C, NEGM + (e >> 2))
    def exp(g, u, e): a = ACC[u & 1] + e; return trans("v_exp_f32", a, a)
    def cvt(g, u, k):
        a = ACC[u & 1] + 2 * k
        return valu("v_cvt_pk_bf16_f32", P0 + ((u >> 1) * 4 + (k >> 1)) * 4 + 2 * (u & 1) + (k & 1), a, a + 1)
    def xreduce(g, pad):
        m = [NEGM + b for b in range(4)]
        n = (lambda: [nop(1)]) if pad else (lambda: [])
        L = n() + [perm(32, m[0], m[2]), perm(32, m[1], m[3]),
             valu("v_max_f32", m[0], m[0], m[2]), valu("v_max_f32", m[1], m[1], m[3])] + [nop(1)] + \
            [perm(16, m[0], m[1]), valu("v_max_f32", m[0], m[0], m[1]),
             valu("v_mul_f32", m[0], "s%d" % S_NC, m[0]), valu("v_mov_b32", m[1], m[0])] + [nop(1)] + \
            [perm(16, m[0], m[1]), valu("v_mov_b32", m[2], m[0]), valu("v_mov_b32", m[3], m[1])] + [nop(0)] + \
            [perm(32, m[0], m[2])] + [perm(32, m[1], m[3])]
        return L
    def firstmax(g):
        L = []
        for b in range(4):
            a = ACC[0] + 4 * b
            L += [valu("v_max3_f32", NEGM + b, a, a + 1, a + 2), valu("v_max_f32", NEGM + b, NEGM + b, a + 3)]
        return L + g.xreduce(True)
    def sm_stream(g, u, last_cvt):
        L = []
        for k in range(8):
            L += [g.fma(u, 2 * k), g.fma(u, 2 * k + 1), g.exp(u, 2 * k)]
            if k: L.append(g.cvt(u, k - 1))
            L.append(g.exp(u, 2 * k + 1))
        if last_cvt: L += [g.cvt(u, 7)]
        return L
    def lfinal(g):
        L = []
        for b in range(4): L.append(valu("v_accvgpr_read_b32", T + b, LACC + 4 * b))
        L.append(valu("v_max3_f32", T + 4, T, T + 1, T + 2))
        L.append(trans("v_rcp_f32", RINV, T))
        L.append(valu("v_max_f32", T + 4, T + 4, T + 3))
        L.append(trans("v_rcp_f32", RINV + 1, T + 1))
        L.append(I("v_cmp_lt_f32 vcc, s%d, %s" % (S_TH, rn(T + 4)), "valu", rd=[T + 4]))
        L.append(trans("v_rcp_f32", RINV + 2, T + 2))
        L.append(trans("v_rcp_f32", RINV + 3, T + 3))
        return L

    def epilogue(g, D):
        t = D & 3
        L = [valu("v_xor_b32", OLW, lit((t ^ ((t - 1) & 3)) << 5), OLW)]
        for b in range(4):
            a = ACC[D & 1] + 4 * b
            for r in range(4): L.append(valu("v_mul_f32", a + r, RINV + b, a + r))
            L.append(valu("v_cvt_pk_bf16_f32", a, a, a + 1))
            L.append(valu("v_cvt_pk_bf16_f32", a + 1, a + 2, a + 3))
            L.append(dsw64(OLW, a, (b >> 1) * SLOT + (b & 1) * 2048, reg=(8 + (b >> 1), "O")))
        return L
    def readback(g):
        return [dsr128(RB + 4 * n, OLR, (n >> 2) * SLOT + (n & 3) * 1024, tag=("RB", n), reg=(8 + (n >> 2), "O", "priv")) for n in range(8)]
    def stores(g, base):
        fl = " " + g.o.oflag if g.o.oflag else ""
        L = []
        for n in range(8):
            x = []
            if n == 4: L.append([salu("s_add_u32 s%d, s%d, 0x4000" % (S_SO2, base))])
            x.append(wait(l=("RB", n))); x[-1].tag = "free"
            p = n & 3
            x.append(I("buffer_store_dwordx4 %s, %s, %s, s%d offen%s%s" % (rn(RB + 4 * n, 4), rn(VOFF + p), srd(SO), base if n < 4 else S_SO2,
                       " offset:%d" % (1024 * p) if p else "", fl), "st", rd=[VOFF + p] + R(RB + 4 * n, 4)))
            L.append(x)
        return L

    def item_vars(g):
        L = []
        a = lambda t: L.append(salu(t))
        a("s_and_b32 s%d, s%d, %d" % (S_T, S_PN, 3 if g.o.rot else 0))
        a("s_lshl_b32 s%d, s%d, 7" % (S_T, S_T))
        a("s_mul_i32 s%d, s%d, 196608" % (S_KVC, S_PN))
        a("s_lshr_b32 s%d, s%d, 5" % (S_KB, S_WL))
        a("s_add_u32 s%d, s%d, s%d" % (S_KB, S_KB, S_KVC))
        a("s_lshl2_add_u32 s%d, s%d, s%d" % (S_T3, S_WL, S_KVC))
        a("s_lshl_b32 s%d, s%d, 17" % (S_T2, S_G))
        a("s_lshl3_add_u32 s%d, s%d, s%d" % (S_T2, S_WL, S_T2))
        for dc in range(4):
            a("s_add_u32 s%d, s%d, s%d" % (S_VB + dc, S_T3, S_T))
            a("s_add_u32 s%d, s%d, s%d" % (S_OB + dc, S_T2, S_T))
            if dc < 3:
                a("s_add_u32 s%d, s%d, 128" % (S_T, S_T))
                a("s_and_b32 s%d, s%d, 0x180" % (S_T, S_T))
        L.append([salu("s_cmp_lt_u32 s%d, 2" % S_R),
                  salu("s_cselect_b32 s%d, 32, 0" % S_T),
                  salu("s_cselect_b32 s%d, %d, 0" % (S_KNN, KBYTES)),
                  salu("s_cselect_b32 s%d, %d, 0" % (SQ + 2, QBYTES))])
        a("s_add_u32 s%d, s%d, s%d" % (S_T, S_G, S_T))
        a("s_mul_hi_u32 s%d, s%d, 0x55555556" % (S_PN, S_T))
        a("s_lshl_b32 s%d, s%d, 17" % (S_QB, S_T))
        a("s_lshl3_add_u32 s%d, s%d, s%d" % (S_QB, S_WL, S_QB))
        a("s_mul_i32 s%d, s%d, 196608" % (S_KBN, S_PN))
        a("s_lshr_b32 s%d, s%d, 5" % (S_T, S_WL))
        a("s_add_u32 s%d, s%d, s%d" % (S_KBN, S_KBN, S_T))
        return L

    def stamp(g):
        if not g.o.stamps: return []
        k = g.nst; g.nst += 1
        return [raw("v_writelane_b32 v%d, s56, %d" % (T + 9, k)), raw("v_writelane_b32 v%d, s58, %d" % (T + 9, 32 + k)),
                raw("s_memtime s[56:57]", "smem"), raw("s_memrealtime s[58:59]", "smem")]
    def stamp_flush(g, row):
        L = g.stamp() + [raw("s_waitcnt lgkmcnt(0)", "waitall"),
             raw("v_writelane_b32 v%d, s56, 31" % (T + 9)), raw("v_writelane_b32 v%d, s58, 63" % (T + 9))]
        L += [raw("v_mbcnt_lo_u32_b32 v%d, -1, 0" % (T + 8)), raw("v_mbcnt_hi_u32_b32 v%d, -1, v%d" % (T + 8, T + 8)),
              raw("v_lshlrev_b32 v%d, 2, v%d" % (T + 8, T + 8))]
        L.append(salu("s_lshl_b32 s52, s2, 13"))
        L.append(salu("s_lshr_b32 s53, s%d, 1" % S_WL))
        L.append(salu("s_add_u32 s52, s52, s53"))
        if row is None:
            L.append(salu("s_lshl_b32 s53, s%d, 8" % S_R)); L.append(salu("s_add_u32 s52, s52, s53"))
        else:
            L.append(salu("s_add_u32 s52, s52, %d" % (row * 256)))
        L.append(raw("buffer_store_dword v%d, v%d, s[48:51], s52 offen" % (T + 9, T + 8), "salu"))
        g.nst = 0
        return L

    def body(g):
        o = g.o; LA = g.LA
        mfs = []; idx = {}; last = {}
        sums = {}
        for j in range(11):
            for b in range(4): sums[16 * (j + 1) + 4 * b + 3] = (j, b)
        s11 = {192 + o.s11 + 2 * b: (11, b) for b in range(4)}
        for G in range(384):
            for b in range(4):
                idx[(G, b)] = len(mfs); mfs.append(g.mf(G, b))
            for sm in (sums, s11):
                if G in sm: mfs.append(g.summf(*sm[G]))
            last[G] = len(mfs) - 1
        N = len(mfs)
        front = [[] for _ in range(N)]; gap = [[] for _ in range(N)]; end = [[] for _ in range(N)]
        VEC = ("valu", "trans", "perm", "nop")
        def flat(x): return x if isinstance(x, list) else [x]
        def isvec(x): return any(y.kind in VEC for y in flat(x))
        PRI = {"st": 1, "ds_r": 2, "dma": 3, "ds_w": 4}
        def order(F): return sorted(F, key=lambda y: PRI.get(y.kind, 0))
        def gtime(L):
            t = 4; floor = 16; prev = None
            for y in L:
                k = y.kind
                if k == "label" or (k == "wait" and y.tag == "free"): continue
                if k in ("valu", "perm"): t = max(t, 8) + 4
                elif k == "trans": t = max(t, 8) + 8
                elif k == "nop": t += 4 * (y.tag + 1)
                elif k in ("branch", "barrier"): t += 10
                elif k in PRI:
                    t = max(t, 8)
                    if prev in ("valu", "perm", "trans"): t += 8
                    if k == "ds_r": t += 16 if prev == "ds_w" else 4
                    elif k == "ds_w": t += 12
                    elif k == "dma": t += o.ddc if prev == "dma" else 16
                    else: floor = max(floor, t) + (o.stc if floor == 16 else 24); t += 4
                else: t += 4
                prev = k
            return max(floor, t)
        def now(i): return gtime(order(front[i]) + gap[i] + end[i])
        def incr(i, x):
            if isvec(x): return gtime(order(front[i]) + gap[i] + flat(x) + end[i]) - now(i)
            return gtime(order(front[i] + flat(x)) + gap[i] + end[i]) - now(i)
        def put(i, x): (gap if isvec(x) else front)[i].extend(flat(x))
        def putend(i, x): end[i].append(x)
        def cls(x): return 9 if isvec(x) else PRI.get(flat(x)[0].kind, 0) if flat(x)[0].tag != "free" else 1
        def place(L, g0, g1, lo=None, hi=None, win=3):
            lo = idx[(g0, 0)] if lo is None else lo
            hi = last[g1] if hi is None else hi
            tot = sum(cost(x) for x in L); acc = 0; prev = lo; pc = -1
            for n, x in enumerate(L):
                tgt = lo + int((acc + 0.5 * cost(x)) * (hi - lo + 1) / tot); acc += cost(x)
                need = sum(1 for p, q in zip(L[n:], L[n + 1:]) if cls(q) < cls(p))
                top = hi - need
                c0 = max(prev + (1 if cls(x) < pc else 0), min(tgt - win, top))
                c1 = max(c0, min(top, tgt + win))
                assert c0 <= hi, (flat(x)[0].text, g0, g1)
                best = min(range(c0, c1 + 1), key=lambda i: (incr(i, x), 1 if (cls(x) in (0, 2, 9) and not front[i] and not gap[i]) else 0, abs(i - tgt)))
                put(best, x); prev = best; pc = cls(x)
        bars = {}
        for s in range(12): bars[(16 * s - 4) % 384] = [("K", s)]
        for dc in range(4): bars[192 + 48 * dc - 4] = [("V", dc, kt) for kt in range(3)]
        for G in range(0, 384, 4):
            put(idx[((G - 1) % 384, 3)], wait(l=("F", G + 3), v=bars.get(G)))
            if G in bars: put(last[G - 1], barrier())
        for G in list(range(16, 192, 16)) + list(range(192, 384, 12)):
            end[last[G - 1]] += g.stamp()
        for f in range(384):
            G = (f - LA) % 384; k0 = 0
            for e in range(4):
                if (f - e - 4) % 384 in bars: G = (f - e - 4 + (e >> 1)) % 384; k0 = 2 * (e & 1)
            for k, x in enumerate(g.frag_reads(f)): put(idx[(G, k0 + k)], x)
        for D in range(16):
            G = 192 + 12 * D - LA - 1
            x = [valu("v_xor_b32", VA + r, lit(g.vconst(D) ^ g.vconst((D - 1) % 16)), VA + r) for r in range(2)]
            if D: place(x, None, None, lo=idx[(G, 1)], hi=last[G], win=4)
            else: vx0 = x
        for u in range(2, 24):
            for k in range(8):
                G = 8 * u + k
                put(idx[(G, 0)], g.fma(u - 1, 2 * k))
                put(idx[(G, 1)], g.exp(u - 1, 2 * k))
                put(idx[(G, 2)], g.cvt(u - 1, k - 1) if k else g.cvt(u - 2, 7))
                put(idx[(G, 2)], g.fma(u - 1, 2 * k + 1))
                put(idx[(G, 3)], g.exp(u - 1, 2 * k + 1))
        put(idx[(192, 2)], g.cvt(22, 7))
        place(vx0, 186, 187, win=8)
        place(g.firstmax() + g.sm_stream(0, False), 8, 15, win=1)
        lo = idx[(192, 0)]
        for b in range(4):
            e = 4 * b
            st = [g.fma(23, e), g.fma(23, e + 1), g.exp(23, e), g.exp(23, e + 1), g.fma(23, e + 2), g.fma(23, e + 3),
                  g.exp(23, e + 2), g.exp(23, e + 3), g.cvt(23, 2 * b), g.cvt(23, 2 * b + 1)]
            hi = idx[(192 + o.s11 + 2 * b, 1)]
            if b < 3: hi = min(hi, lo + (idx[(192 + o.s11 + 6, 1)] - lo) // (4 - b))
            place(st, None, None, lo=lo, hi=hi, win=1)
            lo = hi + 1
        place(g.lfinal(), 192 + o.s11 + 7, 203, lo=idx[(192 + o.s11 + 7, 1)], win=1)
        putend(last[203], raw("s_cbranch_vccnz L_slow", "branch")); end[last[203]].append(label("L_back"))
        W = []
        qs = dict(zip(o.qsteps, range(8)))
        qslot = [7, 8, 9, 6, 7, 8, 7, 7]
        kv = [g.dmaK(c, False) for c in range(4, 12)] + [g.dmaV(dc, kt) for dc in range(4) for kt in range(3)] + [g.dmaK(c, True) for c in range(4)]
        kv[20] = [salu("s_mov_b32 s%d, s%d" % (SK + 2, S_KNN))] + kv[20]
        for s in range(24):
            a0 = max(16 * s - 4, 0)
            n = 8 if s in qs else o.kw
            W.append((kv[s], a0, min(a0 + n - 1, 16 * s + 11, 374)))
            if s in qs: W.append((g.dmaQ(qs[s], qslot[qs[s]]), 16 * s + 4, 16 * s + 11))
        for dc in range(3):
            G1 = 192 + 48 * (dc + 1)
            place(g.stores(S_OB + dc), G1 + 14, min(G1 + o.stw, 374), win=o.dwin)
        place(g.stores(S_OPREV) + [salu("s_mov_b32 s%d, %d" % (SO + 2, QBYTES))], o.st0, o.st1, win=o.dwin)
        for t, a, b in W: place(t, a, b, win=o.dwin)
        for D in range(16):
            G1 = (192 + 12 * (D + 1)) % 384
            if D == 0:
                place([wait(v=[("Q", 5)])] + g.qreads(5, 8) + g.qreads(2, 9) + g.qreads(4, 7) + g.qreads(3, 6), G1, G1 + 3, win=1)
                place(g.epilogue(D), G1 + 4, G1 + 11, win=1)
            elif D == 15:
                place(g.epilogue(D), 0, 5, win=1)
                place(g.readback(), 6, 7, win=1)
            elif D & 3 == 3:
                place(g.epilogue(D), G1, G1 + 7)
                place(g.readback(), G1 + 8, G1 + 11)
            else:
                place(g.epilogue(D), G1, G1 + 11)
        for j in range(2):
            G1 = 16 * o.qsteps[4 + j] + 4
            place([wait(v=[("Q", j)])] + g.qreads(j, qslot[j], spare=True), G1 - 20, G1 - 8, win=8)
        place(g.qmoves(0) + g.qmoves(1), 216, 239, win=4)
        G1 = 16 * o.qsteps[7] + 4
        place([wait(v=[("Q", 6)])] + g.qreads(6, 7), G1 - 12, G1 - 8)
        place([wait(v=[("Q", 7)])] + g.qreads(7, 7), 352, 370)
        if o.warm:
            hops = list(range(o.warm // 2, 384, o.warm))
            for k, G in enumerate(hops):
                place([[label("L_hop%d" % k), raw("s_cbranch_execz %s" % ("L_hop%d" % (k + 1) if k + 1 < len(hops) else "L_hopend"), "branch")]], G, G, win=4)
        upd = [salu("s_mov_b32 s%d, s%d" % (S_OPREV, S_OB + 3)),
               salu("s_add_u32 s%d, s%d, 32" % (S_G, S_G)),
               salu("s_add_u32 s%d, s%d, 1" % (S_R, S_R))] + g.item_vars()
        place(upd, 375, 383, hi=idx[(383, 1)])
        put(idx[(383, 2)], salu("s_cmp_lt_u32 s%d, 3" % S_R))
        out = [label("L_item")]
        for i in range(N):
            out.append(mfs[i]); out += order(front[i]) + gap[i] + end[i]
        if o.stamps:
            out += g.stamp_flush(None) + [salu("s_cmp_lt_u32 s%d, 3" % S_R)]
        out.append(raw("s_cbranch_scc1 L_item", "branch"))
        print("gaps %d, est cycles phase 1 %d, phase 2 %d" % (N, sum(now(i) for i in range(idx[(192, 0)])), sum(now(i) for i in range(idx[(192, 0)], N))), file=sys.stderr)
        return out

    def prologue(g):
        o = g.o
        L = []
        a = lambda t: L.append(salu(t))
        v = lambda *x, **k: L.append(valu(*x, **k))
        a("s_cmp_ge_u32 s2, 256")
        L.append(raw("s_cbranch_scc1 L_end", "branch"))
        L.append(raw("s_load_dwordx4 s[4:7], s[0:1], 0", "smem"))
        L.append(raw("s_load_dwordx4 s[12:15], s[0:1], 16", "smem"))
        if o.stamps:
            L.append(raw("s_load_dwordx2 s[48:49], s[0:1], 40", "smem"))
            L.append(raw("s_memtime s[56:57]", "smem")); L.append(raw("s_memrealtime s[58:59]", "smem"))
        t = [T + i for i in range(8)]
        lane, w = t[0], t[1]
        v("v_lshrrev_b32", w, "6", 0)
        v("v_and_b32", lane, "63", 0)
        L.append(I("v_readfirstlane_b32 s%d, v%d" % (S_W, w), "rfl", rd=[w]))
        a("s_and_b32 s%d, s2, 7" % S_T)
        a("s_mul_i32 s%d, s%d, 96" % (S_T, S_T))
        a("s_lshr_b32 s%d, s2, 3" % S_G)
        a("s_add_u32 s%d, s%d, s%d" % (S_G, S_G, S_T))
        a("s_mul_hi_u32 s%d, s%d, 0x55555556" % (S_PN, S_G))
        a("s_mov_b32 s%d, 0" % S_R)
        a("s_lshl_b32 s%d, s%d, 12" % (S_WL, S_W))
        v("v_lshrrev_b32", t[2], "3", lane)
        v("v_and_b32", t[3], "7", lane)
        v("v_xor_b32", t[3], t[3], t[2])
        v("v_lshlrev_b32", t[3], "4", t[3])
        v("v_lshl_add_u32", VOFF, t[2], "9", t[3])
        for p in range(1, 4): v("v_add_u32", VOFF + p, lit(3072 * p), VOFF)
        if o.cpre:
            a("s_getpc_b64 s[52:53]")
            v("v_lshlrev_b32", 2, "7", 0)
            v("v_mov_b32", 3, "s53")
            L.append(I("v_add_co_u32 v2, vcc, s52, v2", "valu", rd=[2], wr=[2]))
            L.append(nop(1))
            L.append(I("v_addc_co_u32 v3, vcc, 0, v3, vcc", "valu", rd=[3], wr=[3]))
            L.append(I("global_load_dword v8, v[2:3], off", "ld", rd=[2, 3]))
        iv = []
        for x in g.item_vars(): iv.extend(x if isinstance(x, list) else [x])
        cut = [i for i, x in enumerate(iv) if x.text.startswith("s_cmp_lt_u32")][0]
        L += iv[:cut]
        L.append(raw("s_waitcnt lgkmcnt(0)", "waitall"))
        a("s_mov_b32 s8, s6"); a("s_mov_b32 s9, s7")
        a("s_mov_b32 s7, 0x20000"); a("s_mov_b32 s11, 0x20000"); a("s_mov_b32 s10, %d" % KBYTES)
        a("s_mov_b32 s6, %d" % QBYTES)
        L += g.dmaK(0, False)
        pslot = [1, 6, 2, 3, 4, 7, 8, 9]
        for j in range(8): L += g.dmaQ(j, pslot[j], base=S_T2)
        L += g.dmaK(1, False)
        a("s_mov_b32 s16, s14"); a("s_mov_b32 s17, s15")
        a("s_mov_b32 s15, 0x20000"); a("s_mov_b32 s19, 0x20000")
        a("s_mov_b32 s14, %d" % KBYTES); a("s_mov_b32 s18, 0")
        if o.stamps: a("s_mov_b32 s50, 0x1000000"); a("s_mov_b32 s51, 0x20000")
        L += iv[cut:]
        if o.tpre:
            v("v_and_b32", 10, "3", 0)
            v("v_min_u32", 10, "2", 10)
            v("v_lshlrev_b32", 10, "5", 10)
            v("v_add_u32", 10, "s%d" % S_G, 10)
            a("s_mov_b32 s%d, 0x55555556" % S_T)
            v("v_mul_hi_u32", 11, "s%d" % S_T, 10)
            v("v_mul_u32_u24", 11, "0x30000", 11)
            v("v_bfe_u32", 12, 0, "2", "1")
            v("v_mul_u32_u24", 12, "0x2ff80", 12)
            v("v_add_u32", 11, 11, 12)
            v("v_lshlrev_b32", 10, "17", 10)
            L.append(I("buffer_load_dword v13, v11, %s, 0 offen" % srd(SV), "ld", rd=[11]))
            L.append(I("buffer_load_dword v14, v11, %s, 0 offen" % srd(SK), "ld", rd=[11]))
            L.append(I("buffer_load_dword v15, v10, %s, 0 offen" % srd(SQ), "ld", rd=[10]))
        a("s_mov_b32 s%d, s%d" % (S_OPREV, S_OB + 3))
        c = math.log2(math.e) / 16.0
        a("s_mov_b32 s%d, %s" % (S_C, f2h(c)))
        a("s_mov_b32 s%d, %s" % (S_NC, f2h(-c)))
        a("s_mov_b32 s%d, %s" % (S_TH, f2h(2.0 ** o.thr)))
        n16, g4 = t[2], t[3]
        v("v_and_b32", n16, "15", lane)
        v("v_lshrrev_b32", g4, "4", lane)
        v("v_and_b32", t[4], "7", lane)
        v("v_xor_b32", t[5], g4, t[4])
        v("v_lshlrev_b32", t[5], "4", t[5])
        v("v_lshl_add_u32", KA[0], n16, "7", t[5])
        v("v_xor_b32", KA[0] + 1, "64", KA[0])
        for x in range(2):
            v("v_add_u32", KA[1] + x, "0x10000", KA[0] + x)
            v("v_add_u32", 4 + x, "s%d" % S_WL, KA[0] + x)
            v("v_add_u32", QA + x, lit(6 * SLOT), 4 + x)
            v("v_add_u32", 4 + x, lit(SLOT), 4 + x)
        v("v_lshrrev_b32", t[5], "1", g4)
        v("v_xor_b32", t[5], t[5], t[4])
        v("v_lshlrev_b32", t[5], "4", t[5])
        v("v_lshl_add_u32", t[5], n16, "7", t[5])
        v("v_and_b32", t[6], "1", g4)
        v("v_lshl_add_u32", t[5], t[6], "3", t[5])
        v("v_xor_b32", t[5], "64", t[5])
        a("s_add_u32 s%d, s%d, %s" % (S_T, S_WL, lit(8 * SLOT)))
        v("v_add_u32", OLW, "s%d" % S_T, t[5])
        v("v_lshlrev_b32", t[5], "4", lane)
        v("v_add_u32", OLR, "s%d" % S_T, t[5])
        v("v_lshrrev_b32", t[5], "2", lane)
        v("v_and_b32", t[6], "7", t[5])
        v("v_bfe_u32", t[7], lane, "1", "1")
        v("v_xor_b32", t[6], t[6], t[7])
        v("v_lshlrev_b32", t[6], "4", t[6])
        v("v_lshl_add_u32", t[6], t[5], "7", t[6])
        v("v_and_b32", t[7], "1", lane)
        v("v_lshl_add_u32", t[6], t[7], "3", t[6])
        v("v_xor_b32", VA, lit(g.vconst(15)), t[6])
        v("v_add_u32", VA + 1, "0x10000", VA)
        v("v_and_b32", t[5], "3", lane)
        v("v_mov_b32", t[6], "0x3f803f80")
        L.append(I("v_cmp_eq_u32 vcc, 0, v%d" % t[5], "valu", rd=[t[5]]))
        for b in range(4): v("v_mov_b32", RINV + b, "0")
        L.append(I("v_cndmask_b32 v%d, 0, v%d, vcc" % (t[6], t[6]), "valu", rd=[t[6]], wr=[t[6]]))
        for r in range(4): v("v_accvgpr_write_b32", ONES + r, t[6])
        if o.warm:
            L += [salu("s_mov_b64 exec, 0"), raw("s_branch L_hop0", "branch"), label("L_hopend"), salu("s_mov_b64 exec, -1")]
        for j in range(8):
            L.append(wait(v=[("Q", j)]))
            L += g.qreads(j, pslot[j], qa=4, slot0=1) if pslot[j] < 6 else g.qreads(j, pslot[j])
            if j == 1:
                L.append(wait(l=("QR", 1)))
                L += g.dmaK(2, False) + g.dmaK(3, False)
        L.append(barrier())
        for f in range(g.LA): L += g.frag_reads(f)
        if o.stamps: L += g.stamp_flush(0)
        L.append(wait(l=("F", 3)))
        return L

    def tail(g):
        L = [nop(7)]
        L += g.epilogue(15) + g.readback()
        for x in g.stores(S_OPREV): L += x
        if g.o.stamps:
            L.append(raw("s_waitcnt vmcnt(0)", "salu"))
            L += g.stamp_flush(4)
        L += [label("L_end"), raw("s_endpgm")]
        return L

    def slow(g):
        L = [label("L_slow"), nop(7)]
        ko = T + 5
        L += [I("v_mbcnt_lo_u32_b32 v%d, -1, 0" % ko, "valu", wr=[ko]), I("v_mbcnt_hi_u32_b32 v%d, -1, v%d" % (ko, ko), "valu", rd=[ko], wr=[ko]),
              valu("v_lshrrev_b32", T + 6, "4", ko), valu("v_and_b32", ko, "15", ko), valu("v_lshlrev_b32", ko, "9", ko),
              valu("v_lshl_add_u32", ko, T + 6, "4", ko)]
        def stile():
            X = []
            for ks in range(8):
                X.append(I("buffer_load_dwordx4 %s, %s, %s, s%d offen offset:%d" % (rn(RB + 4 * ks, 4), rn(ko), srd(SK), S_T, 64 * ks), "ld", rd=[ko]))
            X.append(salu("s_add_u32 s%d, s%d, 0x2000" % (S_T, S_T)))
            X.append(raw("s_waitcnt vmcnt(0)", "salu"))
            for ks in range(8):
                for b in range(4): X.append(mfma(ACC[1] + 4 * b, RB + 4 * ks, Q0 + (b * 8 + ks) * 4, ks == 0))
            X.append(nop(7))
            return X
        for b in range(4): L.append(valu("v_mov_b32", NEGM + b, "0xff800000"))
        L += [salu("s_mov_b32 s%d, s%d" % (S_T, S_KVC)), salu("s_mov_b32 s%d, 0" % S_U), label("L_slowA")]
        L += stile()
        for b in range(4):
            a = ACC[1] + 4 * b
            L += [valu("v_max3_f32", NEGM + b, NEGM + b, a, a + 1), valu("v_max3_f32", NEGM + b, NEGM + b, a + 2, a + 3)]
        L += [salu("s_add_u32 s%d, s%d, 1" % (S_U, S_U)), salu("s_cmp_lt_u32 s%d, 24" % S_U), raw("s_cbranch_scc1 L_slowA", "branch")]
        L += g.xreduce(True)
        for r in range(16): L.append(valu("v_accvgpr_write_b32", LACC + r, "0"))
        L += [salu("s_mov_b32 s%d, s%d" % (S_T, S_KVC)), salu("s_mov_b32 s%d, 0" % S_U), label("L_slowB")]
        for i in range(176): L.append(valu("v_mov_b32", P0 + i, P0 + i + 16))
        for half in range(2):
            L += stile()
            for e in range(16): L.append(g.fma(1, e))
            for e in range(16): L.append(g.exp(1, e))
            for k in range(8):
                a = ACC[1] + 2 * k
                L.append(valu("v_cvt_pk_bf16_f32", P0 + (44 + (k >> 1)) * 4 + 2 * half + (k & 1), a, a + 1))
        L.append(nop(1))
        for b in range(4): L.append(mfma(LACC + 4 * b, ONES, P0 + (44 + b) * 4, False))
        L += [salu("s_add_u32 s%d, s%d, 1" % (S_U, S_U)), salu("s_cmp_lt_u32 s%d, 12" % S_U), raw("s_cbranch_scc1 L_slowB", "branch")]
        L.append(nop(7))
        for b in range(4): L.append(valu("v_accvgpr_read_b32", T + b, LACC + 4 * b))
        for b in range(4): L.append(trans("v_rcp_f32", RINV + b, T + b))
        L.append(valu("v_xor_b32", ko, lit(g.vconst(0) ^ g.vconst(1)), VA))
        for j0 in (0, 6):
            for j in range(j0, j0 + 6):
                L += [dsrtr(RB + 4 * (j - j0), ko, j * 4096), dsrtr(RB + 4 * (j - j0) + 2, ko, j * 4096 + 2048)]
            L.append(raw("s_waitcnt lgkmcnt(0)", "waitall"))
            for j in range(j0, j0 + 6):
                for b in range(4): L.append(mfma(ACC[0] + 4 * b, RB + 4 * (j - j0), P0 + (j * 4 + b) * 4, j == 0))
        L += [nop(7), raw("s_branch L_back", "branch")]
        return L

LK = ("ds_r", "ds_w"); VK = ("dma", "st", "ld")
def find(q, tag):
    for k in range(len(q) - 1, -1, -1):
        if q[k].tag == tag: return k
    raise KeyError(tag)

def resolve(path):
    lv = {}; vv = {}
    lq = []; vq = []
    for x in path:
        if x.kind in LK: lq.append(x)
        elif x.kind in VK: vq.append(x)
        elif x.kind == "wait":
            if x.need is not None:
                lv[id(x)] = min(lv.get(id(x), 15), len(lq) - 1 - find(lq, x.need))
            for t in (x.vneed or []):
                vv[id(x)] = min(vv.get(id(x), 63), len(vq) - 1 - find(vq, t))
    for x in path:
        if x.kind == "wait": x.site = lv.get(id(x)); x.vsite = vv.get(id(x))
    need_l = set(); need_v = set()
    lq = []; vq = []; ld = 0; vd = 0
    for x in path:
        if x.kind in LK: lq.append(x)
        elif x.kind in VK: vq.append(x)
        elif x.kind == "waitall": ld = len(lq)
        elif x.kind == "wait":
            if x.need is not None and find(lq, x.need) >= ld:
                need_l.add(id(x)); ld = max(ld, len(lq) - x.site)
            if x.vneed and max(find(vq, t) for t in x.vneed) >= vd:
                need_v.add(id(x)); vd = max(vd, len(vq) - x.vsite)
    for x in path:
        if x.kind == "wait":
            if id(x) not in need_l: x.site = None
            if id(x) not in need_v: x.vsite = None
            parts = (["vmcnt(%d)" % x.vsite] if x.vsite is not None else []) + (["lgkmcnt(%d)" % x.site] if x.site is not None else [])
            x.drop = not parts
            x.text = "s_waitcnt " + " ".join(parts)

def check(path, strict):
    t = 0; last_mfma = -99; m0_t = -99
    lq = []; ld = 0; vq = []; vd = 0
    wr_mfma = {}; wr_valu = {}; wr_trans = {}; rdC = {}; st_data = {}
    slot_tile = {}
    vd_bar = 0; ld_bar = 0
    errs = [0]
    def err(msg, x):
        errs[0] += 1
        if errs[0] < 30: print("HAZARD:", msg, "|", x.text, file=sys.stderr)
    for x in path:
        if x.kind == "label" or x.drop: continue
        if x.kind == "mfma" and not strict: t = max(t, last_mfma + 4)
        touched = x.rd | x.wr | x.C
        for p in lq[ld:]:
            if p.kind == "ds_r" and (p.wr & touched): err("unwaited ds_read %s" % p.text, x)
        isv = x.kind in ("valu", "trans", "perm", "rfl")
        for r in touched:
            if r in wr_mfma:
                tt, full = wr_mfma[r]
                if x.kind == "mfma" and r not in x.rd and x.wr == full: continue
                if t - tt - 1 < 8: err("mfma D -> use after %d states (%s)" % (t - tt - 1, rn(r)), x)
        if x.kind in ("mfma", "perm"):
            for r in (x.rd | x.C):
                if r in wr_valu and t - wr_valu[r] - 1 < 2: err("valu -> %s" % x.kind, x)
        if x.kind == "rfl":
            for r in x.rd:
                if r in wr_valu and t - wr_valu[r] - 1 < 1: err("valu -> readfirstlane", x)
        if isv and x.kind != "trans":
            for r in x.rd:
                if r in wr_trans and t - wr_trans[r] - 1 < 1: err("trans -> valu", x)
        if isv:
            for r in x.wr:
                if r in rdC and t - rdC[r] - 1 < 3: err("mfma C WAR", x)
        for r in x.wr:
            if r in st_data and t - st_data[r] - 1 < 2: err("store data WAR", x)
        if x.kind == "dma" and t - m0_t - 1 < 1: err("m0 -> dma", x)
        if x.kind == "dma":
            slot, tag = x.reg
            for k, p in enumerate(lq):
                if p.reg and p.reg[0] == slot:
                    lim = ld_bar if (p.kind == "ds_r" and p.reg[2] == "shared") else ld
                    if k >= lim: err("dma into slot %d before %s is known done" % (slot, p.text), x); break
            slot_tile[slot] = (tag, len(vq))
        if x.kind == "ds_r" and x.reg:
            slot, tag, mode = x.reg
            cur = slot_tile.get(slot)
            if tag == "O":
                if cur and cur[0] != "O": err("read-back of slot %d holding %s" % (slot, cur[0]), x)
            elif not cur or cur[0] != tag: err("slot %d holds %s, wanted %s" % (slot, cur, tag), x)
            elif cur[1] >= (vd_bar if mode == "shared" else vd): err("tile %s not known landed" % (tag,), x)
        if x.kind == "ds_w" and x.reg:
            slot = x.reg[0]
            cur = slot_tile.get(slot)
            if cur and cur[0] != "O":
                if cur[1] >= vd: err("staging write with a dma in flight", x)
                n = sum(1 for p in lq if p.reg and p.kind == "ds_r" and p.reg[:2] == (slot, cur[0]))
                if n % 4 or not n: err("staging write before Q reads", x)
            slot_tile[slot] = ("O", -1)
        if x.kind == "salu_m0": m0_t = t
        if x.kind == "mfma":
            last_mfma = t
            for r in x.wr: wr_mfma[r] = (t, x.wr); wr_valu.pop(r, None)
            for r in x.C: rdC[r] = t
        if isv:
            for r in x.wr:
                wr_valu[r] = t; wr_mfma.pop(r, None)
                if x.kind == "trans": wr_trans[r] = t
                else: wr_trans.pop(r, None)
        if x.kind == "st":
            for r in x.rd: st_data[r] = t
        if x.kind in LK: lq.append(x)
        if x.kind in VK: vq.append(x)
        if x.kind == "waitall": ld = len(lq)
        if x.kind == "wait":
            if x.site is not None: ld = max(ld, len(lq) - x.site)
            if x.vsite is not None: vd = max(vd, len(vq) - x.vsite)
        if x.kind == "barrier": vd_bar = vd; ld_bar = ld
        t += (x.tag + 1) if x.kind == "nop" else 1
    return errs[0]

HEADER = """; GQA attention forward, B=32 Hq=16 Hkv=8 Sq=Sk=384 D=256, bf16 in/out (emitted by my generator script).
; One persistent 4-wave workgroup per CU, three items of 256 query rows (64 per wave), K/V/Q staged by LDS-DMA.
; Per item: S^T = K Q^T in 16-key units, P = exp2(c*S - c*m) kept in registers as bf16, row sums by MFMA,
; then O^T = V^T P^T per 16-column tile.  m is the row max over the first 16 keys (never above the true max);
; @launch grid=(256,1,1) block=(256,1,1) lds=163840
.amdgcn_target "amdgcn-amd-amdhsa--gfx950"
.text
.globl {n}_kernel
.p2align 8
.type {n}_kernel,@function
{n}_kernel:
"""
FOOTER = """.section .rodata,"a"
.p2align 6
.amdhsa_kernel {n}_kernel
  .amdhsa_next_free_vgpr 512
  .amdhsa_next_free_sgpr 102
  .amdhsa_accum_offset 256
  .amdhsa_group_segment_fixed_size 0
  .amdhsa_kernarg_size 48
  .amdhsa_user_sgpr_count 2
  .amdhsa_user_sgpr_kernarg_segment_ptr 1
  .amdhsa_system_sgpr_workgroup_id_x 1
.end_amdhsa_kernel
"""

def main():
    ap = argparse.ArgumentParser()
    ap.add_argument("-o", dest="out", default="cdna_kernels/%s.s" % NAME)
    ap.add_argument("--thr", type=float, default=30.0)
    ap.add_argument("--qflag", default="")
    ap.add_argument("--kvflag", default="")
    ap.add_argument("--oflag", default="")
    ap.add_argument("--rot", type=int, default=1)
    ap.add_argument("--s11", type=int, default=3)
    ap.add_argument("--st0", type=int, default=16)
    ap.add_argument("--st1", type=int, default=40)
    ap.add_argument("--qsteps", type=lambda s: [int(x) for x in s.split(",")], default=[4, 5, 6, 8, 9, 10, 13, 16])
    ap.add_argument("--stamps", type=int, default=0)
    ap.add_argument("--strict", type=int, default=1)
    ap.add_argument("--align", type=int, default=0)
    ap.add_argument("--drop", default="")
    ap.add_argument("--light", type=int, default=0)
    ap.add_argument("--cpre", type=int, default=0)
    ap.add_argument("--warm", type=int, default=0)
    ap.add_argument("--q2a", type=int, default=214)
    ap.add_argument("--vw", type=int, default=6)
    ap.add_argument("--stw", type=int, default=40)
    ap.add_argument("--dwin", type=int, default=3)
    ap.add_argument("--cw", type=int, default=1)
    ap.add_argument("--kw", type=int, default=10)
    ap.add_argument("--ddc", type=int, default=22)
    ap.add_argument("--tpre", type=int, default=0)
    ap.add_argument("--stc", type=int, default=21)
    ap.add_argument("--rd2", type=int, default=0)
    ap.add_argument("--cv", type=int, default=1)
    o = ap.parse_args()
    COST.update({"ds_w": o.cw, "dma": 8, "st": 8})
    g = Gen(o)
    body = g.body()
    pro, tail, slow = g.prologue(), g.tail(), g.slow()
    path = pro + body + body + tail
    resolve(path)
    errs = check(path, o.strict) + check(slow, o.strict)
    if errs: print("%d hazard findings" % errs, file=sys.stderr)
    drop = set(o.drop.split(",")) if o.drop else set()
    body = [x for x in body if x.kind not in drop]
    if "valu" in drop: body = [x for x in body if "vccnz" not in (x.text or "")]
    if o.light:
        pro[2:2] = [raw("s_memrealtime s[60:61]"), raw("s_memtime s[80:81]"), raw("s_load_dwordx2 s[48:49], s[0:1], 40")]
        pro[len(pro) - 1:len(pro) - 1] = [raw("s_memrealtime s[62:63]"), raw("s_memtime s[82:83]"), raw("s_mov_b32 s50, 0x100000"), raw("s_mov_b32 s51, 0x20000")]
        e = len(body) - 1
        body[e:e] = [raw("s_mov_b64 s[64:65], s[66:67]"), raw("s_mov_b64 s[66:67], s[68:69]"), raw("s_memrealtime s[68:69]"),
                     raw("s_mov_b64 s[84:85], s[86:87]"), raw("s_mov_b64 s[86:87], s[88:89]"), raw("s_memtime s[88:89]")]
        e = len(tail) - 2
        x = ["s_waitcnt vmcnt(0)", "s_memrealtime s[70:71]", "s_memtime s[90:91]", "s_waitcnt lgkmcnt(0)",
             "s_cmp_lg_u32 s20, 0", "s_cbranch_scc1 L_end", "s_lshl_b32 s74, s2, 6"]
        for k in range(6):
            x += ["v_mov_b32 v0, s%d" % (60 + 2 * k), "buffer_store_dword v0, off, s[48:51], s74 offset:%d" % (4 * k), "s_nop 1"]
            x += ["v_mov_b32 v0, s%d" % (80 + 2 * k), "buffer_store_dword v0, off, s[48:51], s74 offset:%d" % (32 + 4 * k), "s_nop 1"]
        tail[e:e] = [raw(y) for y in x]
    txt = HEADER.format(n=NAME)
    al = [raw(".p2align %d" % o.align, "label")] if o.align else []
    for x in pro + al + body + tail + slow:
        if x.drop: continue
        txt += ("" if x.kind == "label" else "    ") + x.text + "\n"
    txt += FOOTER.format(n=NAME)
    open(o.out, "w").write(txt)
    print(dict(Counter(x.kind for x in body if not x.drop)), file=sys.stderr)
    return 1 if errs else 0

if __name__ == "__main__":
    sys.exit(main())
```

```python
import sys, struct, math, argparse
from collections import Counter

NAME = "standalone__gqa_softmax__near_ridge"
def f2h(x): return "0x%08x" % struct.unpack("<I", struct.pack("<f", x))[0]

class I:
    __slots__ = ("text", "kind", "rd", "wr", "tag", "need", "site", "C", "reg", "drop", "vneed", "vsite")
    def __init__(s, text, kind, rd=(), wr=(), tag=None, need=None, C=(), reg=None, vneed=None):
        s.text = text; s.kind = kind; s.rd = frozenset(rd); s.wr = frozenset(wr)
        s.tag = tag; s.need = need; s.site = None; s.C = frozenset(C); s.reg = reg; s.drop = False
        s.vneed = vneed; s.vsite = None

A = 256
def R(a, n=1): return list(range(a, a + n))
def rn(a, n=1):
    p, i = ("a", a - A) if a >= A else ("v", a)
    return "%s%d" % (p, i) if n == 1 else "%s[%d:%d]" % (p, i, i + n - 1)
def lit(x): return str(x) if -16 <= x <= 64 else "0x%x" % x

def valu(op, d, *src, kind="valu"):
    rd = [x for x in src if isinstance(x, int)]
    return I("%s %s, %s" % (op, rn(d), ", ".join(rn(x) if isinstance(x, int) else x for x in src)), kind, rd=rd, wr=[d])
def trans(op, d, s): return valu(op, d, s, kind="trans")
def perm(n, a, b): return I("v_permlane%d_swap_b32 %s, %s" % (n, rn(a), rn(b)), "perm", rd=[a, b], wr=[a, b])
def salu(t, m0=False): return I(t, "salu_m0" if m0 else "salu")
def mfma(d, a, b, first):
    return I("v_mfma_f32_16x16x32_bf16 %s, %s, %s, %s" % (rn(d, 4), rn(a, 4), rn(b, 4), "0" if first else rn(d, 4)), "mfma",
             rd=R(a, 4) + R(b, 4), wr=R(d, 4), C=() if first else R(d, 4))
def dsr128(d, a, off, tag=None, reg=None):
    return I("ds_read_b128 %s, %s offset:%d" % (rn(d, 4), rn(a), off), "ds_r", rd=[a], wr=R(d, 4), tag=tag, reg=reg)
def dsrtr(d, a, off, tag=None, reg=None):
    return I("ds_read_b64_tr_b16 %s, %s offset:%d" % (rn(d, 2), rn(a), off), "ds_r", rd=[a], wr=R(d, 2), tag=tag, reg=reg)
def dsw64(a, s, off, reg=None):
    return I("ds_write_b64 %s, %s offset:%d" % (rn(a), rn(s, 2), off), "ds_w", rd=[a] + R(s, 2), reg=reg)
def wait(l=None, v=None): return I(None, "wait", need=l, vneed=v)
def raw(t, kind="salu"): return I(t, kind)
def label(n): return I(n + ":", "label")
def nop(n): return I("s_nop %d" % n, "nop", tag=n)
def barrier(): return I("s_barrier", "barrier")

P0 = 0
ACC = [192, 208]
KA = [224, 226]; QA = 228; VA = 230; VOFF = 232; OLW = 236; OLR = 237
NEGM = 238; RINV = 242; T = 246
KSLOT = [5, 0, 1, 6, 2, 3, 4, 0, 1, 2, 3, 4]
VSLOT = [[0, 1, 2], [3, 4, 5], [6, 0, 1], [2, 3, 4]]
Q0 = A + 0; FR0 = A + 128; QS = A + 160; LACC = A + 192; ONES = A + 208; RB = A + 212

SQ = 4; SK = 8; SV = 12; SO = 16
S_W = 20; S_C = 21; S_TH = 22; S_WL = 23; S_NC = 24; S_R = 25; S_G = 26
S_KVC = 27; S_KB = 28; S_KBN = 29; S_QB = 30; S_PN = 31; S_KNN = 32; S_OPREV = 33
S_SO = 34; S_SO2 = 35; S_T = 36; S_T2 = 37; S_T3 = 38; S_U = 39
S_VB = 40; S_OB = 44
S_DBG = 48; S_ST = 56

QBYTES = 32 * 16 * 384 * 256 * 2
KBYTES = 32 * 8 * 384 * 256 * 2
SLOT = 16384
def srd(s): return "s[%d:%d]" % (s, s + 3)
COST = {"trans": 2, "label": 0}
DUR = {"trans": 8, "label": 0, "ds_w": 16, "dma": 20, "st": 24}
def dur(x):
    if x.kind == "wait" and x.tag == "free": return 0
    if x.kind == "nop": return 4 * (x.tag + 1)
    return DUR.get(x.kind, 4)
def cost(x):
    if isinstance(x, list): return sum(cost(y) for y in x)
    if x.kind == "wait" and x.tag == "free": return 0
    return COST.get(x.kind, 1)

class Gen:
    def __init__(g, o):
        g.o = o; g.LA = 6; g.NF = 8
        g.nst = 0

    def dma(g, typ, slot, base, add, tag):
        o = g.o
        s = {"K": SK, "Q": SQ, "V": SV}[typ]
        fl = o.qflag if typ == "Q" else o.kvflag
        fl = " " + fl if fl else ""
        L = [salu("s_add_u32 m0, s%d, %s" % (S_WL, lit(slot * SLOT)), m0=True),
             salu("s_add_u32 s%d, s%d, %s" % (S_SO, base, lit(add)))]
        for p in range(4):
            L.append(I("buffer_load_dwordx4 %s, %s, s%d offen%s%s lds" % (rn(VOFF + p), srd(s), S_SO, " offset:%d" % (1024 * p) if p else "", fl),
                       "dma", rd=[VOFF + p], tag=tag if p == 3 else None, reg=(slot, tag)))
        return L
    def dmaK(g, c, nxt): return g.dma("K", KSLOT[c], S_KBN if nxt else S_KB, c * SLOT, ("K", c))
    def dmaV(g, dc, kt): return g.dma("V", VSLOT[dc][kt], S_VB + dc, kt * 65536, ("V", dc, kt))
    def dmaQ(g, j, slot, base=S_QB): return g.dma("Q", slot, base, (j >> 2) * 16384 + (j & 3) * 128, ("Q", j))
    def qreg(g, j, bb, x): return Q0 + ((2 * (j >> 2) + bb) * 8 + 2 * (j & 3) + x) * 4
    def qmoves(g, j):
        return [valu("v_accvgpr_mov_b32", g.qreg(j, bb, x) + r, QS + 16 * j + 8 * bb + 4 * x + r)
                for bb in range(2) for x in range(2) for r in range(4)]
    def qreads(g, j, slot, qa=QA, slot0=6, spare=False):
        L = []
        for bb in range(2):
            for x in range(2):
                d = QS + 16 * j + 8 * bb + 4 * x if spare else g.qreg(j, bb, x)
                L.append(dsr128(d, qa + x, (slot - slot0) * SLOT + bb * 2048, tag=("QR", j), reg=(slot, ("Q", j), "priv")))
        return L

    def frag(g, f): return FR0 + 4 * (f % g.NF)
    def frag_reads(g, f):
        d = g.frag(f)
        if f < 192:
            u, ks = divmod(f, 8); c = u >> 1; sl = KSLOT[c]
            return [dsr128(d, KA[sl >> 2] + (ks & 1), (sl & 3) * SLOT + (ks >> 1) * 4096 + (u & 1) * 2048,
                           tag=("F", f), reg=(sl, ("K", c), "shared"))]
        D, j = divmod(f - 192, 12); dc = D >> 2; sl = VSLOT[dc][j >> 2]
        reg = (sl, ("V", dc, j >> 2), "shared")
        off = (sl & 3) * SLOT + (j & 3) * 4096
        return [dsrtr(d, VA + (sl >> 2), off, reg=reg), dsrtr(d + 2, VA + (sl >> 2), off + 2048, tag=("F", f), reg=reg)]
    @staticmethod
    def vconst(D): return (D & 3) << 5

    def mf(g, G, b):
        if G < 192:
            u, ks = divmod(G, 8)
            return mfma(ACC[u & 1] + 4 * b, g.frag(G), Q0 + (b * 8 + ks) * 4, ks == 0)
        D, j = divmod(G - 192, 12)
        return mfma(ACC[D & 1] + 4 * b, g.frag(G), P0 + (j * 4 + b) * 4, j == 0)
    def summf(g, j, b): return mfma(LACC + 4 * b, ONES, P0 + (j * 4 + b) * 4, j == 0)

    def fma(g, u, e): a = ACC[u & 1] + e; return valu("v_fma_f32", a, a, "s%d" % S_C, NEGM + (e >> 2))
    def exp(g, u, e): a = ACC[u & 1] + e; return trans("v_exp_f32", a, a)
    def cvt(g, u, k):
        a = ACC[u & 1] + 2 * k
        return valu("v_cvt_pk_bf16_f32", P0 + ((u >> 1) * 4 + (k >> 1)) * 4 + 2 * (u & 1) + (k & 1), a, a + 1)
    def xreduce(g, pad):
        m = [NEGM + b for b in range(4)]
        n = (lambda: [nop(1)]) if pad else (lambda: [])
        L = n() + [perm(32, m[0], m[2]), perm(32, m[1], m[3]),
             valu("v_max_f32", m[0], m[0], m[2]), valu("v_max_f32", m[1], m[1], m[3])] + [nop(1)] + \
            [perm(16, m[0], m[1]), valu("v_max_f32", m[0], m[0], m[1]),
             valu("v_mul_f32", m[0], "s%d" % S_NC, m[0]), valu("v_mov_b32", m[1], m[0])] + [nop(1)] + \
            [perm(16, m[0], m[1]), valu("v_mov_b32", m[2], m[0]), valu("v_mov_b32", m[3], m[1])] + [nop(0)] + \
            [perm(32, m[0], m[2])] + [perm(32, m[1], m[3])]
        return L
    def firstmax(g):
        L = []
        for b in range(4):
            a = ACC[0] + 4 * b
            L += [valu("v_max3_f32", NEGM + b, a, a + 1, a + 2), valu("v_max_f32", NEGM + b, NEGM + b, a + 3)]
        return L + g.xreduce(True)
    def sm_stream(g, u, last_cvt):
        L = []
        for k in range(8):
            L += [g.fma(u, 2 * k), g.fma(u, 2 * k + 1), g.exp(u, 2 * k)]
            if k: L.append(g.cvt(u, k - 1))
            L.append(g.exp(u, 2 * k + 1))
        if last_cvt: L += [g.cvt(u, 7)]
        return L
    def lfinal(g):
        L = []
        for b in range(4): L.append(valu("v_accvgpr_read_b32", T + b, LACC + 4 * b))
        L.append(valu("v_max3_f32", T + 4, T, T + 1, T + 2))
        L.append(trans("v_rcp_f32", RINV, T))
        L.append(valu("v_max_f32", T + 4, T + 4, T + 3))
        L.append(trans("v_rcp_f32", RINV + 1, T + 1))
        L.append(I("v_cmp_lt_f32 vcc, s%d, %s" % (S_TH, rn(T + 4)), "valu", rd=[T + 4]))
        L.append(trans("v_rcp_f32", RINV + 2, T + 2))
        L.append(trans("v_rcp_f32", RINV + 3, T + 3))
        return L

    def epilogue(g, D):
        t = D & 3
        L = [valu("v_xor_b32", OLW, lit((t ^ ((t - 1) & 3)) << 5), OLW)]
        for b in range(4):
            a = ACC[D & 1] + 4 * b
            for r in range(4): L.append(valu("v_mul_f32", a + r, RINV + b, a + r))
            L.append(valu("v_cvt_pk_bf16_f32", a, a, a + 1))
            L.append(valu("v_cvt_pk_bf16_f32", a + 1, a + 2, a + 3))
            L.append(dsw64(OLW, a, (b >> 1) * SLOT + (b & 1) * 2048, reg=(8 + (b >> 1), "O")))
        return L
    def readback(g):
        return [dsr128(RB + 4 * n, OLR, (n >> 2) * SLOT + (n & 3) * 1024, tag=("RB", n), reg=(8 + (n >> 2), "O", "priv")) for n in range(8)]
    def stores(g, base):
        fl = " " + g.o.oflag if g.o.oflag else ""
        L = []
        for n in range(8):
            x = []
            if n == 4: L.append([salu("s_add_u32 s%d, s%d, 0x4000" % (S_SO2, base))])
            x.append(wait(l=("RB", n))); x[-1].tag = "free"
            p = n & 3
            x.append(I("buffer_store_dwordx4 %s, %s, %s, s%d offen%s%s" % (rn(RB + 4 * n, 4), rn(VOFF + p), srd(SO), base if n < 4 else S_SO2,
                       " offset:%d" % (1024 * p) if p else "", fl), "st", rd=[VOFF + p] + R(RB + 4 * n, 4)))
            L.append(x)
        return L

    def item_vars(g):
        L = []
        a = lambda t: L.append(salu(t))
        a("s_and_b32 s%d, s%d, %d" % (S_T, S_PN, 3 if g.o.rot else 0))
        a("s_lshl_b32 s%d, s%d, 7" % (S_T, S_T))
        a("s_mul_i32 s%d, s%d, 196608" % (S_KVC, S_PN))
        a("s_lshr_b32 s%d, s%d, 5" % (S_KB, S_WL))
        a("s_add_u32 s%d, s%d, s%d" % (S_KB, S_KB, S_KVC))
        a("s_lshl2_add_u32 s%d, s%d, s%d" % (S_T3, S_WL, S_KVC))
        a("s_lshl_b32 s%d, s%d, 17" % (S_T2, S_G))
        a("s_lshl3_add_u32 s%d, s%d, s%d" % (S_T2, S_WL, S_T2))
        for dc in range(4):
            a("s_add_u32 s%d, s%d, s%d" % (S_VB + dc, S_T3, S_T))
            a("s_add_u32 s%d, s%d, s%d" % (S_OB + dc, S_T2, S_T))
            if dc < 3:
                a("s_add_u32 s%d, s%d, 128" % (S_T, S_T))
                a("s_and_b32 s%d, s%d, 0x180" % (S_T, S_T))
        L.append([salu("s_cmp_lt_u32 s%d, 2" % S_R),
                  salu("s_cselect_b32 s%d, 32, 0" % S_T),
                  salu("s_cselect_b32 s%d, %d, 0" % (S_KNN, KBYTES)),
                  salu("s_cselect_b32 s%d, %d, 0" % (SQ + 2, QBYTES))])
        a("s_add_u32 s%d, s%d, s%d" % (S_T, S_G, S_T))
        a("s_mul_hi_u32 s%d, s%d, 0x55555556" % (S_PN, S_T))
        a("s_lshl_b32 s%d, s%d, 17" % (S_QB, S_T))
        a("s_lshl3_add_u32 s%d, s%d, s%d" % (S_QB, S_WL, S_QB))
        a("s_mul_i32 s%d, s%d, 196608" % (S_KBN, S_PN))
        a("s_lshr_b32 s%d, s%d, 5" % (S_T, S_WL))
        a("s_add_u32 s%d, s%d, s%d" % (S_KBN, S_KBN, S_T))
        return L

    def stamp(g):
        if not g.o.stamps: return []
        k = g.nst; g.nst += 1
        return [raw("v_writelane_b32 v%d, s56, %d" % (T + 9, k)), raw("v_writelane_b32 v%d, s58, %d" % (T + 9, 32 + k)),
                raw("s_memtime s[56:57]", "smem"), raw("s_memrealtime s[58:59]", "smem")]
    def stamp_flush(g, row):
        L = g.stamp() + [raw("s_waitcnt lgkmcnt(0)", "waitall"),
             raw("v_writelane_b32 v%d, s56, 31" % (T + 9)), raw("v_writelane_b32 v%d, s58, 63" % (T + 9))]
        L += [raw("v_mbcnt_lo_u32_b32 v%d, -1, 0" % (T + 8)), raw("v_mbcnt_hi_u32_b32 v%d, -1, v%d" % (T + 8, T + 8)),
              raw("v_lshlrev_b32 v%d, 2, v%d" % (T + 8, T + 8))]
        L.append(salu("s_lshl_b32 s52, s2, 13"))
        L.append(salu("s_lshr_b32 s53, s%d, 1" % S_WL))
        L.append(salu("s_add_u32 s52, s52, s53"))
        if row is None:
            L.append(salu("s_lshl_b32 s53, s%d, 8" % S_R)); L.append(salu("s_add_u32 s52, s52, s53"))
        else:
            L.append(salu("s_add_u32 s52, s52, %d" % (row * 256)))
        L.append(raw("buffer_store_dword v%d, v%d, s[48:51], s52 offen" % (T + 9, T + 8), "salu"))
        g.nst = 0
        return L

    def body(g):
        o = g.o; LA = g.LA
        mfs = []; idx = {}; last = {}
        sums = {}
        for j in range(11):
            for b in range(4): sums[16 * (j + 1) + 4 * b + 3] = (j, b)
        s11 = {192 + o.s11 + 2 * b: (11, b) for b in range(4)}
        for G in range(384):
            for b in range(4):
                idx[(G, b)] = len(mfs); mfs.append(g.mf(G, b))
            for sm in (sums, s11):
                if G in sm: mfs.append(g.summf(*sm[G]))
            last[G] = len(mfs) - 1
        N = len(mfs)
        front = [[] for _ in range(N)]; gap = [[] for _ in range(N)]; end = [[] for _ in range(N)]
        VEC = ("valu", "trans", "perm", "nop")
        def flat(x): return x if isinstance(x, list) else [x]
        def isvec(x): return any(y.kind in VEC for y in flat(x))
        PRI = {"st": 1, "ds_r": 2, "dma": 3, "ds_w": 4}
        def order(F): return sorted(F, key=lambda y: PRI.get(y.kind, 0))
        def gtime(L):
            t = 4; floor = 16; prev = None
            for y in L:
                k = y.kind
                if k == "label" or (k == "wait" and y.tag == "free"): continue
                if k in ("valu", "perm"): t = max(t, 8) + 4
                elif k == "trans": t = max(t, 8) + 8
                elif k == "nop": t += 4 * (y.tag + 1)
                elif k in ("branch", "barrier"): t += 10
                elif k in PRI:
                    t = max(t, 8)
                    if prev in ("valu", "perm", "trans"): t += 8
                    if k == "ds_r": t += 16 if prev == "ds_w" else 4
                    elif k == "ds_w": t += 12
                    elif k == "dma": t += o.ddc if prev == "dma" else 16
                    else: floor = max(floor, t) + (o.stc if floor == 16 else 24); t += 4
                else: t += 4
                prev = k
            return max(floor, t)
        def now(i): return gtime(order(front[i]) + gap[i] + end[i])
        def incr(i, x):
            if isvec(x): return gtime(order(front[i]) + gap[i] + flat(x) + end[i]) - now(i)
            return gtime(order(front[i] + flat(x)) + gap[i] + end[i]) - now(i)
        def put(i, x): (gap if isvec(x) else front)[i].extend(flat(x))
        def putend(i, x): end[i].append(x)
        def cls(x): return 9 if isvec(x) else PRI.get(flat(x)[0].kind, 0) if flat(x)[0].tag != "free" else 1
        def place(L, g0, g1, lo=None, hi=None, win=3):
            lo = idx[(g0, 0)] if lo is None else lo
            hi = last[g1] if hi is None else hi
            tot = sum(cost(x) for x in L); acc = 0; prev = lo; pc = -1
            for n, x in enumerate(L):
                tgt = lo + int((acc + 0.5 * cost(x)) * (hi - lo + 1) / tot); acc += cost(x)
                need = sum(1 for p, q in zip(L[n:], L[n + 1:]) if cls(q) < cls(p))
                top = hi - need
                c0 = max(prev + (1 if cls(x) < pc else 0), min(tgt - win, top))
                c1 = max(c0, min(top, tgt + win))
                assert c0 <= hi, (flat(x)[0].text, g0, g1)
                best = min(range(c0, c1 + 1), key=lambda i: (incr(i, x), 1 if (cls(x) in (0, 2, 9) and not front[i] and not gap[i]) else 0, abs(i - tgt)))
                put(best, x); prev = best; pc = cls(x)
        bars = {}
        for s in range(12): bars[(16 * s - 4) % 384] = [("K", s)]
        for dc in range(4): bars[192 + 48 * dc - 4] = [("V", dc, kt) for kt in range(3)]
        for G in range(0, 384, 4):
            put(idx[((G - 1) % 384, 3)], wait(l=("F", G + 3), v=bars.get(G)))
            if G in bars: put(last[G - 1], barrier())
        for G in list(range(16, 192, 16)) + list(range(192, 384, 12)):
            end[last[G - 1]] += g.stamp()
        for f in range(384):
            G = (f - LA) % 384; k0 = 0
            for e in range(4):
                if (f - e - 4) % 384 in bars: G = (f - e - 4 + (e >> 1)) % 384; k0 = 2 * (e & 1)
            for k, x in enumerate(g.frag_reads(f)): put(idx[(G, k0 + k)], x)
        for D in range(16):
            G = 192 + 12 * D - LA - 1
            x = [valu("v_xor_b32", VA + r, lit(g.vconst(D) ^ g.vconst((D - 1) % 16)), VA + r) for r in range(2)]
            if D: place(x, None, None, lo=idx[(G, 1)], hi=last[G], win=4)
            else: vx0 = x
        for u in range(2, 24):
            for k in range(8):
                G = 8 * u + k
                put(idx[(G, 0)], g.fma(u - 1, 2 * k))
                put(idx[(G, 1)], g.exp(u - 1, 2 * k))
                put(idx[(G, 2)], g.cvt(u - 1, k - 1) if k else g.cvt(u - 2, 7))
                put(idx[(G, 2)], g.fma(u - 1, 2 * k + 1))
                put(idx[(G, 3)], g.exp(u - 1, 2 * k + 1))
        put(idx[(192, 2)], g.cvt(22, 7))
        place(vx0, 186, 187, win=8)
        place(g.firstmax() + g.sm_stream(0, False), 8, 15, win=1)
        lo = idx[(192, 0)]
        for b in range(4):
            e = 4 * b
            st = [g.fma(23, e), g.fma(23, e + 1), g.exp(23, e), g.exp(23, e + 1), g.fma(23, e + 2), g.fma(23, e + 3),
                  g.exp(23, e + 2), g.exp(23, e + 3), g.cvt(23, 2 * b), g.cvt(23, 2 * b + 1)]
            hi = idx[(192 + o.s11 + 2 * b, 1)]
            if b < 3: hi = min(hi, lo + (idx[(192 + o.s11 + 6, 1)] - lo) // (4 - b))
            place(st, None, None, lo=lo, hi=hi, win=1)
            lo = hi + 1
        place(g.lfinal(), 192 + o.s11 + 7, 203, lo=idx[(192 + o.s11 + 7, 1)], win=1)
        putend(last[203], raw("s_cbranch_vccnz L_slow", "branch")); end[last[203]].append(label("L_back"))
        W = []
        qs = dict(zip(o.qsteps, range(8)))
        qslot = [7, 8, 9, 6, 7, 8, 7, 7]
        kv = [g.dmaK(c, False) for c in range(4, 12)] + [g.dmaV(dc, kt) for dc in range(4) for kt in range(3)] + [g.dmaK(c, True) for c in range(4)]
        kv[20] = [salu("s_mov_b32 s%d, s%d" % (SK + 2, S_KNN))] + kv[20]
        for s in range(24):
            a0 = max(16 * s - 4, 0)
            n = 8 if s in qs else o.kw
            W.append((kv[s], a0, min(a0 + n - 1, 16 * s + 11, 374)))
            if s in qs: W.append((g.dmaQ(qs[s], qslot[qs[s]]), 16 * s + 4, 16 * s + 11))
        for dc in range(3):
            G1 = 192 + 48 * (dc + 1)
            place(g.stores(S_OB + dc), G1 + 14, min(G1 + o.stw, 374), win=o.dwin)
        place(g.stores(S_OPREV) + [salu("s_mov_b32 s%d, %d" % (SO + 2, QBYTES))], o.st0, o.st1, win=o.dwin)
        for t, a, b in W: place(t, a, b, win=o.dwin)
        for D in range(16):
            G1 = (192 + 12 * (D + 1)) % 384
            if D == 0:
                place([wait(v=[("Q", 5)])] + g.qreads(5, 8) + g.qreads(2, 9) + g.qreads(4, 7) + g.qreads(3, 6), G1, G1 + 3, win=1)
                place(g.epilogue(D), G1 + 4, G1 + 11, win=1)
            elif D == 15:
                place(g.epilogue(D), 0, 5, win=1)
                place(g.readback(), 6, 7, win=1)
            elif D & 3 == 3:
                place(g.epilogue(D), G1, G1 + 7)
                place(g.readback(), G1 + 8, G1 + 11)
            else:
                place(g.epilogue(D), G1, G1 + 11)
        for j in range(2):
            G1 = 16 * o.qsteps[4 + j] + 4
            place([wait(v=[("Q", j)])] + g.qreads(j, qslot[j], spare=True), G1 - 20, G1 - 8, win=8)
        place(g.qmoves(0) + g.qmoves(1), 216, 239, win=4)
        G1 = 16 * o.qsteps[7] + 4
        place([wait(v=[("Q", 6)])] + g.qreads(6, 7), G1 - 12, G1 - 8)
        place([wait(v=[("Q", 7)])] + g.qreads(7, 7), 352, 370)
        if o.warm:
            hops = list(range(o.warm // 2, 384, o.warm))
            for k, G in enumerate(hops):
                place([[label("L_hop%d" % k), raw("s_cbranch_execz %s" % ("L_hop%d" % (k + 1) if k + 1 < len(hops) else "L_hopend"), "branch")]], G, G, win=4)
        upd = [salu("s_mov_b32 s%d, s%d" % (S_OPREV, S_OB + 3)),
               salu("s_add_u32 s%d, s%d, 32" % (S_G, S_G)),
               salu("s_add_u32 s%d, s%d, 1" % (S_R, S_R))] + g.item_vars()
        place(upd, 375, 383, hi=idx[(383, 1)])
        put(idx[(383, 2)], salu("s_cmp_lt_u32 s%d, 3" % S_R))
        out = [label("L_item")]
        for i in range(N):
            out.append(mfs[i]); out += order(front[i]) + gap[i] + end[i]
        if o.stamps:
            out += g.stamp_flush(None) + [salu("s_cmp_lt_u32 s%d, 3" % S_R)]
        out.append(raw("s_cbranch_scc1 L_item", "branch"))
        print("gaps %d, est cycles phase 1 %d, phase 2 %d" % (N, sum(now(i) for i in range(idx[(192, 0)])), sum(now(i) for i in range(idx[(192, 0)], N))), file=sys.stderr)
        return out

    def prologue(g):
        o = g.o
        L = []
        a = lambda t: L.append(salu(t))
        v = lambda *x, **k: L.append(valu(*x, **k))
        a("s_cmp_ge_u32 s2, 256")
        L.append(raw("s_cbranch_scc1 L_end", "branch"))
        L.append(raw("s_load_dwordx4 s[4:7], s[0:1], 0", "smem"))
        L.append(raw("s_load_dwordx4 s[12:15], s[0:1], 16", "smem"))
        if o.stamps:
            L.append(raw("s_load_dwordx2 s[48:49], s[0:1], 40", "smem"))
            L.append(raw("s_memtime s[56:57]", "smem")); L.append(raw("s_memrealtime s[58:59]", "smem"))
        t = [T + i for i in range(8)]
        lane, w = t[0], t[1]
        v("v_lshrrev_b32", w, "6", 0)
        v("v_and_b32", lane, "63", 0)
        L.append(I("v_readfirstlane_b32 s%d, v%d" % (S_W, w), "rfl", rd=[w]))
        a("s_and_b32 s%d, s2, 7" % S_T)
        a("s_mul_i32 s%d, s%d, 96" % (S_T, S_T))
        a("s_lshr_b32 s%d, s2, 3" % S_G)
        a("s_add_u32 s%d, s%d, s%d" % (S_G, S_G, S_T))
        a("s_mul_hi_u32 s%d, s%d, 0x55555556" % (S_PN, S_G))
        a("s_mov_b32 s%d, 0" % S_R)
        a("s_lshl_b32 s%d, s%d, 12" % (S_WL, S_W))
        v("v_lshrrev_b32", t[2], "3", lane)
        v("v_and_b32", t[3], "7", lane)
        v("v_xor_b32", t[3], t[3], t[2])
        v("v_lshlrev_b32", t[3], "4", t[3])
        v("v_lshl_add_u32", VOFF, t[2], "9", t[3])
        for p in range(1, 4): v("v_add_u32", VOFF + p, lit(3072 * p), VOFF)
        if o.cpre:
            a("s_getpc_b64 s[52:53]")
            v("v_lshlrev_b32", 2, "7", 0)
            v("v_mov_b32", 3, "s53")
            L.append(I("v_add_co_u32 v2, vcc, s52, v2", "valu", rd=[2], wr=[2]))
            L.append(nop(1))
            L.append(I("v_addc_co_u32 v3, vcc, 0, v3, vcc", "valu", rd=[3], wr=[3]))
            L.append(I("global_load_dword v8, v[2:3], off", "ld", rd=[2, 3]))
        iv = []
        for x in g.item_vars(): iv.extend(x if isinstance(x, list) else [x])
        cut = [i for i, x in enumerate(iv) if x.text.startswith("s_cmp_lt_u32")][0]
        L += iv[:cut]
        L.append(raw("s_waitcnt lgkmcnt(0)", "waitall"))
        a("s_mov_b32 s8, s6"); a("s_mov_b32 s9, s7")
        a("s_mov_b32 s7, 0x20000"); a("s_mov_b32 s11, 0x20000"); a("s_mov_b32 s10, %d" % KBYTES)
        a("s_mov_b32 s6, %d" % QBYTES)
        pslot = [1, 6, 2, 3, 4, 7, 8, 9]
        first = g.dmaK(0, False)
        for j in range(8): first += g.dmaQ(j, pslot[j], base=S_T2)
        if o.prio:
            tab = sum(v << (4 * i) for i, v in enumerate(o.prio))
            pre = [salu("s_and_b32 s%d, s2, 1" % S_U), salu("s_lshr_b32 s%d, s2, 6" % S_SO2),
                   salu("s_lshl2_add_u32 s%d, s%d, s%d" % (S_U, S_U, S_SO2)), salu("s_lshl_b32 s%d, s%d, 2" % (S_U, S_U)),
                   salu("s_lshr_b32 s%d, 0x%x, s%d" % (S_U, tab, S_U)), salu("s_and_b32 s%d, s%d, 15" % (S_U, S_U))]
            out = []; k = 0
            for x in first:
                out.append(x)
                if x.kind == "dma":
                    k += 1
                    if k % 2 == 0 and k // 2 <= max(o.prio):
                        out += [salu("s_cmp_lt_u32 s%d, %d" % (S_U, k // 2)), raw("s_cbranch_scc1 L_pw%d" % k, "branch"),
                                raw("s_waitcnt vmcnt(0)"), label("L_pw%d" % k)]
            e = [i for i, x in enumerate(L) if x.kind == "waitall"][0]
            L[e:e] = pre
            first = out
        L += first
        L += g.dmaK(1, False)
        a("s_mov_b32 s16, s14"); a("s_mov_b32 s17, s15")
        a("s_mov_b32 s15, 0x20000"); a("s_mov_b32 s19, 0x20000")
        a("s_mov_b32 s14, %d" % KBYTES); a("s_mov_b32 s18, 0")
        if o.stamps: a("s_mov_b32 s50, 0x1000000"); a("s_mov_b32 s51, 0x20000")
        L += iv[cut:]
        if o.tpre:
            v("v_and_b32", 10, "3", 0)
            v("v_min_u32", 10, "2", 10)
            v("v_lshlrev_b32", 10, "5", 10)
            v("v_add_u32", 10, "s%d" % S_G, 10)
            a("s_mov_b32 s%d, 0x55555556" % S_T)
            v("v_mul_hi_u32", 11, "s%d" % S_T, 10)
            v("v_mul_u32_u24", 11, "0x30000", 11)
            v("v_bfe_u32", 12, 0, "2", "1")
            v("v_mul_u32_u24", 12, "0x2ff80", 12)
            v("v_add_u32", 11, 11, 12)
            v("v_lshlrev_b32", 10, "17", 10)
            L.append(I("buffer_load_dword v13, v11, %s, 0 offen" % srd(SV), "ld", rd=[11]))
            L.append(I("buffer_load_dword v14, v11, %s, 0 offen" % srd(SK), "ld", rd=[11]))
            L.append(I("buffer_load_dword v15, v10, %s, 0 offen" % srd(SQ), "ld", rd=[10]))
        a("s_mov_b32 s%d, s%d" % (S_OPREV, S_OB + 3))
        c = math.log2(math.e) / 16.0
        a("s_mov_b32 s%d, %s" % (S_C, f2h(c)))
        a("s_mov_b32 s%d, %s" % (S_NC, f2h(-c)))
        a("s_mov_b32 s%d, %s" % (S_TH, f2h(2.0 ** o.thr)))
        n16, g4 = t[2], t[3]
        v("v_and_b32", n16, "15", lane)
        v("v_lshrrev_b32", g4, "4", lane)
        v("v_and_b32", t[4], "7", lane)
        v("v_xor_b32", t[5], g4, t[4])
        v("v_lshlrev_b32", t[5], "4", t[5])
        v("v_lshl_add_u32", KA[0], n16, "7", t[5])
        v("v_xor_b32", KA[0] + 1, "64", KA[0])
        for x in range(2):
            v("v_add_u32", KA[1] + x, "0x10000", KA[0] + x)
            v("v_add_u32", 4 + x, "s%d" % S_WL, KA[0] + x)
            v("v_add_u32", QA + x, lit(6 * SLOT), 4 + x)
            v("v_add_u32", 4 + x, lit(SLOT), 4 + x)
        v("v_lshrrev_b32", t[5], "1", g4)
        v("v_xor_b32", t[5], t[5], t[4])
        v("v_lshlrev_b32", t[5], "4", t[5])
        v("v_lshl_add_u32", t[5], n16, "7", t[5])
        v("v_and_b32", t[6], "1", g4)
        v("v_lshl_add_u32", t[5], t[6], "3", t[5])
        v("v_xor_b32", t[5], "64", t[5])
        a("s_add_u32 s%d, s%d, %s" % (S_T, S_WL, lit(8 * SLOT)))
        v("v_add_u32", OLW, "s%d" % S_T, t[5])
        v("v_lshlrev_b32", t[5], "4", lane)
        v("v_add_u32", OLR, "s%d" % S_T, t[5])
        v("v_lshrrev_b32", t[5], "2", lane)
        v("v_and_b32", t[6], "7", t[5])
        v("v_bfe_u32", t[7], lane, "1", "1")
        v("v_xor_b32", t[6], t[6], t[7])
        v("v_lshlrev_b32", t[6], "4", t[6])
        v("v_lshl_add_u32", t[6], t[5], "7", t[6])
        v("v_and_b32", t[7], "1", lane)
        v("v_lshl_add_u32", t[6], t[7], "3", t[6])
        v("v_xor_b32", VA, lit(g.vconst(15)), t[6])
        v("v_add_u32", VA + 1, "0x10000", VA)
        v("v_and_b32", t[5], "3", lane)
        v("v_mov_b32", t[6], "0x3f803f80")
        L.append(I("v_cmp_eq_u32 vcc, 0, v%d" % t[5], "valu", rd=[t[5]]))
        for b in range(4): v("v_mov_b32", RINV + b, "0")
        L.append(I("v_cndmask_b32 v%d, 0, v%d, vcc" % (t[6], t[6]), "valu", rd=[t[6]], wr=[t[6]]))
        for r in range(4): v("v_accvgpr_write_b32", ONES + r, t[6])
        if o.warm:
            L += [salu("s_mov_b64 exec, 0"), raw("s_branch L_hop0", "branch"), label("L_hopend"), salu("s_mov_b64 exec, -1")]
        for j in range(8):
            L.append(wait(v=[("Q", j)]))
            L += g.qreads(j, pslot[j], qa=4, slot0=1) if pslot[j] < 6 else g.qreads(j, pslot[j])
            if j == 1:
                L.append(wait(l=("QR", 1)))
                L += g.dmaK(2, False) + g.dmaK(3, False)
        L.append(barrier())
        for f in range(g.LA): L += g.frag_reads(f)
        if o.stamps: L += g.stamp_flush(0)
        L.append(wait(l=("F", 3)))
        return L

    def tail(g):
        L = [nop(7)]
        L += g.epilogue(15) + g.readback()
        for x in g.stores(S_OPREV): L += x
        if g.o.stamps:
            L.append(raw("s_waitcnt vmcnt(0)", "salu"))
            L += g.stamp_flush(4)
        L += [label("L_end"), raw("s_endpgm")]
        return L

    def slow(g):
        L = [label("L_slow"), nop(7)]
        ko = T + 5
        L += [I("v_mbcnt_lo_u32_b32 v%d, -1, 0" % ko, "valu", wr=[ko]), I("v_mbcnt_hi_u32_b32 v%d, -1, v%d" % (ko, ko), "valu", rd=[ko], wr=[ko]),
              valu("v_lshrrev_b32", T + 6, "4", ko), valu("v_and_b32", ko, "15", ko), valu("v_lshlrev_b32", ko, "9", ko),
              valu("v_lshl_add_u32", ko, T + 6, "4", ko)]
        def stile():
            X = []
            for ks in range(8):
                X.append(I("buffer_load_dwordx4 %s, %s, %s, s%d offen offset:%d" % (rn(RB + 4 * ks, 4), rn(ko), srd(SK), S_T, 64 * ks), "ld", rd=[ko]))
            X.append(salu("s_add_u32 s%d, s%d, 0x2000" % (S_T, S_T)))
            X.append(raw("s_waitcnt vmcnt(0)", "salu"))
            for ks in range(8):
                for b in range(4): X.append(mfma(ACC[1] + 4 * b, RB + 4 * ks, Q0 + (b * 8 + ks) * 4, ks == 0))
            X.append(nop(7))
            return X
        for b in range(4): L.append(valu("v_mov_b32", NEGM + b, "0xff800000"))
        L += [salu("s_mov_b32 s%d, s%d" % (S_T, S_KVC)), salu("s_mov_b32 s%d, 0" % S_U), label("L_slowA")]
        L += stile()
        for b in range(4):
            a = ACC[1] + 4 * b
            L += [valu("v_max3_f32", NEGM + b, NEGM + b, a, a + 1), valu("v_max3_f32", NEGM + b, NEGM + b, a + 2, a + 3)]
        L += [salu("s_add_u32 s%d, s%d, 1" % (S_U, S_U)), salu("s_cmp_lt_u32 s%d, 24" % S_U), raw("s_cbranch_scc1 L_slowA", "branch")]
        L += g.xreduce(True)
        for r in range(16): L.append(valu("v_accvgpr_write_b32", LACC + r, "0"))
        L += [salu("s_mov_b32 s%d, s%d" % (S_T, S_KVC)), salu("s_mov_b32 s%d, 0" % S_U), label("L_slowB")]
        for i in range(176): L.append(valu("v_mov_b32", P0 + i, P0 + i + 16))
        for half in range(2):
            L += stile()
            for e in range(16): L.append(g.fma(1, e))
            for e in range(16): L.append(g.exp(1, e))
            for k in range(8):
                a = ACC[1] + 2 * k
                L.append(valu("v_cvt_pk_bf16_f32", P0 + (44 + (k >> 1)) * 4 + 2 * half + (k & 1), a, a + 1))
        L.append(nop(1))
        for b in range(4): L.append(mfma(LACC + 4 * b, ONES, P0 + (44 + b) * 4, False))
        L += [salu("s_add_u32 s%d, s%d, 1" % (S_U, S_U)), salu("s_cmp_lt_u32 s%d, 12" % S_U), raw("s_cbranch_scc1 L_slowB", "branch")]
        L.append(nop(7))
        for b in range(4): L.append(valu("v_accvgpr_read_b32", T + b, LACC + 4 * b))
        for b in range(4): L.append(trans("v_rcp_f32", RINV + b, T + b))
        L.append(valu("v_xor_b32", ko, lit(g.vconst(0) ^ g.vconst(1)), VA))
        for j0 in (0, 6):
            for j in range(j0, j0 + 6):
                L += [dsrtr(RB + 4 * (j - j0), ko, j * 4096), dsrtr(RB + 4 * (j - j0) + 2, ko, j * 4096 + 2048)]
            L.append(raw("s_waitcnt lgkmcnt(0)", "waitall"))
            for j in range(j0, j0 + 6):
                for b in range(4): L.append(mfma(ACC[0] + 4 * b, RB + 4 * (j - j0), P0 + (j * 4 + b) * 4, j == 0))
        L += [nop(7), raw("s_branch L_back", "branch")]
        return L

LK = ("ds_r", "ds_w"); VK = ("dma", "st", "ld")
def find(q, tag):
    for k in range(len(q) - 1, -1, -1):
        if q[k].tag == tag: return k
    raise KeyError(tag)

def resolve(path):
    lv = {}; vv = {}
    lq = []; vq = []
    for x in path:
        if x.kind in LK: lq.append(x)
        elif x.kind in VK: vq.append(x)
        elif x.kind == "wait":
            if x.need is not None:
                lv[id(x)] = min(lv.get(id(x), 15), len(lq) - 1 - find(lq, x.need))
            for t in (x.vneed or []):
                vv[id(x)] = min(vv.get(id(x), 63), len(vq) - 1 - find(vq, t))
    for x in path:
        if x.kind == "wait": x.site = lv.get(id(x)); x.vsite = vv.get(id(x))
    need_l = set(); need_v = set()
    lq = []; vq = []; ld = 0; vd = 0
    for x in path:
        if x.kind in LK: lq.append(x)
        elif x.kind in VK: vq.append(x)
        elif x.kind == "waitall": ld = len(lq)
        elif x.kind == "wait":
            if x.need is not None and find(lq, x.need) >= ld:
                need_l.add(id(x)); ld = max(ld, len(lq) - x.site)
            if x.vneed and max(find(vq, t) for t in x.vneed) >= vd:
                need_v.add(id(x)); vd = max(vd, len(vq) - x.vsite)
    for x in path:
        if x.kind == "wait":
            if id(x) not in need_l: x.site = None
            if id(x) not in need_v: x.vsite = None
            parts = (["vmcnt(%d)" % x.vsite] if x.vsite is not None else []) + (["lgkmcnt(%d)" % x.site] if x.site is not None else [])
            x.drop = not parts
            x.text = "s_waitcnt " + " ".join(parts)

def check(path, strict):
    t = 0; last_mfma = -99; m0_t = -99
    lq = []; ld = 0; vq = []; vd = 0
    wr_mfma = {}; wr_valu = {}; wr_trans = {}; rdC = {}; st_data = {}
    slot_tile = {}
    vd_bar = 0; ld_bar = 0
    errs = [0]
    def err(msg, x):
        errs[0] += 1
        if errs[0] < 30: print("HAZARD:", msg, "|", x.text, file=sys.stderr)
    for x in path:
        if x.kind == "label" or x.drop: continue
        if x.kind == "mfma" and not strict: t = max(t, last_mfma + 4)
        touched = x.rd | x.wr | x.C
        for p in lq[ld:]:
            if p.kind == "ds_r" and (p.wr & touched): err("unwaited ds_read %s" % p.text, x)
        isv = x.kind in ("valu", "trans", "perm", "rfl")
        for r in touched:
            if r in wr_mfma:
                tt, full = wr_mfma[r]
                if x.kind == "mfma" and r not in x.rd and x.wr == full: continue
                if t - tt - 1 < 8: err("mfma D -> use after %d states (%s)" % (t - tt - 1, rn(r)), x)
        if x.kind in ("mfma", "perm"):
            for r in (x.rd | x.C):
                if r in wr_valu and t - wr_valu[r] - 1 < 2: err("valu -> %s" % x.kind, x)
        if x.kind == "rfl":
            for r in x.rd:
                if r in wr_valu and t - wr_valu[r] - 1 < 1: err("valu -> readfirstlane", x)
        if isv and x.kind != "trans":
            for r in x.rd:
                if r in wr_trans and t - wr_trans[r] - 1 < 1: err("trans -> valu", x)
        if isv:
            for r in x.wr:
                if r in rdC and t - rdC[r] - 1 < 3: err("mfma C WAR", x)
        for r in x.wr:
            if r in st_data and t - st_data[r] - 1 < 2: err("store data WAR", x)
        if x.kind == "dma" and t - m0_t - 1 < 1: err("m0 -> dma", x)
        if x.kind == "dma":
            slot, tag = x.reg
            for k, p in enumerate(lq):
                if p.reg and p.reg[0] == slot:
                    lim = ld_bar if (p.kind == "ds_r" and p.reg[2] == "shared") else ld
                    if k >= lim: err("dma into slot %d before %s is known done" % (slot, p.text), x); break
            slot_tile[slot] = (tag, len(vq))
        if x.kind == "ds_r" and x.reg:
            slot, tag, mode = x.reg
            cur = slot_tile.get(slot)
            if tag == "O":
                if cur and cur[0] != "O": err("read-back of slot %d holding %s" % (slot, cur[0]), x)
            elif not cur or cur[0] != tag: err("slot %d holds %s, wanted %s" % (slot, cur, tag), x)
            elif cur[1] >= (vd_bar if mode == "shared" else vd): err("tile %s not known landed" % (tag,), x)
        if x.kind == "ds_w" and x.reg:
            slot = x.reg[0]
            cur = slot_tile.get(slot)
            if cur and cur[0] != "O":
                if cur[1] >= vd: err("staging write with a dma in flight", x)
                n = sum(1 for p in lq if p.reg and p.kind == "ds_r" and p.reg[:2] == (slot, cur[0]))
                if n % 4 or not n: err("staging write before Q reads", x)
            slot_tile[slot] = ("O", -1)
        if x.kind == "salu_m0": m0_t = t
        if x.kind == "mfma":
            last_mfma = t
            for r in x.wr: wr_mfma[r] = (t, x.wr); wr_valu.pop(r, None)
            for r in x.C: rdC[r] = t
        if isv:
            for r in x.wr:
                wr_valu[r] = t; wr_mfma.pop(r, None)
                if x.kind == "trans": wr_trans[r] = t
                else: wr_trans.pop(r, None)
        if x.kind == "st":
            for r in x.rd: st_data[r] = t
        if x.kind in LK: lq.append(x)
        if x.kind in VK: vq.append(x)
        if x.kind == "waitall": ld = len(lq)
        if x.kind == "wait":
            if x.site is not None: ld = max(ld, len(lq) - x.site)
            if x.vsite is not None: vd = max(vd, len(vq) - x.vsite)
        if x.kind == "barrier": vd_bar = vd; ld_bar = ld
        t += (x.tag + 1) if x.kind == "nop" else 1
    return errs[0]

HEADER = """; GQA attention forward, B=32 Hq=16 Hkv=8 Sq=Sk=384 D=256, bf16 in/out (emitted by my generator script).
; One persistent 4-wave workgroup per CU, three items of 256 query rows (64 per wave), K/V/Q staged by LDS-DMA.
; Per item: S^T = K Q^T in 16-key units, P = exp2(c*S - c*m) kept in registers as bf16, row sums by MFMA,
; then O^T = V^T P^T per 16-column tile.  m is the row max over the first 16 keys (never above the true max);
; @launch grid=(256,1,1) block=(256,1,1) lds=163840
.amdgcn_target "amdgcn-amd-amdhsa--gfx950"
.text
.globl {n}_kernel
.p2align 8
.type {n}_kernel,@function
{n}_kernel:
"""
FOOTER = """.section .rodata,"a"
.p2align 6
.amdhsa_kernel {n}_kernel
  .amdhsa_next_free_vgpr 512
  .amdhsa_next_free_sgpr 102
  .amdhsa_accum_offset 256
  .amdhsa_group_segment_fixed_size 0
  .amdhsa_kernarg_size 48
  .amdhsa_user_sgpr_count 2
  .amdhsa_user_sgpr_kernarg_segment_ptr 1
  .amdhsa_system_sgpr_workgroup_id_x 1
.end_amdhsa_kernel
"""

def main():
    ap = argparse.ArgumentParser()
    ap.add_argument("-o", dest="out", default="cdna_kernels/%s.s" % NAME)
    ap.add_argument("--thr", type=float, default=30.0)
    ap.add_argument("--qflag", default="")
    ap.add_argument("--kvflag", default="")
    ap.add_argument("--oflag", default="")
    ap.add_argument("--rot", type=int, default=1)
    ap.add_argument("--s11", type=int, default=3)
    ap.add_argument("--st0", type=int, default=16)
    ap.add_argument("--st1", type=int, default=40)
    ap.add_argument("--qsteps", type=lambda s: [int(x) for x in s.split(",")], default=[4, 5, 6, 8, 9, 10, 13, 16])
    ap.add_argument("--stamps", type=int, default=0)
    ap.add_argument("--strict", type=int, default=1)
    ap.add_argument("--align", type=int, default=0)
    ap.add_argument("--drop", default="")
    ap.add_argument("--light", type=int, default=0)
    ap.add_argument("--cpre", type=int, default=0)
    ap.add_argument("--warm", type=int, default=0)
    ap.add_argument("--q2a", type=int, default=214)
    ap.add_argument("--vw", type=int, default=6)
    ap.add_argument("--stw", type=int, default=40)
    ap.add_argument("--dwin", type=int, default=3)
    ap.add_argument("--cw", type=int, default=1)
    ap.add_argument("--prio", type=lambda s: [int(x) for x in s.split(",")], default=None)
    ap.add_argument("--kw", type=int, default=10)
    ap.add_argument("--ddc", type=int, default=22)
    ap.add_argument("--tpre", type=int, default=0)
    ap.add_argument("--stc", type=int, default=21)
    ap.add_argument("--rd2", type=int, default=0)
    ap.add_argument("--cv", type=int, default=1)
    o = ap.parse_args()
    COST.update({"ds_w": o.cw, "dma": 8, "st": 8})
    g = Gen(o)
    body = g.body()
    pro, tail, slow = g.prologue(), g.tail(), g.slow()
    path = pro + body + body + tail
    resolve(path)
    errs = check(path, o.strict) + check(slow, o.strict)
    if errs: print("%d hazard findings" % errs, file=sys.stderr)
    drop = set(o.drop.split(",")) if o.drop else set()
    body = [x for x in body if x.kind not in drop]
    if "valu" in drop: body = [x for x in body if "vccnz" not in (x.text or "")]
    if o.light:
        pro[2:2] = [raw("s_memrealtime s[60:61]"), raw("s_memtime s[80:81]"), raw("s_load_dwordx2 s[48:49], s[0:1], 40")]
        pro[len(pro) - 1:len(pro) - 1] = [raw("s_memrealtime s[62:63]"), raw("s_memtime s[82:83]"), raw("s_mov_b32 s50, 0x100000"), raw("s_mov_b32 s51, 0x20000")]
        e = len(body) - 1
        body[e:e] = [raw("s_mov_b64 s[64:65], s[66:67]"), raw("s_mov_b64 s[66:67], s[68:69]"), raw("s_memrealtime s[68:69]"),
                     raw("s_mov_b64 s[84:85], s[86:87]"), raw("s_mov_b64 s[86:87], s[88:89]"), raw("s_memtime s[88:89]")]
        e = len(tail) - 2
        x = ["s_waitcnt vmcnt(0)", "s_memrealtime s[70:71]", "s_memtime s[90:91]", "s_waitcnt lgkmcnt(0)",
             "s_cmp_lg_u32 s20, 0", "s_cbranch_scc1 L_end", "s_lshl_b32 s74, s2, 6"]
        for k in range(6):
            x += ["v_mov_b32 v0, s%d" % (60 + 2 * k), "buffer_store_dword v0, off, s[48:51], s74 offset:%d" % (4 * k), "s_nop 1"]
            x += ["v_mov_b32 v0, s%d" % (80 + 2 * k), "buffer_store_dword v0, off, s[48:51], s74 offset:%d" % (32 + 4 * k), "s_nop 1"]
        x += ["s_getreg_b32 s60, hwreg(HW_REG_XCC_ID)", "v_mov_b32 v0, s60", "buffer_store_dword v0, off, s[48:51], s74 offset:28"]
        tail[e:e] = [raw(y) for y in x]
    txt = HEADER.format(n=NAME)
    al = [raw(".p2align %d" % o.align, "label")] if o.align else []
    for x in pro + al + body + tail + slow:
        if x.drop: continue
        txt += ("" if x.kind == "label" else "    ") + x.text + "\n"
    txt += FOOTER.format(n=NAME)
    open(o.out, "w").write(txt)
    print(dict(Counter(x.kind for x in body if not x.drop)), file=sys.stderr)
    return 1 if errs else 0

if __name__ == "__main__":
    sys.exit(main())
```

```python
import sys, struct, math, argparse
from collections import Counter

NAME = "standalone__gqa_softmax__near_ridge"
def f2h(x): return "0x%08x" % struct.unpack("<I", struct.pack("<f", x))[0]

class I:
    __slots__ = ("text", "kind", "rd", "wr", "tag", "need", "site", "C", "reg", "drop", "vneed", "vsite")
    def __init__(s, text, kind, rd=(), wr=(), tag=None, need=None, C=(), reg=None, vneed=None):
        s.text = text; s.kind = kind; s.rd = frozenset(rd); s.wr = frozenset(wr)
        s.tag = tag; s.need = need; s.site = None; s.C = frozenset(C); s.reg = reg; s.drop = False
        s.vneed = vneed; s.vsite = None

A = 256
def R(a, n=1): return list(range(a, a + n))
def rn(a, n=1):
    p, i = ("a", a - A) if a >= A else ("v", a)
    return "%s%d" % (p, i) if n == 1 else "%s[%d:%d]" % (p, i, i + n - 1)
def lit(x): return str(x) if -16 <= x <= 64 else "0x%x" % x

def valu(op, d, *src, kind="valu"):
    rd = [x for x in src if isinstance(x, int)]
    return I("%s %s, %s" % (op, rn(d), ", ".join(rn(x) if isinstance(x, int) else x for x in src)), kind, rd=rd, wr=[d])
def trans(op, d, s): return valu(op, d, s, kind="trans")
def perm(n, a, b): return I("v_permlane%d_swap_b32 %s, %s" % (n, rn(a), rn(b)), "perm", rd=[a, b], wr=[a, b])
def salu(t, m0=False): return I(t, "salu_m0" if m0 else "salu")
def mfma(d, a, b, first):
    return I("v_mfma_f32_16x16x32_bf16 %s, %s, %s, %s" % (rn(d, 4), rn(a, 4), rn(b, 4), "0" if first else rn(d, 4)), "mfma",
             rd=R(a, 4) + R(b, 4), wr=R(d, 4), C=() if first else R(d, 4))
def dsr128(d, a, off, tag=None, reg=None):
    return I("ds_read_b128 %s, %s offset:%d" % (rn(d, 4), rn(a), off), "ds_r", rd=[a], wr=R(d, 4), tag=tag, reg=reg)
def dsrtr(d, a, off, tag=None, reg=None):
    return I("ds_read_b64_tr_b16 %s, %s offset:%d" % (rn(d, 2), rn(a), off), "ds_r", rd=[a], wr=R(d, 2), tag=tag, reg=reg)
def dsw64(a, s, off, reg=None):
    return I("ds_write_b64 %s, %s offset:%d" % (rn(a), rn(s, 2), off), "ds_w", rd=[a] + R(s, 2), reg=reg)
def wait(l=None, v=None): return I(None, "wait", need=l, vneed=v)
def raw(t, kind="salu"): return I(t, kind)
def label(n): return I(n + ":", "label")
def nop(n): return I("s_nop %d" % n, "nop", tag=n)
def barrier(): return I("s_barrier", "barrier")

P0 = 0
ACC = [192, 208]
KA = [224, 226]; QA = 228; VA = 230; VOFF = 232; OLW = 236; OLR = 237
NEGM = 238; RINV = 242; T = 246
KSLOT = [5, 0, 1, 6, 2, 3, 4, 0, 1, 2, 3, 4]
VSLOT = [[0, 1, 2], [3, 4, 5], [6, 0, 1], [2, 3, 4]]
Q0 = A + 0; FR0 = A + 128; QS = A + 160; LACC = A + 192; ONES = A + 208; RB = A + 212

SQ = 4; SK = 8; SV = 12; SO = 16
S_W = 20; S_C = 21; S_TH = 22; S_WL = 23; S_NC = 24; S_R = 25; S_G = 26
S_KVC = 27; S_KB = 28; S_KBN = 29; S_QB = 30; S_PN = 31; S_KNN = 32; S_OPREV = 33
S_SO = 34; S_SO2 = 35; S_T = 36; S_T2 = 37; S_T3 = 38; S_U = 39
S_VB = 40; S_OB = 44
S_DBG = 48; S_ST = 56

QBYTES = 32 * 16 * 384 * 256 * 2
KBYTES = 32 * 8 * 384 * 256 * 2
SLOT = 16384
def srd(s): return "s[%d:%d]" % (s, s + 3)
COST = {"trans": 2, "label": 0}
DUR = {"trans": 8, "label": 0, "ds_w": 16, "dma": 20, "st": 24}
def dur(x):
    if x.kind == "wait" and x.tag == "free": return 0
    if x.kind == "nop": return 4 * (x.tag + 1)
    return DUR.get(x.kind, 4)
def cost(x):
    if isinstance(x, list): return sum(cost(y) for y in x)
    if x.kind == "wait" and x.tag == "free": return 0
    return COST.get(x.kind, 1)

class Gen:
    def __init__(g, o):
        g.o = o; g.LA = 6; g.NF = 8
        g.nst = 0

    def dma(g, typ, slot, base, add, tag, pieces=(0, 1, 2, 3)):
        o = g.o
        s = {"K": SK, "Q": SQ, "V": SV}[typ]
        fl = o.qflag if typ == "Q" else o.kvflag
        fl = " " + fl if fl else ""
        L = [salu("s_add_u32 m0, s%d, %s" % (S_WL, lit(slot * SLOT)), m0=True),
             salu("s_add_u32 s%d, s%d, %s" % (S_SO, base, lit(add)))]
        for p in pieces:
            t = tag + (p >> 1,) if typ == "Q" else tag
            L.append(I("buffer_load_dwordx4 %s, %s, s%d offen%s%s lds" % (rn(VOFF + p), srd(s), S_SO, " offset:%d" % (1024 * p) if p else "", fl),
                       "dma", rd=[VOFF + p], tag=t if (p == 3 or (p == 1 and typ == "Q")) else None, reg=(2 * slot + (p >> 1), t)))
        return L
    def dmaK(g, c, nxt): return g.dma("K", KSLOT[c], S_KBN if nxt else S_KB, c * SLOT, ("K", c))
    def dmaV(g, dc, kt): return g.dma("V", VSLOT[dc][kt], S_VB + dc, kt * 65536, ("V", dc, kt))
    def dmaQ(g, j, slot, base=S_QB, halves=(0, 1)):
        return g.dma("Q", slot, base, (j >> 2) * 16384 + (j & 3) * 128, ("Q", j), [2 * h + e for h in halves for e in range(2)])
    def qreg(g, j, bb, x): return Q0 + ((2 * (j >> 2) + bb) * 8 + 2 * (j & 3) + x) * 4
    def qmoves(g, j):
        return [valu("v_accvgpr_mov_b32", g.qreg(j, bb, x) + r, QS + 16 * j + 8 * bb + 4 * x + r)
                for bb in range(2) for x in range(2) for r in range(4)]
    def qreads(g, j, slot, qa=QA, slot0=6, spare=False, halves=(0, 1)):
        L = []
        for bb in halves:
            for x in range(2):
                d = QS + 16 * j + 8 * bb + 4 * x if spare else g.qreg(j, bb, x)
                L.append(dsr128(d, qa + x, (slot - slot0) * SLOT + bb * 2048, tag=("QR", j), reg=([2 * slot + bb], ("Q", j, bb), "priv")))
        return L

    def frag(g, f): return FR0 + 4 * (f % g.NF)
    def frag_reads(g, f):
        d = g.frag(f)
        if f < 192:
            u, ks = divmod(f, 8); c = u >> 1; sl = KSLOT[c]
            return [dsr128(d, KA[sl >> 2] + (ks & 1), (sl & 3) * SLOT + (ks >> 1) * 4096 + (u & 1) * 2048,
                           tag=("F", f), reg=([2 * sl, 2 * sl + 1], ("K", c), "shared"))]
        D, j = divmod(f - 192, 12); dc = D >> 2; sl = VSLOT[dc][j >> 2]
        reg = ([2 * sl, 2 * sl + 1], ("V", dc, j >> 2), "shared")
        off = (sl & 3) * SLOT + (j & 3) * 4096
        return [dsrtr(d, VA + (sl >> 2), off, reg=reg), dsrtr(d + 2, VA + (sl >> 2), off + 2048, tag=("F", f), reg=reg)]
    @staticmethod
    def vconst(D): return (D & 3) << 5

    def mf(g, G, b):
        if G < 192:
            u, ks = divmod(G, 8)
            return mfma(ACC[u & 1] + 4 * b, g.frag(G), Q0 + (b * 8 + ks) * 4, ks == 0)
        D, j = divmod(G - 192, 12)
        return mfma(ACC[D & 1] + 4 * b, g.frag(G), P0 + (j * 4 + b) * 4, j == 0)
    def summf(g, j, b): return mfma(LACC + 4 * b, ONES, P0 + (j * 4 + b) * 4, j == 0)

    def fma(g, u, e): a = ACC[u & 1] + e; return valu("v_fma_f32", a, a, "s%d" % S_C, NEGM + (e >> 2))
    def exp(g, u, e): a = ACC[u & 1] + e; return trans("v_exp_f32", a, a)
    def cvt(g, u, k):
        a = ACC[u & 1] + 2 * k
        return valu("v_cvt_pk_bf16_f32", P0 + ((u >> 1) * 4 + (k >> 1)) * 4 + 2 * (u & 1) + (k & 1), a, a + 1)
    def xreduce(g, pad):
        m = [NEGM + b for b in range(4)]
        n = (lambda: [nop(1)]) if pad else (lambda: [])
        L = n() + [perm(32, m[0], m[2]), perm(32, m[1], m[3]),
             valu("v_max_f32", m[0], m[0], m[2]), valu("v_max_f32", m[1], m[1], m[3])] + [nop(1)] + \
            [perm(16, m[0], m[1]), valu("v_max_f32", m[0], m[0], m[1]),
             valu("v_mul_f32", m[0], "s%d" % S_NC, m[0]), valu("v_mov_b32", m[1], m[0])] + [nop(1)] + \
            [perm(16, m[0], m[1]), valu("v_mov_b32", m[2], m[0]), valu("v_mov_b32", m[3], m[1])] + [nop(0)] + \
            [perm(32, m[0], m[2])] + [perm(32, m[1], m[3])]
        return L
    def firstmax(g):
        L = []
        for b in range(4):
            a = ACC[0] + 4 * b
            L += [valu("v_max3_f32", NEGM + b, a, a + 1, a + 2), valu("v_max_f32", NEGM + b, NEGM + b, a + 3)]
        return L + g.xreduce(True)
    def sm_stream(g, u, last_cvt):
        L = []
        for k in range(8):
            L += [g.fma(u, 2 * k), g.fma(u, 2 * k + 1), g.exp(u, 2 * k)]
            if k: L.append(g.cvt(u, k - 1))
            L.append(g.exp(u, 2 * k + 1))
        if last_cvt: L += [g.cvt(u, 7)]
        return L
    def lfinal(g):
        L = []
        for b in range(4): L.append(valu("v_accvgpr_read_b32", T + b, LACC + 4 * b))
        L.append(valu("v_max3_f32", T + 4, T, T + 1, T + 2))
        L.append(trans("v_rcp_f32", RINV, T))
        L.append(valu("v_max_f32", T + 4, T + 4, T + 3))
        L.append(trans("v_rcp_f32", RINV + 1, T + 1))
        L.append(I("v_cmp_lt_f32 vcc, s%d, %s" % (S_TH, rn(T + 4)), "valu", rd=[T + 4]))
        L.append(trans("v_rcp_f32", RINV + 2, T + 2))
        L.append(trans("v_rcp_f32", RINV + 3, T + 3))
        return L

    def epilogue(g, D):
        t = D & 3
        L = [valu("v_xor_b32", OLW, lit((t ^ ((t - 1) & 3)) << 5), OLW)]
        for b in range(4):
            a = ACC[D & 1] + 4 * b
            for r in range(4): L.append(valu("v_mul_f32", a + r, RINV + b, a + r))
            L.append(valu("v_cvt_pk_bf16_f32", a, a, a + 1))
            L.append(valu("v_cvt_pk_bf16_f32", a + 1, a + 2, a + 3))
            L.append(dsw64(OLW, a, (b >> 1) * SLOT + (b & 1) * 2048, reg=([16 + b], "O")))
        return L
    def readback(g):
        return [dsr128(RB + 4 * n, OLR, (n >> 2) * SLOT + (n & 3) * 1024, tag=("RB", n), reg=([16 + (n >> 1)], "O", "priv")) for n in range(8)]
    def stores(g, base):
        fl = " " + g.o.oflag if g.o.oflag else ""
        L = []
        for n in range(8):
            x = []
            if n == 4: L.append([salu("s_add_u32 s%d, s%d, 0x4000" % (S_SO2, base))])
            x.append(wait(l=("RB", n))); x[-1].tag = "free"
            p = n & 3
            x.append(I("buffer_store_dwordx4 %s, %s, %s, s%d offen%s%s" % (rn(RB + 4 * n, 4), rn(VOFF + p), srd(SO), base if n < 4 else S_SO2,
                       " offset:%d" % (1024 * p) if p else "", fl), "st", rd=[VOFF + p] + R(RB + 4 * n, 4)))
            L.append(x)
        return L

    def item_vars(g):
        L = []
        a = lambda t: L.append(salu(t))
        a("s_and_b32 s%d, s%d, %d" % (S_T, S_PN, 3 if g.o.rot else 0))
        a("s_lshl_b32 s%d, s%d, 7" % (S_T, S_T))
        a("s_mul_i32 s%d, s%d, 196608" % (S_KVC, S_PN))
        a("s_lshr_b32 s%d, s%d, 5" % (S_KB, S_WL))
        a("s_add_u32 s%d, s%d, s%d" % (S_KB, S_KB, S_KVC))
        a("s_lshl2_add_u32 s%d, s%d, s%d" % (S_T3, S_WL, S_KVC))
        a("s_lshl_b32 s%d, s%d, 17" % (S_T2, S_G))
        a("s_lshl3_add_u32 s%d, s%d, s%d" % (S_T2, S_WL, S_T2))
        for dc in range(4):
            a("s_add_u32 s%d, s%d, s%d" % (S_VB + dc, S_T3, S_T))
            a("s_add_u32 s%d, s%d, s%d" % (S_OB + dc, S_T2, S_T))
            if dc < 3:
                a("s_add_u32 s%d, s%d, 128" % (S_T, S_T))
                a("s_and_b32 s%d, s%d, 0x180" % (S_T, S_T))
        L.append([salu("s_cmp_lt_u32 s%d, 2" % S_R),
                  salu("s_cselect_b32 s%d, 32, 0" % S_T),
                  salu("s_cselect_b32 s%d, %d, 0" % (S_KNN, KBYTES)),
                  salu("s_cselect_b32 s%d, %d, 0" % (SQ + 2, QBYTES))])
        a("s_add_u32 s%d, s%d, s%d" % (S_T, S_G, S_T))
        a("s_mul_hi_u32 s%d, s%d, 0x55555556" % (S_PN, S_T))
        a("s_lshl_b32 s%d, s%d, 17" % (S_QB, S_T))
        a("s_lshl3_add_u32 s%d, s%d, s%d" % (S_QB, S_WL, S_QB))
        a("s_mul_i32 s%d, s%d, 196608" % (S_KBN, S_PN))
        a("s_lshr_b32 s%d, s%d, 5" % (S_T, S_WL))
        a("s_add_u32 s%d, s%d, s%d" % (S_KBN, S_KBN, S_T))
        return L

    def stamp(g):
        if not g.o.stamps: return []
        k = g.nst; g.nst += 1
        return [raw("v_writelane_b32 v%d, s56, %d" % (T + 9, k)), raw("v_writelane_b32 v%d, s58, %d" % (T + 9, 32 + k)),
                raw("s_memtime s[56:57]", "smem"), raw("s_memrealtime s[58:59]", "smem")]
    def stamp_flush(g, row):
        L = g.stamp() + [raw("s_waitcnt lgkmcnt(0)", "waitall"),
             raw("v_writelane_b32 v%d, s56, 31" % (T + 9)), raw("v_writelane_b32 v%d, s58, 63" % (T + 9))]
        L += [raw("v_mbcnt_lo_u32_b32 v%d, -1, 0" % (T + 8)), raw("v_mbcnt_hi_u32_b32 v%d, -1, v%d" % (T + 8, T + 8)),
              raw("v_lshlrev_b32 v%d, 2, v%d" % (T + 8, T + 8))]
        L.append(salu("s_lshl_b32 s52, s2, 13"))
        L.append(salu("s_lshr_b32 s53, s%d, 1" % S_WL))
        L.append(salu("s_add_u32 s52, s52, s53"))
        if row is None:
            L.append(salu("s_lshl_b32 s53, s%d, 8" % S_R)); L.append(salu("s_add_u32 s52, s52, s53"))
        else:
            L.append(salu("s_add_u32 s52, s52, %d" % (row * 256)))
        L.append(raw("buffer_store_dword v%d, v%d, s[48:51], s52 offen" % (T + 9, T + 8), "salu"))
        g.nst = 0
        return L

    def body(g):
        o = g.o; LA = g.LA
        mfs = []; idx = {}; last = {}
        sums = {}
        for j in range(11):
            for b in range(4): sums[16 * (j + 1) + 4 * b + 3] = (j, b)
        s11 = {192 + o.s11 + 2 * b: (11, b) for b in range(4)}
        for G in range(384):
            for b in range(4):
                idx[(G, b)] = len(mfs); mfs.append(g.mf(G, b))
            for sm in (sums, s11):
                if G in sm: mfs.append(g.summf(*sm[G]))
            last[G] = len(mfs) - 1
        N = len(mfs)
        front = [[] for _ in range(N)]; gap = [[] for _ in range(N)]; end = [[] for _ in range(N)]
        VEC = ("valu", "trans", "perm", "nop")
        def flat(x): return x if isinstance(x, list) else [x]
        def isvec(x): return any(y.kind in VEC for y in flat(x))
        PRI = {"st": 1, "ds_r": 2, "dma": 3, "ds_w": 4}
        def order(F): return sorted(F, key=lambda y: PRI.get(y.kind, 0))
        def gtime(L):
            t = 4; floor = 16; prev = None
            for y in L:
                k = y.kind
                if k == "label" or (k == "wait" and y.tag == "free"): continue
                if k in ("valu", "perm"): t = max(t, 8) + 4
                elif k == "trans": t = max(t, 8) + 8
                elif k == "nop": t += 4 * (y.tag + 1)
                elif k in ("branch", "barrier"): t += 10
                elif k in PRI:
                    t = max(t, 8)
                    if prev in ("valu", "perm", "trans"): t += 8
                    if k == "ds_r": t += 16 if prev == "ds_w" else 4
                    elif k == "ds_w": t += 12
                    elif k == "dma": t += o.ddc if prev == "dma" else 16
                    else: floor = max(floor, t) + (o.stc if floor == 16 else 24); t += 4
                else: t += 4
                prev = k
            return max(floor, t)
        def now(i): return gtime(order(front[i]) + gap[i] + end[i])
        def incr(i, x):
            if isvec(x): return gtime(order(front[i]) + gap[i] + flat(x) + end[i]) - now(i)
            return gtime(order(front[i] + flat(x)) + gap[i] + end[i]) - now(i)
        def put(i, x): (gap if isvec(x) else front)[i].extend(flat(x))
        def putend(i, x): end[i].append(x)
        def cls(x): return 9 if isvec(x) else PRI.get(flat(x)[0].kind, 0) if flat(x)[0].tag != "free" else 1
        def place(L, g0, g1, lo=None, hi=None, win=3):
            lo = idx[(g0, 0)] if lo is None else lo
            hi = last[g1] if hi is None else hi
            tot = sum(cost(x) for x in L); acc = 0; prev = lo; pc = -1
            for n, x in enumerate(L):
                tgt = lo + int((acc + 0.5 * cost(x)) * (hi - lo + 1) / tot); acc += cost(x)
                need = sum(1 for p, q in zip(L[n:], L[n + 1:]) if cls(q) < cls(p))
                top = hi - need
                c0 = max(prev + (1 if cls(x) < pc else 0), min(tgt - win, top))
                c1 = max(c0, min(top, tgt + win))
                assert c0 <= hi, (flat(x)[0].text, g0, g1)
                best = min(range(c0, c1 + 1), key=lambda i: (incr(i, x), 1 if (cls(x) in (0, 2, 9) and not front[i] and not gap[i]) else 0, abs(i - tgt)))
                put(best, x); prev = best; pc = cls(x)
        bars = {}
        for s in range(12): bars[(16 * s - 4) % 384] = [("K", s)]
        for dc in range(4): bars[192 + 48 * dc - 4] = [("V", dc, kt) for kt in range(3)]
        for G in range(0, 384, 4):
            put(idx[((G - 1) % 384, 3)], wait(l=("F", G + 3), v=bars.get(G)))
            if G in bars: put(last[G - 1], barrier())
        for G in list(range(16, 192, 16)) + list(range(192, 384, 12)):
            end[last[G - 1]] += g.stamp()
        for f in range(384):
            G = (f - LA) % 384; k0 = 0
            for e in range(4):
                if (f - e - 4) % 384 in bars: G = (f - e - 4 + (e >> 1)) % 384; k0 = 2 * (e & 1)
            for k, x in enumerate(g.frag_reads(f)): put(idx[(G, k0 + k)], x)
        for D in range(16):
            G = 192 + 12 * D - LA - 1
            x = [valu("v_xor_b32", VA + r, lit(g.vconst(D) ^ g.vconst((D - 1) % 16)), VA + r) for r in range(2)]
            if D: place(x, None, None, lo=idx[(G, 1)], hi=last[G], win=4)
            else: vx0 = x
        for u in range(2, 24):
            for k in range(8):
                G = 8 * u + k
                put(idx[(G, 0)], g.fma(u - 1, 2 * k))
                put(idx[(G, 1)], g.exp(u - 1, 2 * k))
                put(idx[(G, 2)], g.cvt(u - 1, k - 1) if k else g.cvt(u - 2, 7))
                put(idx[(G, 2)], g.fma(u - 1, 2 * k + 1))
                put(idx[(G, 3)], g.exp(u - 1, 2 * k + 1))
        put(idx[(192, 2)], g.cvt(22, 7))
        place(vx0, 186, 187, win=8)
        place(g.firstmax() + g.sm_stream(0, False), 8, 15, win=1)
        lo = idx[(192, 0)]
        for b in range(4):
            e = 4 * b
            st = [g.fma(23, e), g.fma(23, e + 1), g.exp(23, e), g.exp(23, e + 1), g.fma(23, e + 2), g.fma(23, e + 3),
                  g.exp(23, e + 2), g.exp(23, e + 3), g.cvt(23, 2 * b), g.cvt(23, 2 * b + 1)]
            hi = idx[(192 + o.s11 + 2 * b, 1)]
            if b < 3: hi = min(hi, lo + (idx[(192 + o.s11 + 6, 1)] - lo) // (4 - b))
            place(st, None, None, lo=lo, hi=hi, win=1)
            lo = hi + 1
        place(g.lfinal(), 192 + o.s11 + 7, 203, lo=idx[(192 + o.s11 + 7, 1)], win=1)
        putend(last[203], raw("s_cbranch_vccnz L_slow", "branch")); end[last[203]].append(label("L_back"))
        W = []
        qp = o.qplan
        assert len(qp) == 16 and qp == sorted(qp) and 12 not in qp
        n1 = sum(1 for w in qp if w < 12) // 2
        ns = max(n1 - 4, 0)
        qslot = ([7, 8][:ns] + [[8, 9, 7, 6], [8, 9, 6, 7], [9, 6, 7, 8]][ns])[:n1] + [7] * (8 - n1)
        qs = {}
        for h, w in enumerate(qp): qs.setdefault(w, []).append(h)
        kv = [g.dmaK(c, False) for c in range(4, 12)] + [g.dmaV(dc, kt) for dc in range(4) for kt in range(3)] + [g.dmaK(c, True) for c in range(4)]
        kv[20] = [salu("s_mov_b32 s%d, s%d" % (SK + 2, S_KNN))] + kv[20]
        for s in range(24):
            a0 = max(16 * s - 4, 0)
            n = 8 if len(qs.get(s, [])) > 1 else min(o.kw, 11) if s in qs else o.kw
            W.append((kv[s], a0, min(a0 + n - 1, 16 * s + 11, 374)))
            if s in qs:
                t = []
                for j in sorted(set(h >> 1 for h in qs[s])):
                    t += g.dmaQ(j, qslot[j], halves=[h & 1 for h in qs[s] if h >> 1 == j])
                W.append((t, 16 * s - 4 + n, 16 * s + 11))
        for dc in range(3):
            G1 = 192 + 48 * (dc + 1)
            place(g.stores(S_OB + dc), G1 + 14, min(G1 + o.stw, 374), win=o.dwin)
        place(g.stores(S_OPREV) + [salu("s_mov_b32 s%d, %d" % (SO + 2, QBYTES))], o.st0, o.st1, win=o.dwin)
        for t, a, b in W: place(t, a, b, win=o.dwin)
        for D in range(16):
            G1 = (192 + 12 * (D + 1)) % 384
            if D == 0:
                held = sorted(range(ns, n1), key=lambda j: [8, 9, 7, 6].index(qslot[j]))
                place([wait(v=[("Q", n1 - 1, 1)])] + [x for j in held for x in g.qreads(j, qslot[j])], G1, G1 + 3, win=1)
                place(g.epilogue(D), G1 + 4, G1 + 11, win=1)
            elif D == 15:
                place(g.epilogue(D), 0, 5, win=1)
                place(g.readback(), 6, 7, win=1)
            elif D & 3 == 3:
                place(g.epilogue(D), G1, G1 + 7)
                place(g.readback(), G1 + 8, G1 + 11)
            else:
                place(g.epilogue(D), G1, G1 + 11)
        for h in range(16):
            j, bb = h >> 1, h & 1
            if ns <= j < n1: continue
            nxt = [k for k in range(j + 1, 8) if qslot[k] == qslot[j]]
            G1 = 16 * qp[2 * nxt[0] + bb] + 4 if nxt else 382
            G0 = max(G1 - (20 if j < ns else 12), min(16 * qp[h] + 11 + 24, G1 - 9))
            place([wait(v=[("Q", j, bb)])] + g.qreads(j, qslot[j], spare=j < ns, halves=[bb]), G0, G1 - 8, win=8)
        if ns: place([x for j in range(ns) for x in g.qmoves(j)], 216, 239, win=4)
        if o.warm:
            hops = list(range(o.warm // 2, 384, o.warm))
            for k, G in enumerate(hops):
                place([[label("L_hop%d" % k), raw("s_cbranch_execz %s" % ("L_hop%d" % (k + 1) if k + 1 < len(hops) else "L_hopend"), "branch")]], G, G, win=4)
        upd = [salu("s_mov_b32 s%d, s%d" % (S_OPREV, S_OB + 3)),
               salu("s_add_u32 s%d, s%d, 32" % (S_G, S_G)),
               salu("s_add_u32 s%d, s%d, 1" % (S_R, S_R))] + g.item_vars()
        place(upd, 375, 383, hi=idx[(383, 1)])
        put(idx[(383, 2)], salu("s_cmp_lt_u32 s%d, 3" % S_R))
        out = [label("L_item")]
        for i in range(N):
            out.append(mfs[i]); out += order(front[i]) + gap[i] + end[i]
        if o.stamps:
            out += g.stamp_flush(None) + [salu("s_cmp_lt_u32 s%d, 3" % S_R)]
        out.append(raw("s_cbranch_scc1 L_item", "branch"))
        print("gaps %d, est cycles phase 1 %d, phase 2 %d" % (N, sum(now(i) for i in range(idx[(192, 0)])), sum(now(i) for i in range(idx[(192, 0)], N))), file=sys.stderr)
        return out

    def prologue(g):
        o = g.o
        L = []
        a = lambda t: L.append(salu(t))
        v = lambda *x, **k: L.append(valu(*x, **k))
        a("s_cmp_ge_u32 s2, 256")
        L.append(raw("s_cbranch_scc1 L_end", "branch"))
        L.append(raw("s_load_dwordx4 s[4:7], s[0:1], 0", "smem"))
        L.append(raw("s_load_dwordx4 s[12:15], s[0:1], 16", "smem"))
        if o.stamps:
            L.append(raw("s_load_dwordx2 s[48:49], s[0:1], 40", "smem"))
            L.append(raw("s_memtime s[56:57]", "smem")); L.append(raw("s_memrealtime s[58:59]", "smem"))
        t = [T + i for i in range(8)]
        lane, w = t[0], t[1]
        v("v_lshrrev_b32", w, "6", 0)
        v("v_and_b32", lane, "63", 0)
        L.append(I("v_readfirstlane_b32 s%d, v%d" % (S_W, w), "rfl", rd=[w]))
        a("s_and_b32 s%d, s2, 7" % S_T)
        a("s_mul_i32 s%d, s%d, 96" % (S_T, S_T))
        a("s_lshr_b32 s%d, s2, 3" % S_G)
        a("s_add_u32 s%d, s%d, s%d" % (S_G, S_G, S_T))
        a("s_mul_hi_u32 s%d, s%d, 0x55555556" % (S_PN, S_G))
        a("s_mov_b32 s%d, 0" % S_R)
        a("s_lshl_b32 s%d, s%d, 12" % (S_WL, S_W))
        v("v_lshrrev_b32", t[2], "3", lane)
        v("v_and_b32", t[3], "7", lane)
        v("v_xor_b32", t[3], t[3], t[2])
        v("v_lshlrev_b32", t[3], "4", t[3])
        v("v_lshl_add_u32", VOFF, t[2], "9", t[3])
        for p in range(1, 4): v("v_add_u32", VOFF + p, lit(3072 * p), VOFF)
        if o.cpre:
            a("s_getpc_b64 s[52:53]")
            v("v_lshlrev_b32", 2, "7", 0)
            v("v_mov_b32", 3, "s53")
            L.append(I("v_add_co_u32 v2, vcc, s52, v2", "valu", rd=[2], wr=[2]))
            L.append(nop(1))
            L.append(I("v_addc_co_u32 v3, vcc, 0, v3, vcc", "valu", rd=[3], wr=[3]))
            L.append(I("global_load_dword v8, v[2:3], off", "ld", rd=[2, 3]))
        iv = []
        for x in g.item_vars(): iv.extend(x if isinstance(x, list) else [x])
        cut = [i for i, x in enumerate(iv) if x.text.startswith("s_cmp_lt_u32")][0]
        L += iv[:cut]
        L.append(raw("s_waitcnt lgkmcnt(0)", "waitall"))
        a("s_mov_b32 s8, s6"); a("s_mov_b32 s9, s7")
        a("s_mov_b32 s7, 0x20000"); a("s_mov_b32 s11, 0x20000"); a("s_mov_b32 s10, %d" % KBYTES)
        a("s_mov_b32 s6, %d" % QBYTES)
        pslot = [1, 6, 2, 3, 4, 7, 8, 9]
        first = g.dmaK(0, False)
        for j in range(8): first += g.dmaQ(j, pslot[j], base=S_T2)
        if o.prio:
            tab = sum(v << (4 * i) for i, v in enumerate(o.prio))
            pre = [salu("s_and_b32 s%d, s2, 1" % S_U), salu("s_lshr_b32 s%d, s2, 6" % S_SO2),
                   salu("s_lshl2_add_u32 s%d, s%d, s%d" % (S_U, S_U, S_SO2)), salu("s_lshl_b32 s%d, s%d, 2" % (S_U, S_U)),
                   salu("s_lshr_b32 s%d, 0x%x, s%d" % (S_U, tab, S_U)), salu("s_and_b32 s%d, s%d, 15" % (S_U, S_U))]
            out = []; k = 0
            for x in first:
                out.append(x)
                if x.kind == "dma":
                    k += 1
                    if k % 2 == 0 and k // 2 <= max(o.prio):
                        out += [salu("s_cmp_lt_u32 s%d, %d" % (S_U, k // 2)), raw("s_cbranch_scc1 L_pw%d" % k, "branch"),
                                raw("s_waitcnt vmcnt(0)"), label("L_pw%d" % k)]
            e = [i for i, x in enumerate(L) if x.kind == "waitall"][0]
            L[e:e] = pre
            first = out
        L += first
        L += g.dmaK(1, False)
        a("s_mov_b32 s16, s14"); a("s_mov_b32 s17, s15")
        a("s_mov_b32 s15, 0x20000"); a("s_mov_b32 s19, 0x20000")
        a("s_mov_b32 s14, %d" % KBYTES); a("s_mov_b32 s18, 0")
        if o.stamps: a("s_mov_b32 s50, 0x1000000"); a("s_mov_b32 s51, 0x20000")
        L += iv[cut:]
        if o.tpre:
            v("v_and_b32", 10, "3", 0)
            v("v_min_u32", 10, "2", 10)
            v("v_lshlrev_b32", 10, "5", 10)
            v("v_add_u32", 10, "s%d" % S_G, 10)
            a("s_mov_b32 s%d, 0x55555556" % S_T)
            v("v_mul_hi_u32", 11, "s%d" % S_T, 10)
            v("v_mul_u32_u24", 11, "0x30000", 11)
            v("v_bfe_u32", 12, 0, "2", "1")
            v("v_mul_u32_u24", 12, "0x2ff80", 12)
            v("v_add_u32", 11, 11, 12)
            v("v_lshlrev_b32", 10, "17", 10)
            L.append(I("buffer_load_dword v13, v11, %s, 0 offen" % srd(SV), "ld", rd=[11]))
            L.append(I("buffer_load_dword v14, v11, %s, 0 offen" % srd(SK), "ld", rd=[11]))
            L.append(I("buffer_load_dword v15, v10, %s, 0 offen" % srd(SQ), "ld", rd=[10]))
        a("s_mov_b32 s%d, s%d" % (S_OPREV, S_OB + 3))
        c = math.log2(math.e) / 16.0
        a("s_mov_b32 s%d, %s" % (S_C, f2h(c)))
        a("s_mov_b32 s%d, %s" % (S_NC, f2h(-c)))
        a("s_mov_b32 s%d, %s" % (S_TH, f2h(2.0 ** o.thr)))
        n16, g4 = t[2], t[3]
        v("v_and_b32", n16, "15", lane)
        v("v_lshrrev_b32", g4, "4", lane)
        v("v_and_b32", t[4], "7", lane)
        v("v_xor_b32", t[5], g4, t[4])
        v("v_lshlrev_b32", t[5], "4", t[5])
        v("v_lshl_add_u32", KA[0], n16, "7", t[5])
        v("v_xor_b32", KA[0] + 1, "64", KA[0])
        for x in range(2):
            v("v_add_u32", KA[1] + x, "0x10000", KA[0] + x)
            v("v_add_u32", 4 + x, "s%d" % S_WL, KA[0] + x)
            v("v_add_u32", QA + x, lit(6 * SLOT), 4 + x)
            v("v_add_u32", 4 + x, lit(SLOT), 4 + x)
        v("v_lshrrev_b32", t[5], "1", g4)
        v("v_xor_b32", t[5], t[5], t[4])
        v("v_lshlrev_b32", t[5], "4", t[5])
        v("v_lshl_add_u32", t[5], n16, "7", t[5])
        v("v_and_b32", t[6], "1", g4)
        v("v_lshl_add_u32", t[5], t[6], "3", t[5])
        v("v_xor_b32", t[5], "64", t[5])
        a("s_add_u32 s%d, s%d, %s" % (S_T, S_WL, lit(8 * SLOT)))
        v("v_add_u32", OLW, "s%d" % S_T, t[5])
        v("v_lshlrev_b32", t[5], "4", lane)
        v("v_add_u32", OLR, "s%d" % S_T, t[5])
        v("v_lshrrev_b32", t[5], "2", lane)
        v("v_and_b32", t[6], "7", t[5])
        v("v_bfe_u32", t[7], lane, "1", "1")
        v("v_xor_b32", t[6], t[6], t[7])
        v("v_lshlrev_b32", t[6], "4", t[6])
        v("v_lshl_add_u32", t[6], t[5], "7", t[6])
        v("v_and_b32", t[7], "1", lane)
        v("v_lshl_add_u32", t[6], t[7], "3", t[6])
        v("v_xor_b32", VA, lit(g.vconst(15)), t[6])
        v("v_add_u32", VA + 1, "0x10000", VA)
        v("v_and_b32", t[5], "3", lane)
        v("v_mov_b32", t[6], "0x3f803f80")
        L.append(I("v_cmp_eq_u32 vcc, 0, v%d" % t[5], "valu", rd=[t[5]]))
        for b in range(4): v("v_mov_b32", RINV + b, "0")
        L.append(I("v_cndmask_b32 v%d, 0, v%d, vcc" % (t[6], t[6]), "valu", rd=[t[6]], wr=[t[6]]))
        for r in range(4): v("v_accvgpr_write_b32", ONES + r, t[6])
        if o.warm:
            L += [salu("s_mov_b64 exec, 0"), raw("s_branch L_hop0", "branch"), label("L_hopend"), salu("s_mov_b64 exec, -1")]
        for j in range(8):
            L.append(wait(v=[("Q", j, 1)]))
            L += g.qreads(j, pslot[j], qa=4, slot0=1) if pslot[j] < 6 else g.qreads(j, pslot[j])
            if j == 1:
                L.append(wait(l=("QR", 1)))
                L += g.dmaK(2, False) + g.dmaK(3, False)
        L.append(barrier())
        for f in range(g.LA): L += g.frag_reads(f)
        if o.stamps: L += g.stamp_flush(0)
        L.append(wait(l=("F", 3)))
        return L

    def tail(g):
        L = [nop(7)]
        L += g.epilogue(15) + g.readback()
        for x in g.stores(S_OPREV): L += x
        if g.o.stamps:
            L.append(raw("s_waitcnt vmcnt(0)", "salu"))
            L += g.stamp_flush(4)
        L += [label("L_end"), raw("s_endpgm")]
        return L

    def slow(g):
        L = [label("L_slow"), nop(7)]
        ko = T + 5
        L += [I("v_mbcnt_lo_u32_b32 v%d, -1, 0" % ko, "valu", wr=[ko]), I("v_mbcnt_hi_u32_b32 v%d, -1, v%d" % (ko, ko), "valu", rd=[ko], wr=[ko]),
              valu("v_lshrrev_b32", T + 6, "4", ko), valu("v_and_b32", ko, "15", ko), valu("v_lshlrev_b32", ko, "9", ko),
              valu("v_lshl_add_u32", ko, T + 6, "4", ko)]
        def stile():
            X = []
            for ks in range(8):
                X.append(I("buffer_load_dwordx4 %s, %s, %s, s%d offen offset:%d" % (rn(RB + 4 * ks, 4), rn(ko), srd(SK), S_T, 64 * ks), "ld", rd=[ko]))
            X.append(salu("s_add_u32 s%d, s%d, 0x2000" % (S_T, S_T)))
            X.append(raw("s_waitcnt vmcnt(0)", "salu"))
            for ks in range(8):
                for b in range(4): X.append(mfma(ACC[1] + 4 * b, RB + 4 * ks, Q0 + (b * 8 + ks) * 4, ks == 0))
            X.append(nop(7))
            return X
        for b in range(4): L.append(valu("v_mov_b32", NEGM + b, "0xff800000"))
        L += [salu("s_mov_b32 s%d, s%d" % (S_T, S_KVC)), salu("s_mov_b32 s%d, 0" % S_U), label("L_slowA")]
        L += stile()
        for b in range(4):
            a = ACC[1] + 4 * b
            L += [valu("v_max3_f32", NEGM + b, NEGM + b, a, a + 1), valu("v_max3_f32", NEGM + b, NEGM + b, a + 2, a + 3)]
        L += [salu("s_add_u32 s%d, s%d, 1" % (S_U, S_U)), salu("s_cmp_lt_u32 s%d, 24" % S_U), raw("s_cbranch_scc1 L_slowA", "branch")]
        L += g.xreduce(True)
        for r in range(16): L.append(valu("v_accvgpr_write_b32", LACC + r, "0"))
        L += [salu("s_mov_b32 s%d, s%d" % (S_T, S_KVC)), salu("s_mov_b32 s%d, 0" % S_U), label("L_slowB")]
        for i in range(176): L.append(valu("v_mov_b32", P0 + i, P0 + i + 16))
        for half in range(2):
            L += stile()
            for e in range(16): L.append(g.fma(1, e))
            for e in range(16): L.append(g.exp(1, e))
            for k in range(8):
                a = ACC[1] + 2 * k
                L.append(valu("v_cvt_pk_bf16_f32", P0 + (44 + (k >> 1)) * 4 + 2 * half + (k & 1), a, a + 1))
        L.append(nop(1))
        for b in range(4): L.append(mfma(LACC + 4 * b, ONES, P0 + (44 + b) * 4, False))
        L += [salu("s_add_u32 s%d, s%d, 1" % (S_U, S_U)), salu("s_cmp_lt_u32 s%d, 12" % S_U), raw("s_cbranch_scc1 L_slowB", "branch")]
        L.append(nop(7))
        for b in range(4): L.append(valu("v_accvgpr_read_b32", T + b, LACC + 4 * b))
        for b in range(4): L.append(trans("v_rcp_f32", RINV + b, T + b))
        L.append(valu("v_xor_b32", ko, lit(g.vconst(0) ^ g.vconst(1)), VA))
        for j0 in (0, 6):
            for j in range(j0, j0 + 6):
                L += [dsrtr(RB + 4 * (j - j0), ko, j * 4096), dsrtr(RB + 4 * (j - j0) + 2, ko, j * 4096 + 2048)]
            L.append(raw("s_waitcnt lgkmcnt(0)", "waitall"))
            for j in range(j0, j0 + 6):
                for b in range(4): L.append(mfma(ACC[0] + 4 * b, RB + 4 * (j - j0), P0 + (j * 4 + b) * 4, j == 0))
        L += [nop(7), raw("s_branch L_back", "branch")]
        return L

LK = ("ds_r", "ds_w"); VK = ("dma", "st", "ld")
def find(q, tag):
    for k in range(len(q) - 1, -1, -1):
        if q[k].tag == tag: return k
    raise KeyError(tag)

def resolve(path):
    lv = {}; vv = {}
    lq = []; vq = []
    for x in path:
        if x.kind in LK: lq.append(x)
        elif x.kind in VK: vq.append(x)
        elif x.kind == "wait":
            if x.need is not None:
                lv[id(x)] = min(lv.get(id(x), 15), len(lq) - 1 - find(lq, x.need))
            for t in (x.vneed or []):
                vv[id(x)] = min(vv.get(id(x), 63), len(vq) - 1 - find(vq, t))
    for x in path:
        if x.kind == "wait": x.site = lv.get(id(x)); x.vsite = vv.get(id(x))
    need_l = set(); need_v = set()
    lq = []; vq = []; ld = 0; vd = 0
    for x in path:
        if x.kind in LK: lq.append(x)
        elif x.kind in VK: vq.append(x)
        elif x.kind == "waitall": ld = len(lq)
        elif x.kind == "wait":
            if x.need is not None and find(lq, x.need) >= ld:
                need_l.add(id(x)); ld = max(ld, len(lq) - x.site)
            if x.vneed and max(find(vq, t) for t in x.vneed) >= vd:
                need_v.add(id(x)); vd = max(vd, len(vq) - x.vsite)
    for x in path:
        if x.kind == "wait":
            if id(x) not in need_l: x.site = None
            if id(x) not in need_v: x.vsite = None
            parts = (["vmcnt(%d)" % x.vsite] if x.vsite is not None else []) + (["lgkmcnt(%d)" % x.site] if x.site is not None else [])
            x.drop = not parts
            x.text = "s_waitcnt " + " ".join(parts)

def check(path, strict):
    t = 0; last_mfma = -99; m0_t = -99
    lq = []; ld = 0; vq = []; vd = 0
    wr_mfma = {}; wr_valu = {}; wr_trans = {}; rdC = {}; st_data = {}
    slot_tile = {}
    vd_bar = 0; ld_bar = 0
    errs = [0]
    def err(msg, x):
        errs[0] += 1
        if errs[0] < 30: print("HAZARD:", msg, "|", x.text, file=sys.stderr)
    for x in path:
        if x.kind == "label" or x.drop: continue
        if x.kind == "mfma" and not strict: t = max(t, last_mfma + 4)
        touched = x.rd | x.wr | x.C
        for p in lq[ld:]:
            if p.kind == "ds_r" and (p.wr & touched): err("unwaited ds_read %s" % p.text, x)
        isv = x.kind in ("valu", "trans", "perm", "rfl")
        for r in touched:
            if r in wr_mfma:
                tt, full = wr_mfma[r]
                if x.kind == "mfma" and r not in x.rd and x.wr == full: continue
                if t - tt - 1 < 8: err("mfma D -> use after %d states (%s)" % (t - tt - 1, rn(r)), x)
        if x.kind in ("mfma", "perm"):
            for r in (x.rd | x.C):
                if r in wr_valu and t - wr_valu[r] - 1 < 2: err("valu -> %s" % x.kind, x)
        if x.kind == "rfl":
            for r in x.rd:
                if r in wr_valu and t - wr_valu[r] - 1 < 1: err("valu -> readfirstlane", x)
        if isv and x.kind != "trans":
            for r in x.rd:
                if r in wr_trans and t - wr_trans[r] - 1 < 1: err("trans -> valu", x)
        if isv:
            for r in x.wr:
                if r in rdC and t - rdC[r] - 1 < 3: err("mfma C WAR", x)
        for r in x.wr:
            if r in st_data and t - st_data[r] - 1 < 2: err("store data WAR", x)
        if x.kind == "dma" and t - m0_t - 1 < 1: err("m0 -> dma", x)
        if x.kind == "dma":
            slot, tag = x.reg
            for k, p in enumerate(lq):
                if p.reg and slot in p.reg[0]:
                    lim = ld_bar if (p.kind == "ds_r" and p.reg[2] == "shared") else ld
                    if k >= lim: err("dma into half slot %d before %s is known done" % (slot, p.text), x); break
            cur = slot_tile.get(slot)
            if cur and cur[0] != tag and cur[0][0] == "Q" and cur[2] < 2: err("Q half tile %s overwritten unread" % (cur[0],), x)
            slot_tile[slot] = [tag, len(vq), 0]
        if x.kind == "ds_r" and x.reg:
            slots, tag, mode = x.reg
            for slot in slots:
                cur = slot_tile.get(slot)
                if tag == "O":
                    if cur and cur[0] != "O": err("read-back of half slot %d holding %s" % (slot, cur[0]), x)
                elif not cur or cur[0] != tag: err("half slot %d holds %s, wanted %s" % (slot, cur, tag), x)
                elif cur[1] >= (vd_bar if mode == "shared" else vd): err("tile %s not known landed" % (tag,), x)
                else: cur[2] += 1
        if x.kind == "ds_w" and x.reg:
            slot = x.reg[0][0]
            cur = slot_tile.get(slot)
            if cur and cur[0] != "O":
                if cur[1] >= vd: err("staging write with a dma in flight", x)
                if cur[2] < 2: err("staging write before Q reads", x)
            slot_tile[slot] = ["O", -1, 0]
        if x.kind == "salu_m0": m0_t = t
        if x.kind == "mfma":
            last_mfma = t
            for r in x.wr: wr_mfma[r] = (t, x.wr); wr_valu.pop(r, None)
            for r in x.C: rdC[r] = t
        if isv:
            for r in x.wr:
                wr_valu[r] = t; wr_mfma.pop(r, None)
                if x.kind == "trans": wr_trans[r] = t
                else: wr_trans.pop(r, None)
        if x.kind == "st":
            for r in x.rd: st_data[r] = t
        if x.kind in LK: lq.append(x)
        if x.kind in VK: vq.append(x)
        if x.kind == "waitall": ld = len(lq)
        if x.kind == "wait":
            if x.site is not None: ld = max(ld, len(lq) - x.site)
            if x.vsite is not None: vd = max(vd, len(vq) - x.vsite)
        if x.kind == "barrier": vd_bar = vd; ld_bar = ld
        t += (x.tag + 1) if x.kind == "nop" else 1
    return errs[0]

HEADER = """; GQA attention forward, B=32 Hq=16 Hkv=8 Sq=Sk=384 D=256, bf16 in/out (emitted by my generator script).
; One persistent 4-wave workgroup per CU, three items of 256 query rows (64 per wave), K/V/Q staged by LDS-DMA.
; Per item: S^T = K Q^T in 16-key units, P = exp2(c*S - c*m) kept in registers as bf16, row sums by MFMA,
; then O^T = V^T P^T per 16-column tile.  m is the row max over the first 16 keys (never above the true max);
; @launch grid=(256,1,1) block=(256,1,1) lds=163840
.amdgcn_target "amdgcn-amd-amdhsa--gfx950"
.text
.globl {n}_kernel
.p2align 8
.type {n}_kernel,@function
{n}_kernel:
"""
FOOTER = """.section .rodata,"a"
.p2align 6
.amdhsa_kernel {n}_kernel
  .amdhsa_next_free_vgpr 512
  .amdhsa_next_free_sgpr 102
  .amdhsa_accum_offset 256
  .amdhsa_group_segment_fixed_size 0
  .amdhsa_kernarg_size 48
  .amdhsa_user_sgpr_count 2
  .amdhsa_user_sgpr_kernarg_segment_ptr 1
  .amdhsa_system_sgpr_workgroup_id_x 1
.end_amdhsa_kernel
"""

def main():
    ap = argparse.ArgumentParser()
    ap.add_argument("-o", dest="out", default="cdna_kernels/%s.s" % NAME)
    ap.add_argument("--thr", type=float, default=30.0)
    ap.add_argument("--qflag", default="")
    ap.add_argument("--kvflag", default="")
    ap.add_argument("--oflag", default="")
    ap.add_argument("--rot", type=int, default=1)
    ap.add_argument("--s11", type=int, default=3)
    ap.add_argument("--st0", type=int, default=16)
    ap.add_argument("--st1", type=int, default=40)
    ap.add_argument("--qsteps", type=lambda s: [int(x) for x in s.split(",")], default=[4, 5, 6, 8, 9, 10, 13, 16])
    ap.add_argument("--stamps", type=int, default=0)
    ap.add_argument("--strict", type=int, default=1)
    ap.add_argument("--align", type=int, default=0)
    ap.add_argument("--drop", default="")
    ap.add_argument("--light", type=int, default=0)
    ap.add_argument("--cpre", type=int, default=0)
    ap.add_argument("--warm", type=int, default=0)
    ap.add_argument("--q2a", type=int, default=214)
    ap.add_argument("--vw", type=int, default=6)
    ap.add_argument("--stw", type=int, default=40)
    ap.add_argument("--dwin", type=int, default=3)
    ap.add_argument("--cw", type=int, default=1)
    ap.add_argument("--qplan", type=lambda s: [int(x) for x in s.split(",")], default=[6, 6, 7, 7, 8, 8, 9, 9, 10, 10, 11, 11, 14, 14, 18, 18])
    ap.add_argument("--prio", type=lambda s: [int(x) for x in s.split(",")], default=None)
    ap.add_argument("--kw", type=int, default=10)
    ap.add_argument("--ddc", type=int, default=22)
    ap.add_argument("--tpre", type=int, default=0)
    ap.add_argument("--stc", type=int, default=21)
    ap.add_argument("--rd2", type=int, default=0)
    ap.add_argument("--cv", type=int, default=1)
    o = ap.parse_args()
    COST.update({"ds_w": o.cw, "dma": 8, "st": 8})
    g = Gen(o)
    body = g.body()
    pro, tail, slow = g.prologue(), g.tail(), g.slow()
    path = pro + body + body + tail
    resolve(path)
    errs = check(path, o.strict) + check(slow, o.strict)
    if errs: print("%d hazard findings" % errs, file=sys.stderr)
    drop = set(o.drop.split(",")) if o.drop else set()
    body = [x for x in body if x.kind not in drop]
    if "valu" in drop: body = [x for x in body if "vccnz" not in (x.text or "")]
    if o.light:
        pro[2:2] = [raw("s_memrealtime s[60:61]"), raw("s_memtime s[80:81]"), raw("s_load_dwordx2 s[48:49], s[0:1], 40")]
        pro[len(pro) - 1:len(pro) - 1] = [raw("s_memrealtime s[62:63]"), raw("s_memtime s[82:83]"), raw("s_mov_b32 s50, 0x100000"), raw("s_mov_b32 s51, 0x20000")]
        e = len(body) - 1
        body[e:e] = [raw("s_mov_b64 s[64:65], s[66:67]"), raw("s_mov_b64 s[66:67], s[68:69]"), raw("s_memrealtime s[68:69]"),
                     raw("s_mov_b64 s[84:85], s[86:87]"), raw("s_mov_b64 s[86:87], s[88:89]"), raw("s_memtime s[88:89]")]
        e = len(tail) - 2
        x = ["s_waitcnt vmcnt(0)", "s_memrealtime s[70:71]", "s_memtime s[90:91]", "s_waitcnt lgkmcnt(0)",
             "s_cmp_lg_u32 s20, 0", "s_cbranch_scc1 L_end", "s_lshl_b32 s74, s2, 6"]
        for k in range(6):
            x += ["v_mov_b32 v0, s%d" % (60 + 2 * k), "buffer_store_dword v0, off, s[48:51], s74 offset:%d" % (4 * k), "s_nop 1"]
            x += ["v_mov_b32 v0, s%d" % (80 + 2 * k), "buffer_store_dword v0, off, s[48:51], s74 offset:%d" % (32 + 4 * k), "s_nop 1"]
        x += ["s_getreg_b32 s60, hwreg(HW_REG_XCC_ID)", "v_mov_b32 v0, s60", "buffer_store_dword v0, off, s[48:51], s74 offset:28"]
        tail[e:e] = [raw(y) for y in x]
    txt = HEADER.format(n=NAME)
    al = [raw(".p2align %d" % o.align, "label")] if o.align else []
    for x in pro + al + body + tail + slow:
        if x.drop: continue
        txt += ("" if x.kind == "label" else "    ") + x.text + "\n"
    txt += FOOTER.format(n=NAME)
    open(o.out, "w").write(txt)
    print(dict(Counter(x.kind for x in body if not x.drop)), file=sys.stderr)
    return 1 if errs else 0

if __name__ == "__main__":
    sys.exit(main())
```

```python
import sys, struct, math, argparse
from collections import Counter

NAME = "standalone__gqa_softmax__near_ridge"
def f2h(x): return "0x%08x" % struct.unpack("<I", struct.pack("<f", x))[0]

class I:
    __slots__ = ("text", "kind", "rd", "wr", "tag", "need", "site", "C", "reg", "drop", "vneed", "vsite")
    def __init__(s, text, kind, rd=(), wr=(), tag=None, need=None, C=(), reg=None, vneed=None):
        s.text = text; s.kind = kind; s.rd = frozenset(rd); s.wr = frozenset(wr)
        s.tag = tag; s.need = need; s.site = None; s.C = frozenset(C); s.reg = reg; s.drop = False
        s.vneed = vneed; s.vsite = None

A = 256
def R(a, n=1): return list(range(a, a + n))
def rn(a, n=1):
    p, i = ("a", a - A) if a >= A else ("v", a)
    return "%s%d" % (p, i) if n == 1 else "%s[%d:%d]" % (p, i, i + n - 1)
def lit(x): return str(x) if -16 <= x <= 64 else "0x%x" % x

def valu(op, d, *src, kind="valu"):
    rd = [x for x in src if isinstance(x, int)]
    return I("%s %s, %s" % (op, rn(d), ", ".join(rn(x) if isinstance(x, int) else x for x in src)), kind, rd=rd, wr=[d])
def trans(op, d, s): return valu(op, d, s, kind="trans")
def perm(n, a, b): return I("v_permlane%d_swap_b32 %s, %s" % (n, rn(a), rn(b)), "perm", rd=[a, b], wr=[a, b])
def salu(t, m0=False): return I(t, "salu_m0" if m0 else "salu")
def mfma(d, a, b, first):
    return I("v_mfma_f32_16x16x32_bf16 %s, %s, %s, %s" % (rn(d, 4), rn(a, 4), rn(b, 4), "0" if first else rn(d, 4)), "mfma",
             rd=R(a, 4) + R(b, 4), wr=R(d, 4), C=() if first else R(d, 4))
def dsr128(d, a, off, tag=None, reg=None):
    return I("ds_read_b128 %s, %s offset:%d" % (rn(d, 4), rn(a), off), "ds_r", rd=[a], wr=R(d, 4), tag=tag, reg=reg)
def dsrtr(d, a, off, tag=None, reg=None):
    return I("ds_read_b64_tr_b16 %s, %s offset:%d" % (rn(d, 2), rn(a), off), "ds_r", rd=[a], wr=R(d, 2), tag=tag, reg=reg)
def dsw64(a, s, off, reg=None):
    return I("ds_write_b64 %s, %s offset:%d" % (rn(a), rn(s, 2), off), "ds_w", rd=[a] + R(s, 2), reg=reg)
def wait(l=None, v=None): return I(None, "wait", need=l, vneed=v)
def raw(t, kind="salu"): return I(t, kind)
def label(n): return I(n + ":", "label")
def nop(n): return I("s_nop %d" % n, "nop", tag=n)
def barrier(): return I("s_barrier", "barrier")

P0 = 0
ACC = [192, 208]
KA = [224, 226]; QA = 228; VA = 230; VOFF = 232; OLW = 236; OLR = 237
NEGM = 238; RINV = 242; T = 246
KSLOT = [5, 4, 0, 1, 2, 3, 5, 0, 1, 2, 3, 4]
VSLOT = [[0, 1, 2], [3, 4, 5], [0, 1, 2], [7, 6, 3]]
Q0 = A + 0; FR0 = A + 128; QS = A + 160; LACC = A + 192; ONES = A + 208; RB = A + 212

SQ = 4; SK = 8; SV = 12; SO = 16
S_W = 20; S_C = 21; S_TH = 22; S_WL = 23; S_NC = 24; S_R = 25; S_G = 26
S_KVC = 27; S_KB = 28; S_KBN = 29; S_QB = 30; S_PN = 31; S_KNN = 32; S_OPREV = 33
S_SO = 34; S_SO2 = 35; S_T = 36; S_T2 = 37; S_T3 = 38; S_U = 39
S_VB = 40; S_OB = 44
S_DBG = 48; S_ST = 56; S_TM = 3

QBYTES = 32 * 16 * 384 * 256 * 2
KBYTES = 32 * 8 * 384 * 256 * 2
SLOT = 16384
def srd(s): return "s[%d:%d]" % (s, s + 3)
COST = {"trans": 2, "label": 0}
DUR = {"trans": 8, "label": 0, "ds_w": 16, "dma": 20, "st": 24}
def dur(x):
    if x.kind == "wait" and x.tag == "free": return 0
    if x.kind == "nop": return 4 * (x.tag + 1)
    return DUR.get(x.kind, 4)
def cost(x):
    if isinstance(x, list): return sum(cost(y) for y in x)
    if x.kind == "wait" and x.tag == "free": return 0
    return COST.get(x.kind, 1)

class Gen:
    def __init__(g, o):
        g.o = o; g.LA = 6; g.NF = 8
        g.nst = 0

    def dma(g, typ, slot, base, add, tag, pieces=(0, 1, 2, 3)):
        o = g.o
        s = {"K": SK, "Q": SQ, "V": SV}[typ]
        fl = o.qflag if typ == "Q" else o.kvflag
        fl = " " + fl if fl else ""
        L = [salu("s_add_u32 m0, s%d, %s" % (S_WL, lit(slot * SLOT)), m0=True),
             salu("s_add_u32 s%d, s%d, %s" % (S_SO, base, lit(add)))]
        for p in pieces:
            t = tag + (p >> 1,) if typ == "Q" else tag
            L.append(I("buffer_load_dwordx4 %s, %s, s%d offen%s%s lds" % (rn(VOFF + p), srd(s), S_SO, " offset:%d" % (1024 * p) if p else "", fl),
                       "dma", rd=[VOFF + p], tag=t if (p == 3 or (p == 1 and typ == "Q")) else None, reg=(2 * slot + (p >> 1), t)))
        return L
    def dmaK(g, c, nxt): return g.dma("K", KSLOT[c], S_KBN if nxt else S_KB, c * SLOT, ("K", c))
    def dmaV(g, dc, kt): return g.dma("V", VSLOT[dc][kt], S_VB + dc, kt * 65536, ("V", dc, kt))
    def dmaQ(g, j, slot, base=S_QB, halves=(0, 1)):
        return g.dma("Q", slot, base, (j >> 2) * 16384 + (j & 3) * 128, ("Q", j), [2 * h + e for h in halves for e in range(2)])
    def qreg(g, j, bb, x): return Q0 + ((2 * (j >> 2) + bb) * 8 + 2 * (j & 3) + x) * 4
    def qmoves(g, j):
        return [valu("v_accvgpr_mov_b32", g.qreg(j, bb, x) + r, QS + 16 * j + 8 * bb + 4 * x + r)
                for bb in range(2) for x in range(2) for r in range(4)]
    def qreads(g, j, slot, qa=QA, slot0=6, spare=False, halves=(0, 1)):
        L = []
        for bb in halves:
            for x in range(2):
                d = QS + 16 * j + 8 * bb + 4 * x if spare else g.qreg(j, bb, x)
                L.append(dsr128(d, qa + x, (slot - slot0) * SLOT + bb * 2048, tag=("QR", j), reg=([2 * slot + bb], ("Q", j, bb), "priv")))
        return L

    def frag(g, f): return FR0 + 4 * (f % g.NF)
    def frag_reads(g, f):
        d = g.frag(f)
        if f < 192:
            u, ks = divmod(f, 8); c = u >> 1; sl = KSLOT[c]
            return [dsr128(d, KA[sl >> 2] + (ks & 1), (sl & 3) * SLOT + (ks >> 1) * 4096 + (u & 1) * 2048,
                           tag=("F", f), reg=([2 * sl, 2 * sl + 1], ("K", c), "shared"))]
        D, j = divmod(f - 192, 12); dc = D >> 2; sl = VSLOT[dc][j >> 2]
        reg = ([2 * sl, 2 * sl + 1], ("V", dc, j >> 2), "shared")
        off = (sl & 3) * SLOT + (j & 3) * 4096
        return [dsrtr(d, VA + (sl >> 2), off, reg=reg), dsrtr(d + 2, VA + (sl >> 2), off + 2048, tag=("F", f), reg=reg)]
    @staticmethod
    def vconst(D): return (D & 3) << 5

    def mf(g, G, k):
        f, b, first = G, k, None
        if g.o.order:
            pos = (G & 1) * 4 + k; m = pos >> 1
            f = (G & ~1) + ((pos & 1) ^ (m & 1))
            n = ((G & 7) if G < 192 else (G - 192) % 12) >> 1
            b = 3 - m if (g.o.order == 2 and n & 1) else m
            first = n == 0 and not pos & 1
        if G < 192:
            u, ks = divmod(f, 8)
            return mfma(ACC[u & 1] + 4 * b, g.frag(f), Q0 + (b * 8 + ks) * 4, ks == 0 if first is None else first)
        D, j = divmod(f - 192, 12)
        return mfma(ACC[D & 1] + 4 * b, g.frag(f), P0 + (j * 4 + b) * 4, j == 0 if first is None else first)
    def summf(g, j, b):
        b = g.bo(b)
        return mfma(LACC + 4 * b, ONES, P0 + (j * 4 + b) * 4, j == 0)

    def bo(g, b): return [2, 0, 1, 3][b] if g.o.order == 2 else b
    def fma(g, u, e):
        e = 4 * g.bo(e >> 2) + (e & 3); a = ACC[u & 1] + e
        return valu("v_fma_f32", a, a, "s%d" % S_C, NEGM + (e >> 2))
    def exp(g, u, e):
        a = ACC[u & 1] + 4 * g.bo(e >> 2) + (e & 3)
        return trans("v_exp_f32", a, a)
    def cvt(g, u, k):
        k = 2 * g.bo(k >> 1) + (k & 1)
        a = ACC[u & 1] + 2 * k
        return valu("v_cvt_pk_bf16_f32", P0 + ((u >> 1) * 4 + (k >> 1)) * 4 + 2 * (u & 1) + (k & 1), a, a + 1)
    def xreduce(g, pad):
        m = [NEGM + b for b in range(4)]
        n = (lambda: [nop(1)]) if pad else (lambda: [])
        L = n() + [perm(32, m[0], m[2]), perm(32, m[1], m[3]),
             valu("v_max_f32", m[0], m[0], m[2]), valu("v_max_f32", m[1], m[1], m[3])] + [nop(1)] + \
            [perm(16, m[0], m[1]), valu("v_max_f32", m[0], m[0], m[1]),
             valu("v_mul_f32", m[0], "s%d" % S_NC, m[0]), valu("v_mov_b32", m[1], m[0])] + [nop(1)] + \
            [perm(16, m[0], m[1]), valu("v_mov_b32", m[2], m[0]), valu("v_mov_b32", m[3], m[1])] + [nop(0)] + \
            [perm(32, m[0], m[2])] + [perm(32, m[1], m[3])]
        return L
    def firstmax(g):
        L = []
        for b in (range(3, -1, -1) if g.o.order == 2 else range(4)):
            a = ACC[0] + 4 * b
            L += [valu("v_max3_f32", NEGM + b, a, a + 1, a + 2), valu("v_max_f32", NEGM + b, NEGM + b, a + 3)]
        return L + g.xreduce(True)
    def sm_stream(g, u, last_cvt):
        L = []
        for k in range(8):
            L += [g.fma(u, 2 * k), g.fma(u, 2 * k + 1), g.exp(u, 2 * k)]
            if k: L.append(g.cvt(u, k - 1))
            L.append(g.exp(u, 2 * k + 1))
        if last_cvt: L += [g.cvt(u, 7)]
        return L
    def lfinal(g):
        L = []
        for b in range(4): L.append(valu("v_accvgpr_read_b32", T + b, LACC + 4 * b))
        L.append(valu("v_max3_f32", T + 4, T, T + 1, T + 2))
        L.append(trans("v_rcp_f32", RINV, T))
        L.append(valu("v_max_f32", T + 4, T + 4, T + 3))
        L.append(trans("v_rcp_f32", RINV + 1, T + 1))
        L.append(I("v_cmp_lt_f32 vcc, s%d, %s" % (S_TH, rn(T + 4)), "valu", rd=[T + 4]))
        L.append(trans("v_rcp_f32", RINV + 2, T + 2))
        L.append(trans("v_rcp_f32", RINV + 3, T + 3))
        return L

    def epilogue(g, D):
        t = D & 3
        L = [valu("v_xor_b32", OLW, lit((t ^ ((t - 1) & 3)) << 5), OLW)]
        for b in map(g.bo, range(4)):
            a = ACC[D & 1] + 4 * b
            for r in range(4): L.append(valu("v_mul_f32", a + r, RINV + b, a + r))
            L.append(valu("v_cvt_pk_bf16_f32", a, a, a + 1))
            L.append(valu("v_cvt_pk_bf16_f32", a + 1, a + 2, a + 3))
            L.append(dsw64(OLW, a, (b >> 1) * SLOT + (b & 1) * 2048, reg=([16 + b], "O")))
        return L
    def readback(g):
        return [dsr128(RB + 4 * n, OLR, (n >> 2) * SLOT + (n & 3) * 1024, tag=("RB", n), reg=([16 + (n >> 1)], "O", "priv")) for n in range(8)]
    def stores(g, base):
        fl = " " + g.o.oflag if g.o.oflag else ""
        L = []
        for n in range(8):
            x = []
            if n == 4: L.append([salu("s_add_u32 s%d, s%d, 0x4000" % (S_SO2, base))])
            x.append(wait(l=("RB", n))); x[-1].tag = "free"
            p = n & 3
            x.append(I("buffer_store_dwordx4 %s, %s, %s, s%d offen%s%s" % (rn(RB + 4 * n, 4), rn(VOFF + p), srd(SO), base if n < 4 else S_SO2,
                       " offset:%d" % (1024 * p) if p else "", fl), "st", rd=[VOFF + p] + R(RB + 4 * n, 4)))
            L.append(x)
        return L

    def item_vars(g):
        L = []
        a = lambda t: L.append(salu(t))
        a("s_and_b32 s%d, s%d, %d" % (S_T, S_PN, 3 if g.o.rot else 0))
        a("s_lshl_b32 s%d, s%d, 7" % (S_T, S_T))
        a("s_mul_i32 s%d, s%d, 196608" % (S_KVC, S_PN))
        a("s_lshr_b32 s%d, s%d, 5" % (S_KB, S_WL))
        a("s_add_u32 s%d, s%d, s%d" % (S_KB, S_KB, S_KVC))
        a("s_lshl2_add_u32 s%d, s%d, s%d" % (S_T3, S_WL, S_KVC))
        a("s_lshl_b32 s%d, s%d, 17" % (S_T2, S_G))
        a("s_lshl3_add_u32 s%d, s%d, s%d" % (S_T2, S_WL, S_T2))
        for dc in range(4):
            a("s_add_u32 s%d, s%d, s%d" % (S_VB + dc, S_T3, S_T))
            a("s_add_u32 s%d, s%d, s%d" % (S_OB + dc, S_T2, S_T))
            if dc < 3:
                a("s_add_u32 s%d, s%d, 128" % (S_T, S_T))
                a("s_and_b32 s%d, s%d, 0x180" % (S_T, S_T))
        if g.o.touch:
            a("s_mul_i32 s%d, s%d, 3" % (S_T, S_PN))
            a("s_sub_u32 s%d, s%d, s%d" % (S_T, S_G, S_T))
            a("s_lshl_b32 s%d, 1, s%d" % (S_TM, S_T))
            L.append([salu("s_cmp_lt_u32 s2, %d" % (8 if g.o.tsplit else 256)), salu("s_cselect_b32 s%d, %d, s%d" % (S_TM, 3 if g.o.tsplit else 7, S_TM))])
        L.append([salu("s_cmp_lt_u32 s%d, 2" % S_R),
                  salu("s_cselect_b32 s%d, 0, s%d" % (S_TM, S_TM)),
                  salu("s_cselect_b32 s%d, 32, 0" % S_T),
                  salu("s_cselect_b32 s%d, %d, 0" % (S_KNN, KBYTES) if not g.o.nonull & 1 else "s_mov_b32 s%d, %d" % (S_KNN, KBYTES)),
                  salu("s_cselect_b32 s%d, %d, 0" % (SQ + 2, QBYTES) if not g.o.nonull & 2 else "s_mov_b32 s%d, %d" % (SQ + 2, QBYTES))])
        a("s_add_u32 s%d, s%d, s%d" % (S_T, S_G, S_T))
        a("s_mul_hi_u32 s%d, s%d, 0x55555556" % (S_PN, S_T))
        a("s_lshl_b32 s%d, s%d, 17" % (S_QB, S_T))
        a("s_lshl3_add_u32 s%d, s%d, s%d" % (S_QB, S_WL, S_QB))
        a("s_mul_i32 s%d, s%d, 196608" % (S_KBN, S_PN))
        a("s_lshr_b32 s%d, s%d, 5" % (S_T, S_WL))
        a("s_add_u32 s%d, s%d, s%d" % (S_KBN, S_KBN, S_T))
        return L

    def stamp(g):
        if not g.o.stamps: return []
        k = g.nst; g.nst += 1
        return [raw("v_writelane_b32 v%d, s56, %d" % (T + 9, k)), raw("v_writelane_b32 v%d, s58, %d" % (T + 9, 32 + k)),
                raw("s_memtime s[56:57]", "smem"), raw("s_memrealtime s[58:59]", "smem")]
    def stamp_flush(g, row):
        L = g.stamp()
        g.nst = 0
        if row == 0: return L + [raw("v_accvgpr_write_b32 a247, v%d" % (T + 9))]
        if row is None:
            return L + [raw("v_accvgpr_mov_b32 a246, a245"), raw("v_accvgpr_mov_b32 a245, a244"), raw("v_accvgpr_write_b32 a244, v%d" % (T + 9))]
        L += [raw("s_waitcnt lgkmcnt(0)", "waitall"),
              raw("v_writelane_b32 v%d, s56, 31" % (T + 9)), raw("v_writelane_b32 v%d, s58, 63" % (T + 9))]
        L += [raw("v_mbcnt_lo_u32_b32 v%d, -1, 0" % (T + 8)), raw("v_mbcnt_hi_u32_b32 v%d, -1, v%d" % (T + 8, T + 8)),
              raw("v_lshlrev_b32 v%d, 2, v%d" % (T + 8, T + 8))]
        L.append(salu("s_lshl_b32 s52, s2, 13"))
        L.append(salu("s_lshr_b32 s53, s%d, 1" % S_WL))
        L.append(salu("s_add_u32 s52, s52, s53"))
        for k in range(4): L.append(raw("buffer_store_dword a%d, v%d, s[48:51], s52 offen offset:%d" % (247 - k, T + 8, 256 * k), "salu"))
        L.append(raw("buffer_store_dword v%d, v%d, s[48:51], s52 offen offset:1024" % (T + 9, T + 8), "salu"))
        return L

    def body(g):
        o = g.o; LA = g.LA
        mfs = []; idx = {}; last = {}
        sums = {}
        for j in range(11):
            for b in range(4): sums[16 * (j + 1) + 4 * b + 3] = (j, b)
        s11 = {192 + o.s11 + 2 * b: (11, b) for b in range(4)}
        for G in range(384):
            for b in range(4):
                idx[(G, b)] = len(mfs); mfs.append(g.mf(G, b))
            for sm in (sums, s11):
                if G in sm: mfs.append(g.summf(*sm[G]))
            last[G] = len(mfs) - 1
        N = len(mfs)
        front = [[] for _ in range(N)]; gap = [[] for _ in range(N)]; end = [[] for _ in range(N)]
        VEC = ("valu", "trans", "perm", "nop")
        def flat(x): return x if isinstance(x, list) else [x]
        def isvec(x): return any(y.kind in VEC for y in flat(x))
        PRI = {"st": 1, "ds_r": 2, "dma": 3, "ds_w": 4}
        def order(F): return sorted(F, key=lambda y: PRI.get(y.kind, 0))
        def gtime(L):
            t = 4; floor = 16; prev = None
            for y in L:
                k = y.kind
                if k == "label" or (k == "wait" and y.tag == "free"): continue
                if k in ("valu", "perm"): t = max(t, 8) + 4
                elif k == "trans": t = max(t, 8) + 8
                elif k == "nop": t += 4 * (y.tag + 1)
                elif k in ("branch", "barrier"): t += 10
                elif k in PRI:
                    t = max(t, 8)
                    if prev in ("valu", "perm", "trans"): t += 8
                    if k == "ds_r": t += 16 if prev == "ds_w" else 4
                    elif k == "ds_w": t += 12
                    elif k == "dma": t += o.ddc if prev == "dma" else 16
                    else: floor = max(floor, t) + (o.stc if floor == 16 else 24); t += 4
                else: t += 4
                prev = k
            return max(floor, t)
        def now(i): return gtime(order(front[i]) + gap[i] + end[i])
        def incr(i, x):
            if isvec(x): return gtime(order(front[i]) + gap[i] + flat(x) + end[i]) - now(i)
            return gtime(order(front[i] + flat(x)) + gap[i] + end[i]) - now(i)
        def put(i, x): (gap if isvec(x) else front)[i].extend(flat(x))
        def putend(i, x): end[i].append(x)
        def cls(x): return 9 if isvec(x) else PRI.get(flat(x)[0].kind, 0) if flat(x)[0].tag != "free" else 1
        def place(L, g0, g1, lo=None, hi=None, win=3):
            lo = idx[(g0, 0)] if lo is None else lo
            hi = last[g1] if hi is None else hi
            tot = sum(cost(x) for x in L); acc = 0; prev = lo; pc = -1
            for n, x in enumerate(L):
                tgt = lo + int((acc + 0.5 * cost(x)) * (hi - lo + 1) / tot); acc += cost(x)
                need = sum(1 for p, q in zip(L[n:], L[n + 1:]) if cls(q) < cls(p))
                top = hi - need
                c0 = max(prev + (1 if cls(x) < pc else 0), min(tgt - win, top))
                c1 = max(c0, min(top, tgt + win))
                assert c0 <= hi, (flat(x)[0].text, g0, g1)
                best = min(range(c0, c1 + 1), key=lambda i: (incr(i, x), 1 if (cls(x) in (0, 2, 9) and not front[i] and not gap[i]) else 0, abs(i - tgt)))
                put(best, x); prev = best; pc = cls(x)
        bars = {}
        for s in range(12): bars[(16 * s - 4) % 384] = [("K", s)]
        for dc in range(4): bars[192 + 48 * dc - 4] = [("V", dc, kt) for kt in range(3)]
        for G in range(0, 384, 4):
            put(idx[((G - 1) % 384, 3)], wait(l=("F", G + 3), v=bars.get(G)))
            if G in bars: put(last[G - 1], barrier())
        for G in list(range(16, 192, 16)) + list(range(192, 384, 12)):
            end[last[G - 1]] += g.stamp()
        for f in range(384):
            G = (f - LA) % 384; k0 = 0
            for e in range(4):
                if (f - e - 4) % 384 in bars: G = (f - e - 4 + (e >> 1)) % 384; k0 = 2 * (e & 1)
            for k, x in enumerate(g.frag_reads(f)): put(idx[(G, k0 + k)], x)
        for D in range(16):
            G = 192 + 12 * D - LA - 1
            x = [valu("v_xor_b32", VA + r, lit(g.vconst(D) ^ g.vconst((D - 1) % 16)), VA + r) for r in range(2)]
            if D: place(x, None, None, lo=idx[(G, 1)], hi=last[G], win=4)
            else: vx0 = x
        for u in range(2, 24):
            for k in range(8):
                G = 8 * u + k
                put(idx[(G, 0)], g.fma(u - 1, 2 * k))
                put(idx[(G, 1)], g.exp(u - 1, 2 * k))
                put(idx[(G, 2)], g.cvt(u - 1, k - 1) if k else g.cvt(u - 2, 7))
                put(idx[(G, 2)], g.fma(u - 1, 2 * k + 1))
                put(idx[(G, 3)], g.exp(u - 1, 2 * k + 1))
        put(idx[(192, 2)], g.cvt(22, 7))
        place(vx0, 186, 187, win=8)
        place(g.firstmax() + g.sm_stream(0, False), 8, 15, win=1)
        lo = idx[(192, 0)]
        for b in range(4):
            e = 4 * b
            st = [g.fma(23, e), g.fma(23, e + 1), g.exp(23, e), g.exp(23, e + 1), g.fma(23, e + 2), g.fma(23, e + 3),
                  g.exp(23, e + 2), g.exp(23, e + 3), g.cvt(23, 2 * b), g.cvt(23, 2 * b + 1)]
            hi = idx[(192 + o.s11 + 2 * b, 1)]
            if b < 3: hi = min(hi, lo + (idx[(192 + o.s11 + 6, 1)] - lo) // (4 - b))
            place(st, None, None, lo=lo, hi=hi, win=1)
            lo = hi + 1
        place(g.lfinal(), 192 + o.s11 + 7, 203, lo=idx[(192 + o.s11 + 7, 1)], win=1)
        putend(last[203], raw("s_cbranch_vccnz L_slow", "branch")); end[last[203]].append(label("L_back"))
        W = []
        qp = o.qplan
        assert qp == sorted(qp) and len(qp) in (12,) and max(qp) < 12
        n1 = len(qp) // 2
        ns = n1 - 4
        qslot = [7, 8][:ns] + [None, [8, 9, 6, 7], [9, 6, 7, 8]][ns] + [7, 6, 7][:8 - n1]
        qs = {}
        for h, w in enumerate(qp): qs.setdefault(w, []).append(h)
        kv = [g.dmaK(c, False) for c in range(4, 12)] + [g.dmaV(dc, kt) for dc in range(4) for kt in range(3)] + [g.dmaK(c, True) for c in range(4)]
        kv[20] = [salu("s_mov_b32 s%d, s%d" % (SK + 2, S_KNN))] + kv[20]
        for s in range(12):
            a0 = max(16 * s - 4, 0)
            n = 8 if len(qs.get(s, [])) > 1 else min(o.kw, 11) if s in qs else o.kw
            W.append((kv[s], a0, min(a0 + n - 1, 16 * s + 11)))
            if s in qs:
                t = []
                for j in sorted(set(h >> 1 for h in qs[s])):
                    t += g.dmaQ(j, qslot[j], halves=[h & 1 for h in qs[s] if h >> 1 == j])
                W.append((t, 16 * s - 4 + n, 16 * s + 11))
        for t, (a0, b0) in zip(kv[12:], o.kvw): W.append((t, a0, b0))
        for j, (a0, b0) in zip(range(n1, 8), o.qw): W.append((g.dmaQ(j, qslot[j]), a0, b0))
        W.sort(key=lambda x: x[1])
        assert all(p[2] < q[1] for p, q in zip(W, W[1:])), [(p[1], p[2]) for p in W]
        for dc in range(2): place(g.stores(S_OB + dc), *o.stw[dc], win=o.dwin)
        place([[salu("s_mov_b32 s%d, s%d" % (S_U, S_OB + 2))]] + g.stores(S_U), *o.stw[2], hi=min(last[o.stw[2][1]], idx[(383, 1)]), win=o.dwin)
        place(g.stores(S_OPREV) + [salu("s_mov_b32 s%d, %d" % (SO + 2, QBYTES))], *o.stw[3], win=o.dwin)
        for t, a, b in W: place(t, a, b, win=o.dwin)
        for D in range(16):
            G1 = (192 + 12 * (D + 1)) % 384
            if D == 0:
                held = sorted(range(ns, n1), key=lambda j: [8, 9, 7, 6].index(qslot[j]))
                place([wait(v=[("Q", n1 - 1, 1)])] + [x for j in held for x in g.qreads(j, qslot[j])], G1, G1 + 3, win=1)
                place(g.epilogue(D), G1 + 4, G1 + 11, win=1)
            elif D == 15:
                place(g.epilogue(D), 0, 5, win=1)
                place(g.readback(), 6, 7, win=1)
            elif D & 3 == 3:
                place(g.epilogue(D), G1, G1 + 7)
                place(g.readback(), G1 + 8, G1 + 11)
            else:
                place(g.epilogue(D), G1, G1 + 11)
        for h in range(2 * ns):
            j, bb = h >> 1, h & 1
            nxt = [k for k in range(j + 1, 8) if qslot[k] == qslot[j]]
            G1 = 16 * qp[2 * nxt[0] + bb] + 4
            G0 = max(G1 - 20, min(16 * qp[h] + 11 + 24, G1 - 9))
            place([wait(v=[("Q", j, bb)])] + g.qreads(j, qslot[j], spare=True, halves=[bb]), G0, G1 - 8, win=8)
        for j, (a0, b0) in zip(range(n1, 8), o.qr):
            place([wait(v=[("Q", j, 1)])] + g.qreads(j, qslot[j]), a0, b0, win=4)
        if ns: place([x for j in range(ns) for x in g.qmoves(j)], 216, 239, win=4)
        g.ool = []
        for kt, G in enumerate(o.touch):
            place([[salu("s_bitcmp1_b32 s%d, %d" % (S_TM, kt)), raw("s_cbranch_scc1 L_touch%d" % kt, "branch"), label("L_touchr%d" % kt)]], G, G + 3, win=8)
            X = [label("L_touch%d" % kt)]
            a, b = T + 5, T + 6
            X += [I("v_mbcnt_lo_u32_b32 v%d, -1, 0" % a, "valu", wr=[a]), I("v_mbcnt_hi_u32_b32 v%d, -1, v%d" % (a, a), "valu", rd=[a], wr=[a]),
                  salu("s_sub_u32 s%d, s%d, s%d" % (S_T, S_VB + 3, S_VB + 2)),
                  valu("v_lshrrev_b32", b, "5", a), valu("v_mul_lo_u32", b, "s%d" % S_T, b), valu("v_and_b32", a, "31", a),
                  valu("v_lshl_add_u32", a, a, "9", b), valu("v_add_u32", a, "s%d" % (S_VB + 2), a),
                  salu("s_mov_b32 s%d, %s" % (S_T, lit(kt * 65536))),
                  I("buffer_load_dword v%d, v%d, %s, s%d offen" % (T + 7, a, srd(SV), S_T), "ld", rd=[a]),
                  raw("s_branch L_touchr%d" % kt, "branch")]
            g.ool += X
        if o.warm:
            hops = list(range(o.warm // 2, 384, o.warm))
            for k, G in enumerate(hops):
                place([[label("L_hop%d" % k), raw("s_cbranch_execz %s" % ("L_hop%d" % (k + 1) if k + 1 < len(hops) else "L_hopend"), "branch")]], G, G, win=4)
        upd = [salu("s_mov_b32 s%d, s%d" % (S_OPREV, S_OB + 3)),
               salu("s_add_u32 s%d, s%d, 32" % (S_G, S_G)),
               salu("s_add_u32 s%d, s%d, 1" % (S_R, S_R))] + g.item_vars()
        place(upd, 375, 383, hi=idx[(383, 1)])
        put(idx[(383, 2)], salu("s_cmp_lt_u32 s%d, 3" % S_R))
        out = [label("L_item")]
        for i in range(N):
            out.append(mfs[i]); out += order(front[i]) + gap[i] + end[i]
        if o.stamps:
            out += g.stamp_flush(None) + [salu("s_cmp_lt_u32 s%d, 3" % S_R)]
        out.append(raw("s_cbranch_scc1 L_item", "branch"))
        seg = list(range(0, 192, 16)) + list(range(192, 384, 12)) + [384]
        if o.verbose: print("est:", " ".join("%4d" % sum(now(i) for i in range(idx[(a, 0)], last[b - 1] + 1)) for a, b in zip(seg, seg[1:])), file=sys.stderr)
        print("gaps %d, est cycles phase 1 %d, phase 2 %d" % (N, sum(now(i) for i in range(idx[(192, 0)])), sum(now(i) for i in range(idx[(192, 0)], N))), file=sys.stderr)
        return out

    def prologue(g):
        o = g.o
        L = []
        a = lambda t: L.append(salu(t))
        v = lambda *x, **k: L.append(valu(*x, **k))
        a("s_cmp_ge_u32 s2, 256")
        L.append(raw("s_cbranch_scc1 L_end", "branch"))
        L.append(raw("s_load_dwordx4 s[4:7], s[0:1], 0", "smem"))
        L.append(raw("s_load_dwordx4 s[12:15], s[0:1], 16", "smem"))
        if o.stamps:
            L.append(raw("s_load_dwordx2 s[48:49], s[0:1], 40", "smem"))
            L.append(raw("s_memtime s[56:57]", "smem")); L.append(raw("s_memrealtime s[58:59]", "smem"))
        t = [T + i for i in range(8)]
        lane, w = t[0], t[1]
        v("v_lshrrev_b32", w, "6", 0)
        v("v_and_b32", lane, "63", 0)
        L.append(I("v_readfirstlane_b32 s%d, v%d" % (S_W, w), "rfl", rd=[w]))
        a("s_and_b32 s%d, s2, 7" % S_T)
        a("s_mul_i32 s%d, s%d, 96" % (S_T, S_T))
        a("s_lshr_b32 s%d, s2, 3" % S_G)
        a("s_add_u32 s%d, s%d, s%d" % (S_G, S_G, S_T))
        a("s_mul_hi_u32 s%d, s%d, 0x55555556" % (S_PN, S_G))
        a("s_mov_b32 s%d, 0" % S_R)
        a("s_lshl_b32 s%d, s%d, 12" % (S_WL, S_W))
        v("v_lshrrev_b32", t[2], "3", lane)
        v("v_and_b32", t[3], "7", lane)
        v("v_xor_b32", t[3], t[3], t[2])
        v("v_lshlrev_b32", t[3], "4", t[3])
        v("v_lshl_add_u32", VOFF, t[2], "9", t[3])
        for p in range(1, 4): v("v_add_u32", VOFF + p, lit(3072 * p), VOFF)
        if o.cpre:
            a("s_getpc_b64 s[52:53]")
            if o.hop:
                L.append(label("L_pc"))
                a("s_add_u32 s52, s52, L_item-L_pc"); a("s_addc_u32 s53, s53, 0")
            v("v_lshlrev_b32", 2, "7", 0)
            v("v_mov_b32", 3, "s53")
            L.append(I("v_add_co_u32 v2, vcc, s52, v2", "valu", rd=[2], wr=[2]))
            L.append(nop(1))
            L.append(I("v_addc_co_u32 v3, vcc, 0, v3, vcc", "valu", rd=[3], wr=[3]))
            L.append(I("global_load_dword v8, v[2:3], off", "ld", rd=[2, 3]))
        iv = []
        for x in g.item_vars(): iv.extend(x if isinstance(x, list) else [x])
        cut = [i for i, x in enumerate(iv) if x.text.startswith("s_cmp_lt_u32 s%d" % S_R)][0]
        L += iv[:cut]
        L.append(raw("s_waitcnt lgkmcnt(0)", "waitall"))
        a("s_mov_b32 s8, s6"); a("s_mov_b32 s9, s7")
        a("s_mov_b32 s7, 0x20000"); a("s_mov_b32 s11, 0x20000"); a("s_mov_b32 s10, %d" % KBYTES)
        a("s_mov_b32 s6, %d" % QBYTES)
        pslot = [0, 1, 2, 3, 6, 7, 8, 9] if o.tab else [1, 2, 6, 3, 4, 7, 8, 9]
        first = g.dmaK(0, False)
        for j in range(8): first += g.dmaQ(j, pslot[j], base=S_T2)
        if o.prio:
            tab = sum(v << (4 * i) for i, v in enumerate(o.prio))
            pre = [salu("s_and_b32 s%d, s2, 1" % S_U), salu("s_lshr_b32 s%d, s2, 6" % S_SO2),
                   salu("s_lshl2_add_u32 s%d, s%d, s%d" % (S_U, S_U, S_SO2)), salu("s_lshl_b32 s%d, s%d, 2" % (S_U, S_U)),
                   salu("s_lshr_b32 s%d, 0x%x, s%d" % (S_U, tab, S_U)), salu("s_and_b32 s%d, s%d, 15" % (S_U, S_U))]
            out = []; k = 0
            for x in first:
                out.append(x)
                if x.kind == "dma":
                    k += 1
                    if k % 2 == 0 and k // 2 <= max(o.prio):
                        out += [salu("s_cmp_lt_u32 s%d, %d" % (S_U, k // 2)), raw("s_cbranch_scc1 L_pw%d" % k, "branch"),
                                raw("s_waitcnt vmcnt(0)"), label("L_pw%d" % k)]
            e = [i for i, x in enumerate(L) if x.kind == "waitall"][0]
            L[e:e] = pre
            first = out
        L += first
        L += g.dmaK(1, False)
        a("s_mov_b32 s16, s14"); a("s_mov_b32 s17, s15")
        a("s_mov_b32 s15, 0x20000"); a("s_mov_b32 s19, 0x20000")
        a("s_mov_b32 s14, %d" % KBYTES); a("s_mov_b32 s18, 0")
        if o.stamps: a("s_mov_b32 s50, 0x1000000"); a("s_mov_b32 s51, 0x20000")
        L += iv[cut:]
        if o.tpre:
            v("v_and_b32", 10, "3", 0)
            v("v_min_u32", 10, "2", 10)
            v("v_lshlrev_b32", 10, "5", 10)
            v("v_add_u32", 10, "s%d" % S_G, 10)
            a("s_mov_b32 s%d, 0x55555556" % S_T)
            v("v_mul_hi_u32", 11, "s%d" % S_T, 10)
            v("v_mul_u32_u24", 11, "0x30000", 11)
            v("v_bfe_u32", 12, 0, "2", "1")
            v("v_mul_u32_u24", 12, "0x2ff80", 12)
            v("v_add_u32", 11, 11, 12)
            v("v_lshlrev_b32", 10, "17", 10)
            L.append(I("buffer_load_dword v13, v11, %s, 0 offen" % srd(SV), "ld", rd=[11]))
            L.append(I("buffer_load_dword v14, v11, %s, 0 offen" % srd(SK), "ld", rd=[11]))
            L.append(I("buffer_load_dword v15, v10, %s, 0 offen" % srd(SQ), "ld", rd=[10]))
        a("s_mov_b32 s%d, s%d" % (S_OPREV, S_OB + 3))
        c = math.log2(math.e) / 16.0
        a("s_mov_b32 s%d, %s" % (S_C, f2h(c)))
        a("s_mov_b32 s%d, %s" % (S_NC, f2h(-c)))
        a("s_mov_b32 s%d, %s" % (S_TH, f2h(2.0 ** o.thr)))
        n16, g4 = t[2], t[3]
        v("v_and_b32", n16, "15", lane)
        v("v_lshrrev_b32", g4, "4", lane)
        v("v_and_b32", t[4], "7", lane)
        v("v_xor_b32", t[5], g4, t[4])
        v("v_lshlrev_b32", t[5], "4", t[5])
        v("v_lshl_add_u32", KA[0], n16, "7", t[5])
        v("v_xor_b32", KA[0] + 1, "64", KA[0])
        for x in range(2):
            v("v_add_u32", KA[1] + x, "0x10000", KA[0] + x)
            v("v_add_u32", 4 + x, "s%d" % S_WL, KA[0] + x)
            v("v_add_u32", QA + x, lit(6 * SLOT), 4 + x)
            if not o.tab: v("v_add_u32", 4 + x, lit(SLOT), 4 + x)
        v("v_lshrrev_b32", t[5], "1", g4)
        v("v_xor_b32", t[5], t[5], t[4])
        v("v_lshlrev_b32", t[5], "4", t[5])
        v("v_lshl_add_u32", t[5], n16, "7", t[5])
        v("v_and_b32", t[6], "1", g4)
        v("v_lshl_add_u32", t[5], t[6], "3", t[5])
        v("v_xor_b32", t[5], "64", t[5])
        a("s_add_u32 s%d, s%d, %s" % (S_T, S_WL, lit(8 * SLOT)))
        v("v_add_u32", OLW, "s%d" % S_T, t[5])
        v("v_lshlrev_b32", t[5], "4", lane)
        v("v_add_u32", OLR, "s%d" % S_T, t[5])
        v("v_lshrrev_b32", t[5], "2", lane)
        v("v_and_b32", t[6], "7", t[5])
        v("v_bfe_u32", t[7], lane, "1", "1")
        v("v_xor_b32", t[6], t[6], t[7])
        v("v_lshlrev_b32", t[6], "4", t[6])
        v("v_lshl_add_u32", t[6], t[5], "7", t[6])
        v("v_and_b32", t[7], "1", lane)
        v("v_lshl_add_u32", t[6], t[7], "3", t[6])
        v("v_xor_b32", VA, lit(g.vconst(15)), t[6])
        v("v_add_u32", VA + 1, "0x10000", VA)
        v("v_and_b32", t[5], "3", lane)
        v("v_mov_b32", t[6], "0x3f803f80")
        L.append(I("v_cmp_eq_u32 vcc, 0, v%d" % t[5], "valu", rd=[t[5]]))
        for b in range(4): v("v_mov_b32", RINV + b, "0")
        L.append(I("v_cndmask_b32 v%d, 0, v%d, vcc" % (t[6], t[6]), "valu", rd=[t[6]], wr=[t[6]]))
        for r in range(4): v("v_accvgpr_write_b32", ONES + r, t[6])
        if o.warm:
            L += [salu("s_mov_b64 exec, 0"), raw("s_branch L_hop0", "branch"), label("L_hopend"), salu("s_mov_b64 exec, -1")]
        for j in range(8):
            L.append(wait(v=[("Q", j, 1)]))
            L += g.qreads(j, pslot[j], qa=4, slot0=0 if o.tab else 1) if pslot[j] < 6 else g.qreads(j, pslot[j])
            if j == 1:
                L.append(wait(l=("QR", 1)))
                L += g.dmaK(2, False) + g.dmaK(3, False)
        L.append(barrier())
        for f in range(g.LA): L += g.frag_reads(f)
        if o.stamps: L += g.stamp_flush(0)
        L.append(wait(l=("F", 3)))
        return L

    def tail(g):
        L = [nop(7)]
        L += g.epilogue(15) + g.readback()
        for x in g.stores(S_OPREV): L += x
        if g.o.stamps:
            L.append(raw("s_waitcnt vmcnt(0)", "salu"))
            L += g.stamp_flush(4)
        L += [label("L_end"), raw("s_endpgm")]
        return L

    def slow(g):
        L = [label("L_slow"), nop(7)]
        ko = T + 5
        L += [I("v_mbcnt_lo_u32_b32 v%d, -1, 0" % ko, "valu", wr=[ko]), I("v_mbcnt_hi_u32_b32 v%d, -1, v%d" % (ko, ko), "valu", rd=[ko], wr=[ko]),
              valu("v_lshrrev_b32", T + 6, "4", ko), valu("v_and_b32", ko, "15", ko), valu("v_lshlrev_b32", ko, "9", ko),
              valu("v_lshl_add_u32", ko, T + 6, "4", ko)]
        def stile():
            X = []
            for ks in range(8):
                X.append(I("buffer_load_dwordx4 %s, %s, %s, s%d offen offset:%d" % (rn(RB + 4 * ks, 4), rn(ko), srd(SK), S_T, 64 * ks), "ld", rd=[ko]))
            X.append(salu("s_add_u32 s%d, s%d, 0x2000" % (S_T, S_T)))
            X.append(raw("s_waitcnt vmcnt(0)", "salu"))
            for ks in range(8):
                for b in range(4): X.append(mfma(ACC[1] + 4 * b, RB + 4 * ks, Q0 + (b * 8 + ks) * 4, ks == 0))
            X.append(nop(7))
            return X
        for b in range(4): L.append(valu("v_mov_b32", NEGM + b, "0xff800000"))
        L += [salu("s_mov_b32 s%d, s%d" % (S_T, S_KVC)), salu("s_mov_b32 s%d, 0" % S_U), label("L_slowA")]
        L += stile()
        for b in range(4):
            a = ACC[1] + 4 * b
            L += [valu("v_max3_f32", NEGM + b, NEGM + b, a, a + 1), valu("v_max3_f32", NEGM + b, NEGM + b, a + 2, a + 3)]
        L += [salu("s_add_u32 s%d, s%d, 1" % (S_U, S_U)), salu("s_cmp_lt_u32 s%d, 24" % S_U), raw("s_cbranch_scc1 L_slowA", "branch")]
        L += g.xreduce(True)
        for r in range(16): L.append(valu("v_accvgpr_write_b32", LACC + r, "0"))
        L += [salu("s_mov_b32 s%d, s%d" % (S_T, S_KVC)), salu("s_mov_b32 s%d, 0" % S_U), label("L_slowB")]
        for i in range(176): L.append(valu("v_mov_b32", P0 + i, P0 + i + 16))
        for half in range(2):
            L += stile()
            for e in range(16): L.append(g.fma(1, e))
            for e in range(16): L.append(g.exp(1, e))
            for k in range(8):
                a = ACC[1] + 2 * k
                L.append(valu("v_cvt_pk_bf16_f32", P0 + (44 + (k >> 1)) * 4 + 2 * half + (k & 1), a, a + 1))
        L.append(nop(1))
        for b in range(4): L.append(mfma(LACC + 4 * b, ONES, P0 + (44 + b) * 4, False))
        L += [salu("s_add_u32 s%d, s%d, 1" % (S_U, S_U)), salu("s_cmp_lt_u32 s%d, 12" % S_U), raw("s_cbranch_scc1 L_slowB", "branch")]
        L.append(nop(7))
        for b in range(4): L.append(valu("v_accvgpr_read_b32", T + b, LACC + 4 * b))
        for b in range(4): L.append(trans("v_rcp_f32", RINV + b, T + b))
        L.append(valu("v_xor_b32", ko, lit(g.vconst(0) ^ g.vconst(1)), VA))
        for j0 in (0, 6):
            for j in range(j0, j0 + 6):
                L += [dsrtr(RB + 4 * (j - j0), ko, j * 4096), dsrtr(RB + 4 * (j - j0) + 2, ko, j * 4096 + 2048)]
            L.append(raw("s_waitcnt lgkmcnt(0)", "waitall"))
            for j in range(j0, j0 + 6):
                for b in range(4): L.append(mfma(ACC[0] + 4 * b, RB + 4 * (j - j0), P0 + (j * 4 + b) * 4, j == 0))
        L += [nop(7), raw("s_branch L_back", "branch")]
        return L

LK = ("ds_r", "ds_w"); VK = ("dma", "st", "ld")
def find(q, tag):
    for k in range(len(q) - 1, -1, -1):
        if q[k].tag == tag: return k
    raise KeyError(tag)

def resolve(path):
    lv = {}; vv = {}
    lq = []; vq = []
    for x in path:
        if x.kind in LK: lq.append(x)
        elif x.kind in VK: vq.append(x)
        elif x.kind == "wait":
            if x.need is not None:
                lv[id(x)] = min(lv.get(id(x), 15), len(lq) - 1 - find(lq, x.need))
            for t in (x.vneed or []):
                vv[id(x)] = min(vv.get(id(x), 63), len(vq) - 1 - find(vq, t))
    for x in path:
        if x.kind == "wait": x.site = lv.get(id(x)); x.vsite = vv.get(id(x))
    need_l = set(); need_v = set()
    lq = []; vq = []; ld = 0; vd = 0
    for x in path:
        if x.kind in LK: lq.append(x)
        elif x.kind in VK: vq.append(x)
        elif x.kind == "waitall": ld = len(lq)
        elif x.kind == "wait":
            if x.need is not None and find(lq, x.need) >= ld:
                need_l.add(id(x)); ld = max(ld, len(lq) - x.site)
            if x.vneed and max(find(vq, t) for t in x.vneed) >= vd:
                need_v.add(id(x)); vd = max(vd, len(vq) - x.vsite)
    for x in path:
        if x.kind == "wait":
            if id(x) not in need_l: x.site = None
            if id(x) not in need_v: x.vsite = None
            parts = (["vmcnt(%d)" % x.vsite] if x.vsite is not None else []) + (["lgkmcnt(%d)" % x.site] if x.site is not None else [])
            x.drop = not parts
            x.text = "s_waitcnt " + " ".join(parts)

def check(path, strict):
    t = 0; last_mfma = -99; m0_t = -99
    lq = []; ld = 0; vq = []; vd = 0
    wr_mfma = {}; wr_valu = {}; wr_trans = {}; rdC = {}; st_data = {}
    slot_tile = {}
    vd_bar = 0; ld_bar = 0
    errs = [0]
    def err(msg, x):
        errs[0] += 1
        if errs[0] < 30: print("HAZARD:", msg, "|", x.text, file=sys.stderr)
    for x in path:
        if x.kind == "label" or x.drop: continue
        if x.kind == "mfma" and not strict: t = max(t, last_mfma + 4)
        touched = x.rd | x.wr | x.C
        for p in lq[ld:]:
            if p.kind == "ds_r" and (p.wr & touched): err("unwaited ds_read %s" % p.text, x)
        isv = x.kind in ("valu", "trans", "perm", "rfl")
        for r in touched:
            if r in wr_mfma:
                tt, full = wr_mfma[r]
                if x.kind == "mfma" and r not in x.rd and x.wr == full: continue
                if t - tt - 1 < 8: err("mfma D -> use after %d states (%s)" % (t - tt - 1, rn(r)), x)
        if x.kind in ("mfma", "perm"):
            for r in (x.rd | x.C):
                if r in wr_valu and t - wr_valu[r] - 1 < 2: err("valu -> %s" % x.kind, x)
        if x.kind == "rfl":
            for r in x.rd:
                if r in wr_valu and t - wr_valu[r] - 1 < 1: err("valu -> readfirstlane", x)
        if isv and x.kind != "trans":
            for r in x.rd:
                if r in wr_trans and t - wr_trans[r] - 1 < 1: err("trans -> valu", x)
        if isv:
            for r in x.wr:
                if r in rdC and t - rdC[r] - 1 < 3: err("mfma C WAR", x)
        for r in x.wr:
            if r in st_data and t - st_data[r] - 1 < 2: err("store data WAR", x)
        if x.kind == "dma" and t - m0_t - 1 < 1: err("m0 -> dma", x)
        if x.kind == "dma":
            slot, tag = x.reg
            for k, p in enumerate(lq):
                if p.reg and slot in p.reg[0]:
                    lim = ld_bar if (p.kind == "ds_r" and p.reg[2] == "shared") else ld
                    if k >= lim: err("dma into half slot %d before %s is known done" % (slot, p.text), x); break
            cur = slot_tile.get(slot)
            if cur and cur[0] != tag and cur[0][0] == "Q" and cur[2] < 2: err("Q half tile %s overwritten unread" % (cur[0],), x)
            slot_tile[slot] = [tag, len(vq), 0]
        if x.kind == "ds_r" and x.reg:
            slots, tag, mode = x.reg
            for slot in slots:
                cur = slot_tile.get(slot)
                if tag == "O":
                    if cur and cur[0] != "O": err("read-back of half slot %d holding %s" % (slot, cur[0]), x)
                elif not cur or cur[0] != tag: err("half slot %d holds %s, wanted %s" % (slot, cur, tag), x)
                elif cur[1] >= (vd_bar if mode == "shared" else vd): err("tile %s not known landed" % (tag,), x)
                else: cur[2] += 1
        if x.kind == "ds_w" and x.reg:
            slot = x.reg[0][0]
            cur = slot_tile.get(slot)
            if cur and cur[0] != "O":
                if cur[1] >= vd: err("staging write with a dma in flight", x)
                if cur[2] < 2: err("staging write before Q reads", x)
            slot_tile[slot] = ["O", -1, 0]
        if x.kind == "salu_m0": m0_t = t
        if x.kind == "mfma":
            last_mfma = t
            for r in x.wr: wr_mfma[r] = (t, x.wr); wr_valu.pop(r, None)
            for r in x.C: rdC[r] = t
        if isv:
            for r in x.wr:
                wr_valu[r] = t; wr_mfma.pop(r, None)
                if x.kind == "trans": wr_trans[r] = t
                else: wr_trans.pop(r, None)
        if x.kind == "st":
            for r in x.rd: st_data[r] = t
        if x.kind in LK: lq.append(x)
        if x.kind in VK: vq.append(x)
        if x.kind == "waitall": ld = len(lq)
        if x.kind == "wait":
            if x.site is not None: ld = max(ld, len(lq) - x.site)
            if x.vsite is not None: vd = max(vd, len(vq) - x.vsite)
        if x.kind == "barrier": vd_bar = vd; ld_bar = ld
        t += (x.tag + 1) if x.kind == "nop" else 1
    return errs[0]

HEADER = """; GQA attention forward, B=32 Hq=16 Hkv=8 Sq=Sk=384 D=256, bf16 in/out (emitted by my generator script).
; One persistent 4-wave workgroup per CU, three items of 256 query rows (64 per wave), K/V/Q staged by LDS-DMA.
; Per item: S^T = K Q^T in 16-key units, P = exp2(c*S - c*m) kept in registers as bf16, row sums by MFMA,
; then O^T = V^T P^T per 16-column tile.  m is the row max over the first 16 keys (never above the true max);
; @launch grid=(256,1,1) block=(256,1,1) lds=163840
.amdgcn_target "amdgcn-amd-amdhsa--gfx950"
.text
.globl {n}_kernel
.p2align 8
.type {n}_kernel,@function
{n}_kernel:
"""
FOOTER = """.section .rodata,"a"
.p2align 6
.amdhsa_kernel {n}_kernel
  .amdhsa_next_free_vgpr 512
  .amdhsa_next_free_sgpr 102
  .amdhsa_accum_offset 256
  .amdhsa_group_segment_fixed_size 0
  .amdhsa_kernarg_size 48
  .amdhsa_user_sgpr_count 2
  .amdhsa_user_sgpr_kernarg_segment_ptr 1
  .amdhsa_system_sgpr_workgroup_id_x 1
.end_amdhsa_kernel
"""

def main():
    ap = argparse.ArgumentParser()
    ap.add_argument("-o", dest="out", default="cdna_kernels/%s.s" % NAME)
    ap.add_argument("--thr", type=float, default=30.0)
    ap.add_argument("--qflag", default="nt")
    ap.add_argument("--kvflag", default="nt")
    ap.add_argument("--oflag", default="sc1")
    ap.add_argument("--rot", type=int, default=1)
    ap.add_argument("--s11", type=int, default=3)
    ap.add_argument("--st0", type=int, default=16)
    ap.add_argument("--st1", type=int, default=40)
    ap.add_argument("--qsteps", type=lambda s: [int(x) for x in s.split(",")], default=[4, 5, 6, 8, 9, 10, 13, 16])
    ap.add_argument("--stamps", type=int, default=0)
    ap.add_argument("--strict", type=int, default=1)
    ap.add_argument("--align", type=int, default=0)
    ap.add_argument("--drop", default="")
    ap.add_argument("--light", type=int, default=0)
    ap.add_argument("--cpre", type=int, default=1)
    ap.add_argument("--warm", type=int, default=0)
    ap.add_argument("--q2a", type=int, default=214)
    ap.add_argument("--vw", type=int, default=6)
    wl = lambda s: [tuple(int(y) for y in x.split("-")) for x in s.split(",")]
    ap.add_argument("--stw", type=wl, default=wl("254-294,302-343,350-383,12-44"))
    ap.add_argument("--kvw", type=wl, default=wl("188-195,196-207,236-243,244-251,252-259,268-283,284-293,294-303,312-330,332-345,346-359,360-374"))
    ap.add_argument("--qw", type=wl, default=wl("212-223,224-235,304-311"))
    ap.add_argument("--qr", type=wl, default=wl("252-255,260-264"))
    ap.add_argument("--dwin", type=int, default=8)
    ap.add_argument("--cw", type=int, default=1)
    ap.add_argument("--verbose", type=int, default=0)
    ap.add_argument("--tsplit", type=int, default=1)
    ap.add_argument("--hop", type=int, default=0)
    ap.add_argument("--touch", type=lambda s: [int(x) for x in s.split(",")] if s else [], default=[])
    ap.add_argument("--tab", type=int, default=1)
    ap.add_argument("--nonull", type=int, default=0)
    ap.add_argument("--order", type=int, default=2)
    ap.add_argument("--qplan", type=lambda s: [int(x) for x in s.split(",")], default=[3, 4, 5, 6, 7, 8, 9, 9, 10, 10, 11, 11])
    ap.add_argument("--prio", type=lambda s: [int(x) for x in s.split(",")], default=None)
    ap.add_argument("--kw", type=int, default=10)
    ap.add_argument("--ddc", type=int, default=22)
    ap.add_argument("--tpre", type=int, default=0)
    ap.add_argument("--stc", type=int, default=21)
    ap.add_argument("--rd2", type=int, default=0)
    ap.add_argument("--cv", type=int, default=1)
    o = ap.parse_args()
    COST.update({"ds_w": o.cw, "dma": 8, "st": 8})
    if o.tab == 0:
        KSLOT[:] = [5, 0, 1, 2, 6, 3, 4, 0, 1, 2, 3, 4]; VSLOT[3] = [6, 3, 4]
    g = Gen(o)
    body = g.body()
    pro, tail, slow = g.prologue(), g.tail(), g.ool + g.slow()
    path = pro + body + body + tail
    resolve(path)
    errs = check(path, o.strict) + check(slow, o.strict)
    if errs: print("%d hazard findings" % errs, file=sys.stderr)
    drop = set(o.drop.split(",")) if o.drop else set()
    body = [x for x in body if x.kind not in drop]
    if "valu" in drop: body = [x for x in body if "vccnz" not in (x.text or "")]
    if o.light:
        pro[2:2] = [raw("s_memrealtime s[60:61]"), raw("s_memtime s[80:81]"), raw("s_load_dwordx2 s[48:49], s[0:1], 40")]
        pro[len(pro) - 1:len(pro) - 1] = [raw("s_memrealtime s[62:63]"), raw("s_memtime s[82:83]"), raw("s_mov_b32 s50, 0x100000"), raw("s_mov_b32 s51, 0x20000")]
        e = len(body) - 1
        body[e:e] = [raw("s_mov_b64 s[64:65], s[66:67]"), raw("s_mov_b64 s[66:67], s[68:69]"), raw("s_memrealtime s[68:69]"),
                     raw("s_mov_b64 s[84:85], s[86:87]"), raw("s_mov_b64 s[86:87], s[88:89]"), raw("s_memtime s[88:89]")]
        e = len(tail) - 2
        x = ["s_waitcnt vmcnt(0)", "s_memrealtime s[70:71]", "s_memtime s[90:91]", "s_waitcnt lgkmcnt(0)",
             "s_cmp_lg_u32 s20, 0", "s_cbranch_scc1 L_end", "s_lshl_b32 s74, s2, 6"]
        for k in range(6):
            x += ["v_mov_b32 v0, s%d" % (60 + 2 * k), "buffer_store_dword v0, off, s[48:51], s74 offset:%d" % (4 * k), "s_nop 1"]
            x += ["v_mov_b32 v0, s%d" % (80 + 2 * k), "buffer_store_dword v0, off, s[48:51], s74 offset:%d" % (32 + 4 * k), "s_nop 1"]
        x += ["s_getreg_b32 s60, hwreg(HW_REG_XCC_ID)", "v_mov_b32 v0, s60", "buffer_store_dword v0, off, s[48:51], s74 offset:28"]
        tail[e:e] = [raw(y) for y in x]
    if o.hop:
        import subprocess, re
        def sizes(code):
            src = ".text\n" + "\n".join(x.text for x in code if not x.drop) + "\n"
            r = subprocess.run(["llvm-mc", "-triple=amdgcn-amd-amdhsa", "-mcpu=gfx950", "-show-encoding"], input=src, capture_output=True, text=True)
            enc = [len(m.split(",")) for m in re.findall(r"encoding: \[(.*?)\]", r.stdout)]
            return enc
        code = [x for x in body + tail if not x.drop]
        enc = iter(sizes(code))
        off = 0; nxt = 0; out = []; k = 0; want = False
        for x in code:
            out.append(x)
            if x.kind != "label": off += next(enc)
            if off >= nxt and x.kind == "mfma":
                out += [label("L_hop%d" % k), raw("s_cbranch_execz L_hop%d" % (k + 1), "branch")]
                off += 4; k += 1; nxt += 4096 if (o.hop == 1 or k % o.hop == 0) else 0
                if o.hop > 1: nxt = (k // o.hop) * 4096 + (k % o.hop) * 64
        nb = [i for i, x in enumerate(out) if x is body[-1]][0] + 1
        body, tail = out[:nb], out[nb:]
        e = [i for i, x in enumerate(pro) if x.kind == "wait"][0]
        pro[e:e] = [salu("s_mov_b64 exec, 0"), raw("s_branch L_hop0", "branch"), label("L_hop%d" % k), salu("s_mov_b64 exec, -1")]
        pro += [raw("s_branch L_item", "branch"), raw(".p2align 12", "label")]
    txt = HEADER.format(n=NAME)
    al = [raw(".p2align %d" % o.align, "label")] if o.align else []
    for x in pro + al + body + tail + slow:
        if x.drop: continue
        txt += ("" if x.kind == "label" else "    ") + x.text + "\n"
    txt += FOOTER.format(n=NAME)
    open(o.out, "w").write(txt)
    print(dict(Counter(x.kind for x in body if not x.drop)), file=sys.stderr)
    return 1 if errs else 0

if __name__ == "__main__":
    sys.exit(main())
```

```python
import sys, struct, math, argparse
from collections import Counter

NAME = "standalone__gqa_softmax__near_ridge"
def f2h(x): return "0x%08x" % struct.unpack("<I", struct.pack("<f", x))[0]

class I:
    __slots__ = ("text", "kind", "rd", "wr", "tag", "need", "site", "C", "reg", "drop", "vneed", "vsite")
    def __init__(s, text, kind, rd=(), wr=(), tag=None, need=None, C=(), reg=None, vneed=None):
        s.text = text; s.kind = kind; s.rd = frozenset(rd); s.wr = frozenset(wr)
        s.tag = tag; s.need = need; s.site = None; s.C = frozenset(C); s.reg = reg; s.drop = False
        s.vneed = vneed; s.vsite = None

A = 256
def R(a, n=1): return list(range(a, a + n))
def rn(a, n=1):
    p, i = ("a", a - A) if a >= A else ("v", a)
    return "%s%d" % (p, i) if n == 1 else "%s[%d:%d]" % (p, i, i + n - 1)
def lit(x): return str(x) if -16 <= x <= 64 else "0x%x" % x

def valu(op, d, *src, kind="valu"):
    rd = [x for x in src if isinstance(x, int)]
    return I("%s %s, %s" % (op, rn(d), ", ".join(rn(x) if isinstance(x, int) else x for x in src)), kind, rd=rd, wr=[d])
def trans(op, d, s): return valu(op, d, s, kind="trans")
def perm(n, a, b): return I("v_permlane%d_swap_b32 %s, %s" % (n, rn(a), rn(b)), "perm", rd=[a, b], wr=[a, b])
def salu(t, m0=False): return I(t, "salu_m0" if m0 else "salu")
def mfma(d, a, b, first):
    return I("v_mfma_f32_16x16x32_bf16 %s, %s, %s, %s" % (rn(d, 4), rn(a, 4), rn(b, 4), "0" if first else rn(d, 4)), "mfma",
             rd=R(a, 4) + R(b, 4), wr=R(d, 4), C=() if first else R(d, 4))
def dsr128(d, a, off, tag=None, reg=None):
    return I("ds_read_b128 %s, %s offset:%d" % (rn(d, 4), rn(a), off), "ds_r", rd=[a], wr=R(d, 4), tag=tag, reg=reg)
def dsrtr(d, a, off, tag=None, reg=None):
    return I("ds_read_b64_tr_b16 %s, %s offset:%d" % (rn(d, 2), rn(a), off), "ds_r", rd=[a], wr=R(d, 2), tag=tag, reg=reg)
def dsw64(a, s, off, reg=None):
    return I("ds_write_b64 %s, %s offset:%d" % (rn(a), rn(s, 2), off), "ds_w", rd=[a] + R(s, 2), reg=reg)
def dsw32(a, s, off, reg=None):
    return I("ds_write_b32 %s, %s offset:%d" % (rn(a), rn(s), off), "ds_w", rd=[a, s], reg=reg)
def wait(l=None, v=None): return I(None, "wait", need=l, vneed=v)
def raw(t, kind="salu"): return I(t, kind)
def label(n): return I(n + ":", "label")
def nop(n): return I("s_nop %d" % n, "nop", tag=n)
def barrier(): return I("s_barrier", "barrier")

P0 = 0
ACC = [192, 208]
KA = [224, 226]; QA = 228; VA = 230; VOFF = 232; OLW = 236; OLR = 237
NEGM = 238; RINV = 242; T = 246
KSLOT = [5, 4, 0, 1, 2, 3, 5, 0, 1, 2, 3, 4]
VSLOT = [[0, 1, 2], [3, 4, 5], [0, 1, 2], [7, 6, 3]]
Q0 = A + 0; FR0 = A + 128; QS = A + 160; LACC = A + 192; ONES = A + 208; RB = A + 212

SQ = 4; SK = 8; SV = 12; SO = 16
S_W = 20; S_C = 21; S_TH = 22; S_WL = 23; S_NC = 24; S_R = 25; S_G = 26
S_KVC = 27; S_KB = 28; S_KBN = 29; S_QB = 30; S_PN = 31; S_KNN = 32; S_OPREV = 33
S_SO = 34; S_SO2 = 35; S_T = 36; S_T2 = 37; S_T3 = 38; S_U = 39
S_VB = 40; S_OB = 44
S_DBG = 48; S_ST = 56; S_TM = 3

QBYTES = 32 * 16 * 384 * 256 * 2
KBYTES = 32 * 8 * 384 * 256 * 2
SLOT = 16384
def srd(s): return "s[%d:%d]" % (s, s + 3)
COST = {"trans": 2, "label": 0}
DUR = {"trans": 8, "label": 0, "ds_w": 16, "dma": 20, "st": 24}
def dur(x):
    if x.kind == "wait" and x.tag == "free": return 0
    if x.kind == "nop": return 4 * (x.tag + 1)
    return DUR.get(x.kind, 4)
def cost(x):
    if isinstance(x, list): return sum(cost(y) for y in x)
    if x.kind == "wait" and x.tag == "free": return 0
    return COST.get(x.kind, 1)

class Gen:
    def __init__(g, o):
        g.o = o; g.LA = 6; g.NF = 8
        g.nst = 0

    def dma(g, typ, slot, base, add, tag, pieces=(0, 1, 2, 3)):
        o = g.o
        s = {"K": SK, "Q": SQ, "V": SV}[typ]
        fl = o.qflag if typ == "Q" else o.kvflag
        fl = " " + fl if fl else ""
        L = [salu("s_add_u32 m0, s%d, %s" % (S_WL, lit(slot * SLOT)), m0=True),
             salu("s_add_u32 s%d, s%d, %s" % (S_SO, base, lit(add)))]
        for p in pieces:
            t = tag + (p >> 1,) if typ == "Q" else tag
            L.append(I("buffer_load_dwordx4 %s, %s, s%d offen%s%s lds" % (rn(VOFF + p), srd(s), S_SO, " offset:%d" % (1024 * p) if p else "", fl),
                       "dma", rd=[VOFF + p], tag=t if (p == 3 or (p == 1 and typ == "Q")) else None, reg=(2 * slot + (p >> 1), t)))
        return L
    def dmaK(g, c, nxt): return g.dma("K", KSLOT[c], S_KB, c * SLOT, ("K", c))
    def dmaV(g, dc, kt): return g.dma("V", VSLOT[dc][kt], S_VB + dc, kt * 65536, ("V", dc, kt))
    def dmaQ(g, j, slot, base=S_QB, halves=(0, 1)):
        return g.dma("Q", slot, base, (j >> 2) * 16384 + (j & 3) * 128, ("Q", j), [2 * h + e for h in halves for e in range(2)])
    def qreg(g, j, bb, x): return Q0 + ((2 * (j >> 2) + bb) * 8 + 2 * (j & 3) + x) * 4
    def qmoves(g, j):
        return [valu("v_accvgpr_mov_b32", g.qreg(j, bb, x) + r, QS + 16 * j + 8 * bb + 4 * x + r)
                for bb in range(2) for x in range(2) for r in range(4)]
    def qreads(g, j, slot, qa=QA, slot0=6, spare=False, halves=(0, 1)):
        L = []
        for bb in halves:
            for x in range(2):
                d = QS + 16 * j + 8 * bb + 4 * x if spare else g.qreg(j, bb, x)
                L.append(dsr128(d, qa + x, (slot - slot0) * SLOT + bb * 2048, tag=("QR", j), reg=([2 * slot + bb], ("Q", j, bb), "priv")))
        return L

    def frag(g, f): return FR0 + 4 * (f % g.NF)
    def frag_reads(g, f):
        d = g.frag(f)
        if f < 192:
            u, ks = divmod(f, 8); c = u >> 1; sl = KSLOT[c]
            return [dsr128(d, KA[sl >> 2] + (ks & 1), (sl & 3) * SLOT + (ks >> 1) * 4096 + (u & 1) * 2048,
                           tag=("F", f), reg=([2 * sl, 2 * sl + 1], ("K", c), "shared"))]
        D, j = divmod(f - 192, 12); dc = D >> 2; sl = VSLOT[dc][j >> 2]
        reg = ([2 * sl, 2 * sl + 1], ("V", dc, j >> 2), "shared")
        off = (sl & 3) * SLOT + (j & 3) * 4096
        return [dsrtr(d, VA + (sl >> 2), off, reg=reg), dsrtr(d + 2, VA + (sl >> 2), off + 2048, tag=("F", f), reg=reg)]
    @staticmethod
    def vconst(D): return (D & 3) << 5

    def mf(g, G, k):
        f, b, first = G, k, None
        if g.o.order:
            pos = (G & 1) * 4 + k; m = pos >> 1
            f = (G & ~1) + ((pos & 1) ^ (m & 1))
            n = ((G & 7) if G < 192 else (G - 192) % 12) >> 1
            b = 3 - m if (g.o.order == 2 and n & 1) else m
            first = n == 0 and not pos & 1
        if G < 192:
            u, ks = divmod(f, 8)
            return mfma(ACC[u & 1] + 4 * b, g.frag(f), Q0 + (b * 8 + ks) * 4, ks == 0 if first is None else first)
        D, j = divmod(f - 192, 12)
        return mfma(ACC[D & 1] + 4 * b, g.frag(f), P0 + (j * 4 + b) * 4, j == 0 if first is None else first)
    def summf(g, j, b):
        b = g.bo(b)
        return mfma(LACC + 4 * b, ONES, P0 + (j * 4 + b) * 4, j == 0)

    def bo(g, b): return [2, 0, 1, 3][b] if g.o.order == 2 else b
    def fma(g, u, e):
        e = 4 * g.bo(e >> 2) + (e & 3); a = ACC[u & 1] + e
        return valu("v_fma_f32", a, a, "s%d" % S_C, NEGM + (e >> 2))
    def exp(g, u, e):
        a = ACC[u & 1] + 4 * g.bo(e >> 2) + (e & 3)
        return trans("v_exp_f32", a, a)
    def cvt(g, u, k):
        k = 2 * g.bo(k >> 1) + (k & 1)
        a = ACC[u & 1] + 2 * k
        return valu("v_cvt_pk_bf16_f32", P0 + ((u >> 1) * 4 + (k >> 1)) * 4 + 2 * (u & 1) + (k & 1), a, a + 1)
    def xreduce(g, n):
        m = [NEGM + b for b in range(4)]
        return [n(), perm(32, m[1], m[3]), perm(32, m[0], m[2]),
                valu("v_max_f32", m[1], m[1], m[3]), valu("v_max_f32", m[0], m[0], m[2]), n(),
                perm(16, m[0], m[1]), valu("v_max_f32", m[1], m[0], m[1]),
                valu("v_mul_f32", m[0], "s%d" % S_NC, m[1]), valu("v_mul_f32", m[1], "s%d" % S_NC, m[1]), n(),
                perm(16, m[0], m[1]), valu("v_mov_b32", m[2], m[0]), valu("v_mov_b32", m[3], m[1]), n(),
                perm(32, m[0], m[2]), perm(32, m[1], m[3])]
    def firstmax(g, bs):
        L = []
        for b in bs:
            a = ACC[0] + 4 * b
            L += [valu("v_max3_f32", NEGM + b, a, a + 1, a + 2), valu("v_max_f32", NEGM + b, NEGM + b, a + 3)]
        return L
    def sm_stream(g, u, last_cvt):
        L = []
        for k in range(8):
            L += [g.fma(u, 2 * k), g.fma(u, 2 * k + 1), g.exp(u, 2 * k)]
            if k: L.append(g.cvt(u, k - 1))
            L.append(g.exp(u, 2 * k + 1))
        if last_cvt: L += [g.cvt(u, 7)]
        return L
    def lfinal(g):
        L = []
        for b in range(4): L.append(valu("v_accvgpr_read_b32", T + b, LACC + 4 * b))
        L.append(valu("v_max3_f32", T + 4, T, T + 1, T + 2))
        L.append(trans("v_rcp_f32", RINV, T))
        L.append(valu("v_max_f32", T + 4, T + 4, T + 3))
        L.append(trans("v_rcp_f32", RINV + 1, T + 1))
        L.append(I("v_cmp_lt_f32 vcc, s%d, %s" % (S_TH, rn(T + 4)), "valu", rd=[T + 4]))
        L.append(trans("v_rcp_f32", RINV + 2, T + 2))
        L.append(trans("v_rcp_f32", RINV + 3, T + 3))
        return L

    def epi_blocks(g, D, w32):
        t = D & 3
        B = []
        for b in map(g.bo, range(4)):
            a = ACC[D & 1] + 4 * b
            off = (b >> 1) * SLOT + (b & 1) * 2048
            mul = lambda r: valu("v_mul_f32", a + r, RINV + b, a + r)
            if w32:
                B.append([mul(0), mul(1), valu("v_cvt_pk_bf16_f32", a, a, a + 1), dsw32(OLW, a, off, reg=([16 + b], "O")),
                          mul(2), mul(3), valu("v_cvt_pk_bf16_f32", a + 2, a + 2, a + 3), dsw32(OLW, a + 2, off + 4, reg=([16 + b], "O"))])
            else:
                B.append([mul(0), mul(1), mul(2), mul(3), valu("v_cvt_pk_bf16_f32", a, a, a + 1),
                          valu("v_cvt_pk_bf16_f32", a + 1, a + 2, a + 3), dsw64(OLW, a, off, reg=([16 + b], "O"))])
        B[0].insert(0, valu("v_xor_b32", OLW, lit((t ^ ((t - 1) & 3)) << 5), OLW))
        return B
    def epilogue(g, D, w32=False): return [x for blk in g.epi_blocks(D, w32) for x in blk]
    def readback(g):
        return [dsr128(RB + 4 * n, OLR, (n >> 2) * SLOT + (n & 3) * 1024, tag=("RB", n), reg=([16 + (n >> 1)], "O", "priv")) for n in range(8)]
    def epi_rb(g, D, late=0):
        rb = g.readback()
        if late: return g.epilogue(D, g.o.w32 > 1) + rb
        B = g.epi_blocks(D, False)
        L = B[0]
        for i in range(1, 4):
            blk = B[i]; b = g.bo(i - 1)
            L += blk[:2] + [rb[2 * b]] + blk[2:4] + [rb[2 * b + 1]] + blk[4:]
        b = g.bo(3)
        return L + [rb[2 * b], rb[2 * b + 1]]
    def stores(g, base):
        fl = " " + g.o.oflag if g.o.oflag else ""
        L = []
        for n in range(8):
            x = []
            if n == 4: L.append([salu("s_add_u32 s%d, s%d, 0x4000" % (S_SO2, base))])
            x.append(wait(l=("RB", n))); x[-1].tag = "free"
            p = n & 3
            x.append(I("buffer_store_dwordx4 %s, %s, %s, s%d offen%s%s" % (rn(RB + 4 * n, 4), rn(VOFF + p), srd(SO), base if n < 4 else S_SO2,
                       " offset:%d" % (1024 * p) if p else "", fl), "st", rd=[VOFF + p] + R(RB + 4 * n, 4)))
            L.append(x)
        return L

    def item_vars(g):
        A1, A2, A3 = [], [], []
        a = lambda L, t: L.append(salu(t))
        a(A1, "s_mul_hi_u32 s%d, s%d, 0x55555556" % (S_PN, S_G))
        a(A1, "s_mul_i32 s%d, s%d, 196608" % (S_KVC, S_PN))
        a(A1, "s_lshr_b32 s%d, s%d, 5" % (S_KB, S_WL))
        a(A1, "s_add_u32 s%d, s%d, s%d" % (S_KB, S_KB, S_KVC))
        a(A1, "s_lshl_b32 s%d, s%d, 17" % (S_T2, S_G))
        a(A1, "s_lshl3_add_u32 s%d, s%d, s%d" % (S_T2, S_WL, S_T2))
        if g.o.touch:
            a(A2, "s_mul_i32 s%d, s%d, 3" % (S_T, S_PN))
            a(A2, "s_sub_u32 s%d, s%d, s%d" % (S_T, S_G, S_T))
            a(A2, "s_lshl_b32 s%d, 1, s%d" % (S_TM, S_T))
            A2.append([salu("s_cmp_lt_u32 s2, 8"), salu("s_cselect_b32 s%d, 3, s%d" % (S_TM, S_TM))])
        A2.append([salu("s_cmp_lt_u32 s%d, 2" % S_R), salu("s_cselect_b32 s%d, 0, s%d" % (S_TM, S_TM))])
        A2.append([salu("s_cmp_lt_u32 s%d, 2" % S_R), salu("s_cselect_b32 s%d, %d, 0" % (SQ + 2, QBYTES))])
        A2.append([salu("s_cmp_lt_u32 s%d, 2" % S_R), salu("s_cselect_b32 s%d, 0x400000, 0" % S_QB)])
        a(A2, "s_add_u32 s%d, s%d, s%d" % (S_QB, S_QB, S_T2))
        a(A3, "s_and_b32 s%d, s%d, %d" % (S_T, S_PN, 3 if g.o.rot else 0))
        a(A3, "s_lshl_b32 s%d, s%d, 7" % (S_T, S_T))
        a(A3, "s_lshl2_add_u32 s%d, s%d, s%d" % (S_T3, S_WL, S_KVC))
        for dc in range(4):
            a(A3, "s_add_u32 s%d, s%d, s%d" % (S_VB + dc, S_T3, S_T))
            a(A3, "s_add_u32 s%d, s%d, s%d" % (S_OB + dc, S_T2, S_T))
            if dc < 3:
                a(A3, "s_add_u32 s%d, s%d, 128" % (S_T, S_T))
                a(A3, "s_and_b32 s%d, s%d, 0x180" % (S_T, S_T))
        return A1, A2, A3

    def stamp(g):
        if not g.o.stamps: return []
        k = g.nst; g.nst += 1
        return [raw("v_writelane_b32 v%d, s56, %d" % (T + 9, k)), raw("v_writelane_b32 v%d, s58, %d" % (T + 9, 32 + k)),
                raw("s_memtime s[56:57]", "smem"), raw("s_memrealtime s[58:59]", "smem")]
    def stamp_flush(g, row):
        L = g.stamp()
        g.nst = 0
        if row == 0: return L + [raw("v_accvgpr_write_b32 a247, v%d" % (T + 9))]
        if row is None:
            return L + [raw("v_accvgpr_mov_b32 a246, a245"), raw("v_accvgpr_mov_b32 a245, a244"), raw("v_accvgpr_write_b32 a244, v%d" % (T + 9))]
        L += [raw("s_waitcnt lgkmcnt(0)", "waitall"),
              raw("v_writelane_b32 v%d, s56, 31" % (T + 9)), raw("v_writelane_b32 v%d, s58, 63" % (T + 9))]
        L += [raw("v_mbcnt_lo_u32_b32 v%d, -1, 0" % (T + 8)), raw("v_mbcnt_hi_u32_b32 v%d, -1, v%d" % (T + 8, T + 8)),
              raw("v_lshlrev_b32 v%d, 2, v%d" % (T + 8, T + 8))]
        L.append(salu("s_lshl_b32 s52, s2, 13"))
        L.append(salu("s_lshr_b32 s53, s%d, 1" % S_WL))
        L.append(salu("s_add_u32 s52, s52, s53"))
        for k in range(4): L.append(raw("buffer_store_dword a%d, v%d, s[48:51], s52 offen offset:%d" % (247 - k, T + 8, 256 * k), "salu"))
        L.append(raw("buffer_store_dword v%d, v%d, s[48:51], s52 offen offset:1024" % (T + 9, T + 8), "salu"))
        return L

    def body(g):
        o = g.o; LA = g.LA
        mfs = []; idx = {}; last = {}
        sums = {}
        for j in range(11):
            for b in range(4): sums[16 * (j + 1) + 4 * b + 3] = (j, b)
        s11 = {192 + o.s11 + 2 * b: (11, b) for b in range(4)}
        for G in range(384):
            for b in range(4):
                idx[(G, b)] = len(mfs); mfs.append(g.mf(G, b))
            for sm in (sums, s11):
                if G in sm: mfs.append(g.summf(*sm[G]))
            last[G] = len(mfs) - 1
        N = len(mfs)
        front = [[] for _ in range(N)]; gap = [[] for _ in range(N)]; end = [[] for _ in range(N)]
        VEC = ("valu", "trans", "perm", "nop")
        def flat(x): return x if isinstance(x, list) else [x]
        def isvec(x): return any(y.kind in VEC for y in flat(x))
        PRI = {"st": 1, "ds_r": 2, "dma": 3, "ds_w": 4}
        def order(F): return sorted(F, key=lambda y: PRI.get(y.kind, 0))
        def gtime(L):
            t = 4; floor = 16; prev = None
            for y in L:
                k = y.kind
                if k == "label" or (k == "wait" and y.tag == "free"): continue
                if k in ("valu", "perm"): t = max(t, 8) + 4
                elif k == "trans": t = max(t, 8) + 8
                elif k == "nop": t += 4 * (y.tag + 1)
                elif k in ("branch", "barrier"): t += 10
                elif k in PRI:
                    t = max(t, 8)
                    if prev in ("valu", "perm", "trans"): t += 8
                    if floor > 16: floor += o.spc
                    if k == "ds_r": t += 16 if prev == "ds_w" else (o.rrc if (prev == "ds_r" and len(y.wr) == 4) else 4)
                    elif k == "ds_w": t += 4 * len(y.rd)
                    elif k == "dma": t += o.ddc if prev == "dma" else 16
                    else: floor = max(floor, t) + (o.stc if floor == 16 else 24); t += 4
                else: t += 4
                prev = k
            return max(floor, t)
        def now(i): return gtime(order(front[i]) + gap[i] + end[i])
        def incr(i, x):
            if isvec(x): return gtime(order(front[i]) + gap[i] + flat(x) + end[i]) - now(i)
            return gtime(order(front[i] + flat(x)) + gap[i] + end[i]) - now(i)
        def put(i, x): (gap if isvec(x) else front)[i].extend(flat(x))
        def putend(i, x): end[i].append(x)
        def cls(x): return 9 if isvec(x) else PRI.get(flat(x)[0].kind, 0) if flat(x)[0].tag != "free" else 1
        def place(L, g0, g1, lo=None, hi=None, win=3):
            lo = idx[(g0, 0)] if lo is None else lo
            hi = last[g1] if hi is None else hi
            tot = sum(cost(x) for x in L); acc = 0; tg = []
            for x in L:
                tg.append(lo + (acc + 0.5 * cost(x)) * (hi - lo + 1) / tot - 0.5); acc += cost(x)
            n = len(L); INF = 1e18
            win = max(win, o.minwin)
            f = {0: (0.0, None)}; hist = []
            for gp in range(lo, hi + 1):
                base = now(gp); empty = not front[gp] and not gap[gp]
                nf = {}
                for i, (c, _) in f.items():
                    if i not in nf or c < nf[i][0]: nf[i] = (c, i)
                    F = list(front[gp]); V = list(gap[gp]); pen = 0.0
                    for j in range(i, min(n, i + 8)):
                        x = L[j]
                        if j > i and cls(x) < cls(L[j - 1]): break
                        d = abs(gp - tg[j])
                        pen += 0.02 * d + (3.0 * (d - win) if d > win else 0)
                        if j == i and empty and cls(x) in (2, 9): pen += 0.3
                        if cls(x) in (1, 3):
                            pen += sum(o.vnear * (4 - abs(e)) for e in (-3, -2, -1, 1, 2, 3) if 0 <= gp + e < N and any(y.kind in ("st", "dma") for y in front[gp + e]))
                        (V if isvec(x) else F).extend(flat(x))
                        cc = c + pen + gtime(order(F) + V + end[gp]) - base
                        if j + 1 not in nf or cc < nf[j + 1][0]: nf[j + 1] = (cc, i)
                hist.append(nf); f = nf
            assert n in f, (g0, g1)
            j = n
            for gp in range(hi, lo - 1, -1):
                i = hist[gp - lo][j][1]
                for x in L[i:j]: put(gp, x)
                j = i
        bars = {}
        for s in range(12): bars[(16 * s - 4) % 384] = [("K", s)]
        for dc in range(4): bars[192 + 48 * dc - 4] = [("V", dc, kt) for kt in range(3)]
        for G in range(0, 384, 4):
            put(idx[((G - 1) % 384, 3)], wait(l=("F", G + 3), v=bars.get(G)))
            if G in bars: put(last[G - 1], barrier())
        for G in list(range(16, 192, 16)) + list(range(192, 384, 12)):
            end[last[G - 1]] += g.stamp()
        for f in range(384):
            G = (f - LA) % 384; k0 = 0
            for e in range(4):
                if (f - e - 4) % 384 in bars: G = (f - e - 4 + (e >> 1)) % 384; k0 = 2 * (e & 1)
            for k, x in enumerate(g.frag_reads(f)): put(idx[(G, k0 + k)], x)
        for D in range(16):
            G = 192 + 12 * D - LA - 1
            x = [valu("v_xor_b32", VA + r, lit(g.vconst(D) ^ g.vconst((D - 1) % 16)), VA + r) for r in range(2)]
            if D: place(x, None, None, lo=idx[(G, 1)], hi=last[G], win=4)
            else: vx0 = x
        for u in range(2, 24):
            for k in range(8):
                G = 8 * u + k
                put(idx[(G, 0)], g.fma(u - 1, 2 * k))
                put(idx[(G, 1)], g.exp(u - 1, 2 * k))
                put(idx[(G, 2)], g.cvt(u - 1, k - 1) if k else g.cvt(u - 2, 7))
                put(idx[(G, 2)], g.fma(u - 1, 2 * k + 1))
                put(idx[(G, 3)], g.exp(u - 1, 2 * k + 1))
        put(idx[(192, 2)], g.cvt(22, 7))
        place(vx0, 186, 187, win=8)
        bs = [3, 2, 1, 0] if o.order == 2 else [0, 1, 2, 3]
        place(g.firstmax(bs[:1]), None, None, lo=idx[(7, 1)], hi=idx[(7, 2)], win=1)
        place(g.firstmax(bs[1:2]), None, None, lo=idx[(7, 3)], hi=idx[(7, 3)], win=1)
        place(g.firstmax(bs[2:]) + g.xreduce(lambda: salu("s_nop 0")) + g.sm_stream(0, False), 8, 15, win=1)
        lo = idx[(192, 0)]
        for b in range(4):
            e = 4 * b
            st = [g.fma(23, e), g.fma(23, e + 1), g.exp(23, e), g.exp(23, e + 1), g.fma(23, e + 2), g.fma(23, e + 3),
                  g.exp(23, e + 2), g.exp(23, e + 3), g.cvt(23, 2 * b), g.cvt(23, 2 * b + 1)]
            hi = idx[(192 + o.s11 + 2 * b, 1)]
            if b < 3: hi = min(hi, lo + (idx[(192 + o.s11 + 6, 1)] - lo) // (4 - b))
            place(st, None, None, lo=lo, hi=hi, win=1)
            lo = hi + 1
        place(g.lfinal(), 192 + o.s11 + 7, 203, lo=idx[(192 + o.s11 + 7, 1)], win=1)
        putend(last[203], raw("s_cbranch_vccnz L_slow", "branch")); end[last[203]].append(label("L_back"))
        W = []
        qp = o.qplan
        assert qp == sorted(qp) and len(qp) in (10, 12) and max(qp) < 12
        n1 = len(qp) // 2
        ns = n1 - 4
        qslot = [7, 8][:ns] + [None, [8, 9, 6, 7], [9, 6, 7, 8]][ns] + [7, 6, 7][:8 - n1]
        if o.tab == 1: qslot = [7, 6, 8, 9, 7, 6, 7, 6]
        if o.tab == 2: qslot = [6, 8, 9, 7, 6, 7, 6, 6]
        qs = {}
        for h, w in enumerate(qp): qs.setdefault(w, []).append(h)
        kv = [g.dmaK(c, False) for c in range(4, 12)] + [g.dmaV(dc, kt) for dc in range(4) for kt in range(3)] + [g.dmaK(c, True) for c in range(4)]
        for s in range(12):
            a0 = max(16 * s - 4, 0)
            n = 8 if len(qs.get(s, [])) > 1 else min(o.kw, 11) if s in qs else o.kw
            W.append((kv[s], a0, min(a0 + n - 1, 16 * s + 11)))
            if s in qs:
                t = []
                for j in sorted(set(h >> 1 for h in qs[s])):
                    t += g.dmaQ(j, qslot[j], halves=[h & 1 for h in qs[s] if h >> 1 == j])
                W.append((t, 16 * s - 4 + n, 16 * s + 11))
        for t, (a0, b0) in zip(kv[12:], o.kvw): W.append((t, a0, b0))
        for j, (a0, b0) in zip(range(n1, n1 + 2), o.qw): W.append((g.dmaQ(j, qslot[j]), a0, b0))
        if n1 == 5:
            for h in range(2): W.append((g.dmaQ(7, qslot[7], halves=[h]), *o.qw[2 + h]))
        W.sort(key=lambda x: x[1])
        assert all(p[2] < q[1] for p, q in zip(W, W[1:])), [(p[1], p[2]) for p in W]
        place(g.stores(S_OB), *o.stw[0], win=o.dwin)
        place(g.stores(S_KBN), *o.stw[1], win=o.dwin)
        place(g.stores(S_KNN), *o.stw[2], hi=min(last[o.stw[2][1]], idx[(383, 1)]), win=o.dwin)
        place(g.stores(S_OPREV) + [salu("s_mov_b32 s%d, %d" % (SO + 2, QBYTES))], *o.stw[3], win=o.dwin)
        for t, a, b in W: place(t, a, b, win=o.dwin)
        for D in range(16):
            G1 = (192 + 12 * (D + 1)) % 384
            if D == 0:
                held = sorted(range(ns, n1), key=lambda j: [8, 9, 7, 6].index(qslot[j]))
                place([wait(v=[("Q", max(held[:2]), 1)])] + [x for j in held[:2] for x in g.qreads(j, qslot[j])], G1, G1 + 3, win=2)
                place([wait(v=[("Q", held[2], 1)])] + g.qreads(held[2], qslot[held[2]]), G1 + 4, G1 + 5, win=2)
                place([wait(v=[("Q", held[3], 1)])] + g.qreads(held[3], qslot[held[3]]), G1 + 12, G1 + 15, win=2)
                ep = g.epilogue(D)
                place(ep[:7], G1, G1 + 3, win=2)
                place(ep[7:], G1 + 4, G1 + 11, win=2)
            elif D == 15:
                place(g.epi_rb(D), 0, 7, hi=idx[(7, 0)], win=2)
            elif D & 3 == 3:
                place(g.epi_rb(D, o.rbl), G1, G1 + 11)
            else:
                place(g.epilogue(D, o.w32 > 0), G1, G1 + 11)
        for h in range(2 * ns):
            j, bb = h >> 1, h & 1
            nxt = [k for k in range(j + 1, 8) if qslot[k] == qslot[j]]
            G1 = 16 * qp[2 * nxt[0] + bb] + 4
            G0 = max(G1 - 20, min(16 * qp[h] + 11 + 24, G1 - 9))
            place([wait(v=[("Q", j, bb)])] + g.qreads(j, qslot[j], spare=True, halves=[bb]), G0, G1 - 8, win=8)
        for j, (a0, b0) in zip(range(n1, 8), o.qr):
            place([wait(v=[("Q", j, 1)])] + g.qreads(j, qslot[j]), a0, b0, win=4)
        if ns: place([x for j in range(ns) for x in g.qmoves(j)], 216, 239, win=4)
        g.ool = []
        for kt, G in enumerate(o.touch):
            place([[salu("s_bitcmp1_b32 s%d, %d" % (S_TM, kt)), raw("s_cbranch_scc1 L_touch%d" % kt, "branch"), label("L_touchr%d" % kt)]], G, G + 3, win=8)
            X = [label("L_touch%d" % kt)]
            a, b = T + 5, T + 6
            X += [I("v_mbcnt_lo_u32_b32 v%d, -1, 0" % a, "valu", wr=[a]), I("v_mbcnt_hi_u32_b32 v%d, -1, v%d" % (a, a), "valu", rd=[a], wr=[a]),
                  salu("s_sub_u32 s%d, s%d, s%d" % (S_T, S_VB + 3, S_VB + 2)),
                  valu("v_lshrrev_b32", b, "5", a), valu("v_mul_lo_u32", b, "s%d" % S_T, b), valu("v_and_b32", a, "31", a),
                  valu("v_lshl_add_u32", a, a, "9", b), valu("v_add_u32", a, "s%d" % (S_VB + 2), a),
                  salu("s_mov_b32 s%d, %s" % (S_T, lit(kt * 65536))),
                  I("buffer_load_dword v%d, v%d, %s, s%d offen" % (T + 7, a, srd(SV), S_T), "ld", rd=[a]),
                  raw("s_branch L_touchr%d" % kt, "branch")]
            g.ool += X
        if o.warm:
            hops = list(range(o.warm // 2, 384, o.warm))
            for k, G in enumerate(hops):
                place([[label("L_hop%d" % k), raw("s_cbranch_execz %s" % ("L_hop%d" % (k + 1) if k + 1 < len(hops) else "L_hopend"), "branch")]], G, G, win=4)
        A1, A2, A3 = g.item_vars()
        upd = [salu("s_mov_b32 s%d, s%d" % (S_KBN, S_OB + 1)), salu("s_mov_b32 s%d, s%d" % (S_KNN, S_OB + 2)),
               salu("s_mov_b32 s%d, s%d" % (S_OPREV, S_OB + 3)),
               [salu("s_cmp_lt_u32 s%d, 2" % S_R), salu("s_cselect_b32 s%d, 32, 0" % S_T)],
               [salu("s_cmp_lt_u32 s%d, 2" % S_R), salu("s_cselect_b32 s%d, %d, 0" % (SK + 2, KBYTES))],
               salu("s_add_u32 s%d, s%d, s%d" % (S_G, S_G, S_T)),
               salu("s_add_u32 s%d, s%d, 1" % (S_R, S_R))] + A1
        assert max(b for a, b in o.qw) < 352 and o.kvw[8][0] > 300 and o.stw[1][0] > 250 and o.stw[0][1] < 310
        place(upd, 240, 300, win=6)
        place(A3, max(o.kvw[7][1] + 1, 310), 351, win=6)
        place(A2, 352, 378, win=6)
        put(idx[(383, 2)], salu("s_cmp_lt_u32 s%d, 3" % S_R))
        if o.pad:
            n, a0, b0 = o.pad
            for G in range(a0, b0): end[idx[(G, 1)]].append(nop(n))
        out = [label("L_item")]
        for i in range(N):
            out.append(mfs[i]); out += order(front[i]) + gap[i] + end[i]
        if o.stamps:
            out += g.stamp_flush(None) + [salu("s_cmp_lt_u32 s%d, 3" % S_R)]
        out.append(raw("s_cbranch_scc1 L_item", "branch"))
        seg = list(range(0, 192, 16)) + list(range(192, 384, 12)) + [384]
        if o.verbose: print("est:", " ".join("%4d" % sum(now(i) for i in range(idx[(a, 0)], last[b - 1] + 1)) for a, b in zip(seg, seg[1:])), file=sys.stderr)
        print("gaps %d, est cycles phase 1 %d, phase 2 %d" % (N, sum(now(i) for i in range(idx[(192, 0)])), sum(now(i) for i in range(idx[(192, 0)], N))), file=sys.stderr)
        return out

    def prologue(g):
        o = g.o
        L = []
        a = lambda t: L.append(salu(t))
        v = lambda *x, **k: L.append(valu(*x, **k))
        a("s_cmp_ge_u32 s2, 256")
        L.append(raw("s_cbranch_scc1 L_end", "branch"))
        L.append(raw("s_load_dwordx4 s[4:7], s[0:1], 0", "smem"))
        L.append(raw("s_load_dwordx4 s[12:15], s[0:1], 16", "smem"))
        if o.stamps:
            L.append(raw("s_load_dwordx2 s[48:49], s[0:1], 40", "smem"))
            L.append(raw("s_memtime s[56:57]", "smem")); L.append(raw("s_memrealtime s[58:59]", "smem"))
        t = [T + i for i in range(8)]
        lane, w = t[0], t[1]
        v("v_lshrrev_b32", w, "6", 0)
        v("v_and_b32", lane, "63", 0)
        L.append(I("v_readfirstlane_b32 s%d, v%d" % (S_W, w), "rfl", rd=[w]))
        a("s_and_b32 s%d, s2, 7" % S_T)
        a("s_mul_i32 s%d, s%d, 96" % (S_T, S_T))
        a("s_lshr_b32 s%d, s2, 3" % S_G)
        a("s_add_u32 s%d, s%d, s%d" % (S_G, S_G, S_T))
        a("s_mov_b32 s%d, 0" % S_R)
        a("s_lshl_b32 s%d, s%d, 12" % (S_WL, S_W))
        v("v_lshrrev_b32", t[2], "3", lane)
        v("v_and_b32", t[3], "7", lane)
        v("v_xor_b32", t[3], t[3], t[2])
        v("v_lshlrev_b32", t[3], "4", t[3])
        v("v_lshl_add_u32", VOFF, t[2], "9", t[3])
        for p in range(1, 4): v("v_add_u32", VOFF + p, lit(3072 * p), VOFF)
        if o.cpre:
            a("s_getpc_b64 s[52:53]")
            if o.hop:
                L.append(label("L_pc"))
                a("s_add_u32 s52, s52, L_item-L_pc"); a("s_addc_u32 s53, s53, 0")
            v("v_lshlrev_b32", 2, "7", 0)
            v("v_mov_b32", 3, "s53")
            L.append(I("v_add_co_u32 v2, vcc, s52, v2", "valu", rd=[2], wr=[2]))
            L.append(nop(1))
            L.append(I("v_addc_co_u32 v3, vcc, 0, v3, vcc", "valu", rd=[3], wr=[3]))
            L.append(I("global_load_dword v8, v[2:3], off", "ld", rd=[2, 3]))
        fl = lambda X: [y for x in X for y in (x if isinstance(x, list) else [x])]
        A1, A2, A3 = g.item_vars()
        L += fl(A1)
        L.append(raw("s_waitcnt lgkmcnt(0)", "waitall"))
        a("s_mov_b32 s8, s6"); a("s_mov_b32 s9, s7")
        a("s_mov_b32 s7, 0x20000"); a("s_mov_b32 s11, 0x20000"); a("s_mov_b32 s10, %d" % KBYTES)
        a("s_mov_b32 s6, %d" % QBYTES)
        pslot = [0, 1, 2, 3, 6, 7, 8, 9] if o.tab == 1 else [1, 2, 6, 3, 4, 7, 8, 9]
        first = g.dmaK(0, False)
        for j in range(8): first += g.dmaQ(j, pslot[j], base=S_T2)
        if o.prio:
            tab = sum(v << (4 * i) for i, v in enumerate(o.prio))
            pre = [salu("s_and_b32 s%d, s2, 1" % S_U), salu("s_lshr_b32 s%d, s2, 6" % S_SO2),
                   salu("s_lshl2_add_u32 s%d, s%d, s%d" % (S_U, S_U, S_SO2)), salu("s_lshl_b32 s%d, s%d, 2" % (S_U, S_U)),
                   salu("s_lshr_b32 s%d, 0x%x, s%d" % (S_U, tab, S_U)), salu("s_and_b32 s%d, s%d, 15" % (S_U, S_U))]
            out = []; k = 0
            for x in first:
                out.append(x)
                if x.kind == "dma":
                    k += 1
                    if k % 2 == 0 and k // 2 <= max(o.prio):
                        out += [salu("s_cmp_lt_u32 s%d, %d" % (S_U, k // 2)), raw("s_cbranch_scc1 L_pw%d" % k, "branch"),
                                raw("s_waitcnt vmcnt(0)"), label("L_pw%d" % k)]
            e = [i for i, x in enumerate(L) if x.kind == "waitall"][0]
            L[e:e] = pre
            first = out
        L += first
        L += g.dmaK(1, False)
        a("s_mov_b32 s16, s14"); a("s_mov_b32 s17, s15")
        a("s_mov_b32 s15, 0x20000"); a("s_mov_b32 s19, 0x20000")
        a("s_mov_b32 s14, %d" % KBYTES); a("s_mov_b32 s18, 0")
        if o.stamps: a("s_mov_b32 s50, 0x1000000"); a("s_mov_b32 s51, 0x20000")
        L += fl(A2) + fl(A3)
        if o.tpre:
            v("v_and_b32", 10, "3", 0)
            v("v_min_u32", 10, "2", 10)
            v("v_lshlrev_b32", 10, "5", 10)
            v("v_add_u32", 10, "s%d" % S_G, 10)
            a("s_mov_b32 s%d, 0x55555556" % S_T)
            v("v_mul_hi_u32", 11, "s%d" % S_T, 10)
            v("v_mul_u32_u24", 11, "0x30000", 11)
            v("v_bfe_u32", 12, 0, "2", "1")
            v("v_mul_u32_u24", 12, "0x2ff80", 12)
            v("v_add_u32", 11, 11, 12)
            v("v_lshlrev_b32", 10, "17", 10)
            L.append(I("buffer_load_dword v13, v11, %s, 0 offen" % srd(SV), "ld", rd=[11]))
            L.append(I("buffer_load_dword v14, v11, %s, 0 offen" % srd(SK), "ld", rd=[11]))
            L.append(I("buffer_load_dword v15, v10, %s, 0 offen" % srd(SQ), "ld", rd=[10]))
        a("s_mov_b32 s%d, s%d" % (S_OPREV, S_OB + 3))
        c = math.log2(math.e) / 16.0
        a("s_mov_b32 s%d, %s" % (S_C, f2h(c)))
        a("s_mov_b32 s%d, %s" % (S_NC, f2h(-c)))
        a("s_mov_b32 s%d, %s" % (S_TH, f2h(2.0 ** o.thr)))
        n16, g4 = t[2], t[3]
        v("v_and_b32", n16, "15", lane)
        v("v_lshrrev_b32", g4, "4", lane)
        v("v_and_b32", t[4], "7", lane)
        v("v_xor_b32", t[5], g4, t[4])
        v("v_lshlrev_b32", t[5], "4", t[5])
        v("v_lshl_add_u32", KA[0], n16, "7", t[5])
        v("v_xor_b32", KA[0] + 1, "64", KA[0])
        for x in range(2):
            v("v_add_u32", KA[1] + x, "0x10000", KA[0] + x)
            v("v_add_u32", 4 + x, "s%d" % S_WL, KA[0] + x)
            v("v_add_u32", QA + x, lit(6 * SLOT), 4 + x)
            if o.tab != 1: v("v_add_u32", 4 + x, lit(SLOT), 4 + x)
        v("v_lshrrev_b32", t[5], "1", g4)
        v("v_xor_b32", t[5], t[5], t[4])
        v("v_lshlrev_b32", t[5], "4", t[5])
        v("v_lshl_add_u32", t[5], n16, "7", t[5])
        v("v_and_b32", t[6], "1", g4)
        v("v_lshl_add_u32", t[5], t[6], "3", t[5])
        v("v_xor_b32", t[5], "64", t[5])
        a("s_add_u32 s%d, s%d, %s" % (S_T, S_WL, lit(8 * SLOT)))
        v("v_add_u32", OLW, "s%d" % S_T, t[5])
        v("v_lshlrev_b32", t[5], "4", lane)
        v("v_add_u32", OLR, "s%d" % S_T, t[5])
        v("v_lshrrev_b32", t[5], "2", lane)
        v("v_and_b32", t[6], "7", t[5])
        v("v_bfe_u32", t[7], lane, "1", "1")
        v("v_xor_b32", t[6], t[6], t[7])
        v("v_lshlrev_b32", t[6], "4", t[6])
        v("v_lshl_add_u32", t[6], t[5], "7", t[6])
        v("v_and_b32", t[7], "1", lane)
        v("v_lshl_add_u32", t[6], t[7], "3", t[6])
        v("v_xor_b32", VA, lit(g.vconst(15)), t[6])
        v("v_add_u32", VA + 1, "0x10000", VA)
        v("v_and_b32", t[5], "3", lane)
        v("v_mov_b32", t[6], "0x3f803f80")
        L.append(I("v_cmp_eq_u32 vcc, 0, v%d" % t[5], "valu", rd=[t[5]]))
        for b in range(4): v("v_mov_b32", RINV + b, "0")
        L.append(I("v_cndmask_b32 v%d, 0, v%d, vcc" % (t[6], t[6]), "valu", rd=[t[6]], wr=[t[6]]))
        for r in range(4): v("v_accvgpr_write_b32", ONES + r, t[6])
        if o.warm:
            L += [salu("s_mov_b64 exec, 0"), raw("s_branch L_hop0", "branch"), label("L_hopend"), salu("s_mov_b64 exec, -1")]
        for j in range(8):
            L.append(wait(v=[("Q", j, 1)]))
            L += g.qreads(j, pslot[j], qa=4, slot0=0 if o.tab == 1 else 1) if pslot[j] < 6 else g.qreads(j, pslot[j])
            if j == 1:
                L.append(wait(l=("QR", 1)))
                L += g.dmaK(2, False) + g.dmaK(3, False)
        L.append(barrier())
        for f in range(g.LA): L += g.frag_reads(f)
        if o.stamps: L += g.stamp_flush(0)
        L.append(wait(l=("F", 3)))
        return L

    def tail(g):
        L = [nop(7)]
        L += g.epilogue(15) + g.readback()
        for x in g.stores(S_OPREV): L += x
        if g.o.stamps:
            L.append(raw("s_waitcnt vmcnt(0)", "salu"))
            L += g.stamp_flush(4)
        L += [label("L_end"), raw("s_endpgm")]
        return L

    def slow(g):
        L = [label("L_slow"), nop(7)]
        ko = T + 5
        L += [I("v_mbcnt_lo_u32_b32 v%d, -1, 0" % ko, "valu", wr=[ko]), I("v_mbcnt_hi_u32_b32 v%d, -1, v%d" % (ko, ko), "valu", rd=[ko], wr=[ko]),
              valu("v_lshrrev_b32", T + 6, "4", ko), valu("v_and_b32", ko, "15", ko), valu("v_lshlrev_b32", ko, "9", ko),
              valu("v_lshl_add_u32", ko, T + 6, "4", ko)]
        def stile():
            X = []
            for ks in range(8):
                X.append(I("buffer_load_dwordx4 %s, %s, %s, s%d offen offset:%d" % (rn(RB + 4 * ks, 4), rn(ko), srd(SK), S_T, 64 * ks), "ld", rd=[ko]))
            X.append(salu("s_add_u32 s%d, s%d, 0x2000" % (S_T, S_T)))
            X.append(raw("s_waitcnt vmcnt(0)", "salu"))
            for ks in range(8):
                for b in range(4): X.append(mfma(ACC[1] + 4 * b, RB + 4 * ks, Q0 + (b * 8 + ks) * 4, ks == 0))
            X.append(nop(7))
            return X
        for b in range(4): L.append(valu("v_mov_b32", NEGM + b, "0xff800000"))
        L += [salu("s_mov_b32 s%d, s%d" % (S_T, S_KVC)), salu("s_mov_b32 s%d, 0" % S_U), label("L_slowA")]
        L += stile()
        for b in range(4):
            a = ACC[1] + 4 * b
            L += [valu("v_max3_f32", NEGM + b, NEGM + b, a, a + 1), valu("v_max3_f32", NEGM + b, NEGM + b, a + 2, a + 3)]
        L += [salu("s_add_u32 s%d, s%d, 1" % (S_U, S_U)), salu("s_cmp_lt_u32 s%d, 24" % S_U), raw("s_cbranch_scc1 L_slowA", "branch")]
        L += g.xreduce(lambda: nop(1))
        for r in range(16): L.append(valu("v_accvgpr_write_b32", LACC + r, "0"))
        L += [salu("s_mov_b32 s%d, s%d" % (S_T, S_KVC)), salu("s_mov_b32 s%d, 0" % S_U), label("L_slowB")]
        for i in range(176): L.append(valu("v_mov_b32", P0 + i, P0 + i + 16))
        for half in range(2):
            L += stile()
            for e in range(16): L.append(g.fma(1, e))
            for e in range(16): L.append(g.exp(1, e))
            for k in range(8):
                a = ACC[1] + 2 * k
                L.append(valu("v_cvt_pk_bf16_f32", P0 + (44 + (k >> 1)) * 4 + 2 * half + (k & 1), a, a + 1))
        L.append(nop(1))
        for b in range(4): L.append(mfma(LACC + 4 * b, ONES, P0 + (44 + b) * 4, False))
        L += [salu("s_add_u32 s%d, s%d, 1" % (S_U, S_U)), salu("s_cmp_lt_u32 s%d, 12" % S_U), raw("s_cbranch_scc1 L_slowB", "branch")]
        L.append(nop(7))
        for b in range(4): L.append(valu("v_accvgpr_read_b32", T + b, LACC + 4 * b))
        for b in range(4): L.append(trans("v_rcp_f32", RINV + b, T + b))
        L.append(valu("v_xor_b32", ko, lit(g.vconst(0) ^ g.vconst(1)), VA))
        for j0 in (0, 6):
            for j in range(j0, j0 + 6):
                L += [dsrtr(RB + 4 * (j - j0), ko, j * 4096), dsrtr(RB + 4 * (j - j0) + 2, ko, j * 4096 + 2048)]
            L.append(raw("s_waitcnt lgkmcnt(0)", "waitall"))
            for j in range(j0, j0 + 6):
                for b in range(4): L.append(mfma(ACC[0] + 4 * b, RB + 4 * (j - j0), P0 + (j * 4 + b) * 4, j == 0))
        L += [nop(7), raw("s_branch L_back", "branch")]
        return L

LK = ("ds_r", "ds_w"); VK = ("dma", "st", "ld")
def find(q, tag):
    for k in range(len(q) - 1, -1, -1):
        if q[k].tag == tag: return k
    raise KeyError(tag)

def resolve(path):
    lv = {}; vv = {}
    lq = []; vq = []
    for x in path:
        if x.kind in LK: lq.append(x)
        elif x.kind in VK: vq.append(x)
        elif x.kind == "wait":
            if x.need is not None:
                lv[id(x)] = min(lv.get(id(x), 15), len(lq) - 1 - find(lq, x.need))
            for t in (x.vneed or []):
                vv[id(x)] = min(vv.get(id(x), 63), len(vq) - 1 - find(vq, t))
    for x in path:
        if x.kind == "wait": x.site = lv.get(id(x)); x.vsite = vv.get(id(x))
    need_l = set(); need_v = set()
    lq = []; vq = []; ld = 0; vd = 0
    for x in path:
        if x.kind in LK: lq.append(x)
        elif x.kind in VK: vq.append(x)
        elif x.kind == "waitall": ld = len(lq)
        elif x.kind == "wait":
            if x.need is not None and find(lq, x.need) >= ld:
                need_l.add(id(x)); ld = max(ld, len(lq) - x.site)
            if x.vneed and max(find(vq, t) for t in x.vneed) >= vd:
                need_v.add(id(x)); vd = max(vd, len(vq) - x.vsite)
    for x in path:
        if x.kind == "wait":
            if id(x) not in need_l: x.site = None
            if id(x) not in need_v: x.vsite = None
            parts = (["vmcnt(%d)" % x.vsite] if x.vsite is not None else []) + (["lgkmcnt(%d)" % x.site] if x.site is not None else [])
            x.drop = not parts
            x.text = "s_waitcnt " + " ".join(parts)

def check(path, strict):
    t = 0; last_mfma = -99; m0_t = -99
    lq = []; ld = 0; vq = []; vd = 0
    wr_mfma = {}; wr_valu = {}; wr_trans = {}; rdC = {}; st_data = {}
    slot_tile = {}
    vd_bar = 0; ld_bar = 0
    errs = [0]
    def err(msg, x):
        errs[0] += 1
        if errs[0] < 30: print("HAZARD:", msg, "|", x.text, file=sys.stderr)
    for x in path:
        if x.kind == "label" or x.drop: continue
        if x.kind == "mfma" and not strict: t = max(t, last_mfma + 4)
        touched = x.rd | x.wr | x.C
        for p in lq[ld:]:
            if p.kind == "ds_r" and (p.wr & touched): err("unwaited ds_read %s" % p.text, x)
        isv = x.kind in ("valu", "trans", "perm", "rfl")
        for r in touched:
            if r in wr_mfma:
                tt, full = wr_mfma[r]
                if x.kind == "mfma" and r not in x.rd and x.wr == full: continue
                if t - tt - 1 < 8: err("mfma D -> use after %d states (%s)" % (t - tt - 1, rn(r)), x)
        if x.kind in ("mfma", "perm"):
            for r in (x.rd | x.C):
                if r in wr_valu and t - wr_valu[r] - 1 < 2: err("valu -> %s" % x.kind, x)
        if x.kind == "rfl":
            for r in x.rd:
                if r in wr_valu and t - wr_valu[r] - 1 < 1: err("valu -> readfirstlane", x)
        if isv and x.kind != "trans":
            for r in x.rd:
                if r in wr_trans and t - wr_trans[r] - 1 < 1: err("trans -> valu", x)
        if isv:
            for r in x.wr:
                if r in rdC and t - rdC[r] - 1 < 3: err("mfma C WAR", x)
        for r in x.wr:
            if r in st_data and t - st_data[r] - 1 < 2: err("store data WAR", x)
        if x.kind == "dma" and t - m0_t - 1 < 1: err("m0 -> dma", x)
        if x.kind == "dma":
            slot, tag = x.reg
            for k, p in enumerate(lq):
                if p.reg and slot in p.reg[0]:
                    lim = ld_bar if (p.kind == "ds_r" and p.reg[2] == "shared") else ld
                    if k >= lim: err("dma into half slot %d before %s is known done" % (slot, p.text), x); break
            cur = slot_tile.get(slot)
            if cur and cur[0] != tag and cur[0][0] == "Q" and cur[2] < 2: err("Q half tile %s overwritten unread" % (cur[0],), x)
            slot_tile[slot] = [tag, len(vq), 0]
        if x.kind == "ds_r" and x.reg:
            slots, tag, mode = x.reg
            for slot in slots:
                cur = slot_tile.get(slot)
                if tag == "O":
                    if cur and cur[0] != "O": err("read-back of half slot %d holding %s" % (slot, cur[0]), x)
                elif not cur or cur[0] != tag: err("half slot %d holds %s, wanted %s" % (slot, cur, tag), x)
                elif cur[1] >= (vd_bar if mode == "shared" else vd): err("tile %s not known landed" % (tag,), x)
                else: cur[2] += 1
        if x.kind == "ds_w" and x.reg:
            slot = x.reg[0][0]
            cur = slot_tile.get(slot)
            if cur and cur[0] != "O":
                if cur[1] >= vd: err("staging write with a dma in flight", x)
                if cur[2] < 2: err("staging write before Q reads", x)
            slot_tile[slot] = ["O", -1, 0]
        if x.kind == "salu_m0": m0_t = t
        if x.kind == "mfma":
            last_mfma = t
            for r in x.wr: wr_mfma[r] = (t, x.wr); wr_valu.pop(r, None)
            for r in x.C: rdC[r] = t
        if isv:
            for r in x.wr:
                wr_valu[r] = t; wr_mfma.pop(r, None)
                if x.kind == "trans": wr_trans[r] = t
                else: wr_trans.pop(r, None)
        if x.kind == "st":
            for r in x.rd: st_data[r] = t
        if x.kind in LK: lq.append(x)
        if x.kind in VK: vq.append(x)
        if x.kind == "waitall": ld = len(lq)
        if x.kind == "wait":
            if x.site is not None: ld = max(ld, len(lq) - x.site)
            if x.vsite is not None: vd = max(vd, len(vq) - x.vsite)
        if x.kind == "barrier": vd_bar = vd; ld_bar = ld
        t += (x.tag + 1) if x.kind == "nop" else 1
    return errs[0]

HEADER = """; GQA attention forward, B=32 Hq=16 Hkv=8 Sq=Sk=384 D=256, bf16 in/out (emitted by my generator script).
; One persistent 4-wave workgroup per CU, three items of 256 query rows (64 per wave), K/V/Q staged by LDS-DMA.
; Per item: S^T = K Q^T in 16-key units, P = exp2(c*S - c*m) kept in registers as bf16, row sums by MFMA,
; then O^T = V^T P^T per 16-column tile.  m is the row max over the first 16 keys (never above the true max);
; @launch grid=(256,1,1) block=(256,1,1) lds=163840
.amdgcn_target "amdgcn-amd-amdhsa--gfx950"
.text
.globl {n}_kernel
.p2align 8
.type {n}_kernel,@function
{n}_kernel:
"""
FOOTER = """.section .rodata,"a"
.p2align 6
.amdhsa_kernel {n}_kernel
  .amdhsa_next_free_vgpr 512
  .amdhsa_next_free_sgpr 102
  .amdhsa_accum_offset 256
  .amdhsa_group_segment_fixed_size 0
  .amdhsa_kernarg_size 48
  .amdhsa_user_sgpr_count 2
  .amdhsa_user_sgpr_kernarg_segment_ptr 1
  .amdhsa_system_sgpr_workgroup_id_x 1
.end_amdhsa_kernel
"""

def main():
    ap = argparse.ArgumentParser()
    ap.add_argument("-o", dest="out", default="cdna_kernels/%s.s" % NAME)
    ap.add_argument("--thr", type=float, default=30.0)
    ap.add_argument("--qflag", default="nt")
    ap.add_argument("--kvflag", default="nt")
    ap.add_argument("--oflag", default="sc1")
    ap.add_argument("--rot", type=int, default=1)
    ap.add_argument("--s11", type=int, default=3)
    ap.add_argument("--st0", type=int, default=16)
    ap.add_argument("--st1", type=int, default=40)
    ap.add_argument("--qsteps", type=lambda s: [int(x) for x in s.split(",")], default=[4, 5, 6, 8, 9, 10, 13, 16])
    ap.add_argument("--stamps", type=int, default=0)
    ap.add_argument("--strict", type=int, default=1)
    ap.add_argument("--align", type=int, default=0)
    ap.add_argument("--drop", default="")
    ap.add_argument("--light", type=int, default=0)
    ap.add_argument("--cpre", type=int, default=1)
    ap.add_argument("--warm", type=int, default=0)
    ap.add_argument("--q2a", type=int, default=214)
    ap.add_argument("--vw", type=int, default=6)
    wl = lambda s: [tuple(int(y) for y in x.split("-")) for x in s.split(",")]
    ap.add_argument("--stw", type=wl, default=wl("254-294,302-343,350-383,16-43"))
    ap.add_argument("--kvw", type=wl, default=wl("188-195,196-207,236-243,244-251,252-259,268-283,284-293,294-303,312-330,332-345,346-359,360-374"))
    ap.add_argument("--qw", type=wl, default=wl("216-225,226-235,306-311,326-331"))
    ap.add_argument("--qr", type=wl, default=wl("257-260,270-276,366-374"))
    ap.add_argument("--dwin", type=int, default=8)
    ap.add_argument("--cw", type=int, default=1)
    ap.add_argument("--w32", type=int, default=1)
    ap.add_argument("--pad", type=lambda s: [int(x) for x in s.split(",")], default=None)
    ap.add_argument("--spc", type=int, default=24)
    ap.add_argument("--vnear", type=float, default=4)
    ap.add_argument("--minwin", type=int, default=4)
    ap.add_argument("--rrc", type=int, default=10)
    ap.add_argument("--rbl", type=int, default=1)
    ap.add_argument("--verbose", type=int, default=0)
    ap.add_argument("--tsplit", type=int, default=1)
    ap.add_argument("--hop", type=int, default=5)
    ap.add_argument("--touch", type=lambda s: [int(x) for x in s.split(",")] if s else [], default=[100, 132, 164])
    ap.add_argument("--tab", type=int, default=1)
    ap.add_argument("--nonull", type=int, default=0)
    ap.add_argument("--order", type=int, default=2)
    ap.add_argument("--qplan", type=lambda s: [int(x) for x in s.split(",")], default=[3, 4, 5, 6, 7, 8, 9, 9, 10, 10, 11, 11])
    ap.add_argument("--prio", type=lambda s: [int(x) for x in s.split(",")] if s else None, default=[6, 6, 6, 6, 0, 0, 0, 0])
    ap.add_argument("--kw", type=int, default=14)
    ap.add_argument("--ddc", type=int, default=22)
    ap.add_argument("--tpre", type=int, default=0)
    ap.add_argument("--stc", type=int, default=21)
    ap.add_argument("--rd2", type=int, default=0)
    ap.add_argument("--cv", type=int, default=1)
    o = ap.parse_args()
    COST.update({"ds_w": o.cw, "dma": 8, "st": 8})
    if o.tab == 0:
        KSLOT[:] = [5, 0, 1, 2, 6, 3, 4, 0, 1, 2, 3, 4]; VSLOT[3] = [6, 3, 4]
    if o.tab == 2:
        KSLOT[:] = [5, 0, 1, 2, 7, 3, 4, 0, 1, 2, 3, 4]; VSLOT[3] = [7, 3, 4]
    g = Gen(o)
    body = g.body()
    pro, tail, slow = g.prologue(), g.tail(), g.ool + g.slow()
    path = pro + body + body + tail
    resolve(path)
    errs = check(path, o.strict) + check(slow, o.strict)
    if errs: print("%d hazard findings" % errs, file=sys.stderr)
    drop = set(o.drop.split(",")) if o.drop else set()
    body = [x for x in body if x.kind not in drop]
    if "valu" in drop: body = [x for x in body if "vccnz" not in (x.text or "")]
    if o.light:
        pro[2:2] = [raw("s_memrealtime s[60:61]"), raw("s_memtime s[80:81]"), raw("s_load_dwordx2 s[48:49], s[0:1], 40")]
        pro[len(pro) - 1:len(pro) - 1] = [raw("s_memrealtime s[62:63]"), raw("s_memtime s[82:83]"), raw("s_mov_b32 s50, 0x100000"), raw("s_mov_b32 s51, 0x20000")]
        e = [i for i, x in enumerate(pro) if x.kind == "waitall"][0] + 1
        pro[e:e] = [raw("s_memrealtime s[72:73]"), raw("s_memtime s[92:93]")]
        e = len(body) - 1
        body[e:e] = [raw("s_mov_b64 s[64:65], s[66:67]"), raw("s_mov_b64 s[66:67], s[68:69]"), raw("s_memrealtime s[68:69]"),
                     raw("s_mov_b64 s[84:85], s[86:87]"), raw("s_mov_b64 s[86:87], s[88:89]"), raw("s_memtime s[88:89]")]
        e = len(tail) - 2
        x = ["s_waitcnt vmcnt(0)", "s_memrealtime s[70:71]", "s_memtime s[90:91]", "s_waitcnt lgkmcnt(0)",
             "s_cmp_lg_u32 s20, 0", "s_cbranch_scc1 L_end", "s_lshl_b32 s74, s2, 6"]
        for k in range(7):
            x += ["v_mov_b32 v0, s%d" % (60 + 2 * k), "buffer_store_dword v0, off, s[48:51], s74 offset:%d" % (4 * k), "s_nop 1"]
            x += ["v_mov_b32 v0, s%d" % (80 + 2 * k), "buffer_store_dword v0, off, s[48:51], s74 offset:%d" % (32 + 4 * k), "s_nop 1"]
        x += ["s_getreg_b32 s60, hwreg(HW_REG_XCC_ID)", "v_mov_b32 v0, s60", "buffer_store_dword v0, off, s[48:51], s74 offset:28"]
        tail[e:e] = [raw(y) for y in x]
    if o.hop:
        import subprocess, re
        def sizes(code):
            src = ".text\n" + "\n".join(x.text for x in code if not x.drop) + "\n"
            r = subprocess.run(["llvm-mc", "-triple=amdgcn-amd-amdhsa", "-mcpu=gfx950", "-show-encoding"], input=src, capture_output=True, text=True)
            enc = [len(m.split(",")) for m in re.findall(r"encoding: \[(.*?)\]", r.stdout)]
            return enc
        code = [x for x in body + tail if not x.drop]
        enc = iter(sizes(code))
        off = 0; nxt = 0; out = []; hops = []
        for x in code:
            out.append(x)
            if x.kind != "label": off += next(enc)
            if off >= nxt and x.kind == "mfma":
                hops.append(raw("", "branch"))
                out += [label("L_hop%d" % (len(hops) - 1)), hops[-1]]
                off += 4; nxt += 4096
        for k, x in enumerate(hops): x.text = "s_cbranch_execz " + ("L_hop%d" % (k + 4) if k + 4 < len(hops) else "L_hopend")
        nb = [i for i, x in enumerate(out) if x is body[-1]][0] + 1
        body, tail = out[:nb], out[nb:]
        e = [i for i, x in enumerate(pro) if x.kind == "wait" and x.vneed == [("Q", o.hop, 1)]][0]
        ent = [salu("s_mov_b64 exec, 0")]
        for w in range(3): ent += [salu("s_cmp_eq_u32 s%d, %d" % (S_W, w)), raw("s_cbranch_scc1 L_hop%d" % w, "branch")]
        pro[e:e] = ent + [raw("s_branch L_hop3", "branch"), label("L_hopend"), salu("s_mov_b64 exec, -1")]
        pro += [raw("s_branch L_item", "branch"), raw(".p2align 12", "label")]
    txt = HEADER.format(n=NAME)
    al = [raw(".p2align %d" % o.align, "label")] if o.align else []
    for x in pro + al + body + tail + slow:
        if x.drop: continue
        txt += ("" if x.kind == "label" else "    ") + x.text + "\n"
    txt += FOOTER.format(n=NAME)
    open(o.out, "w").write(txt)
    print(dict(Counter(x.kind for x in body if not x.drop)), file=sys.stderr)
    return 1 if errs else 0

if __name__ == "__main__":
    sys.exit(main())
```
